```python
import torch

def _softmax(x, axis=-1):
    return torch.softmax(x, dim=axis)
def _gelu(x):
    return torch.nn.functional.gelu(x, approximate="tanh")
def _silu(x):
    return torch.nn.functional.silu(x)
def _sigmoid(x):
    return torch.sigmoid(x)
def _layernorm(x, axis=-1, eps=1e-5):
    m = x.mean(dim=axis, keepdim=True)
    v = x.var(dim=axis, keepdim=True, unbiased=False)
    return (x - m) / torch.sqrt(v + eps)
def _scatter_add(tgt, idx, src, axis=0):
    return tgt.clone().index_add_(axis, idx, src)
def _segment_sum(src, seg, n):
    out = torch.zeros((n,) + src.shape[1:], dtype=src.dtype)
    return out.index_add_(0, seg, src)
def _pad(x, pw):
    flat = tuple(v for pair in reversed(pw) for v in pair)
    return torch.nn.functional.pad(x, flat)

kernel_name = 'standalone__mha_softmax__decode'

def setup_inputs():

    _w = (lambda a: (lambda t: t.to(torch.bfloat16) if t.is_floating_point() else t)(torch.as_tensor(a)))
    B, H, Sq, Sk, D = 1, 32, 1, 8192, 128
    return {
        "q": _w((lambda *s: torch.randn(*s, dtype=torch.bfloat16) * 0.8)(B, H, Sq, D)),
        "k": _w((lambda *s: torch.randn(*s, dtype=torch.bfloat16) * 0.8)(B, H, Sk, D)),
        "v": _w((lambda *s: torch.randn(*s, dtype=torch.bfloat16) * 0.05)(B, H, Sk, D)),
    }

def reference(q, k, v):
    scale = q.shape[-1] ** -0.5
    scores = torch.einsum("bhqd,bhkd->bhqk", q, k) * scale
    p = _softmax(scores, axis=-1)
    return torch.einsum("bhqk,bhkd->bhqd", p, v)
```

```python
import argparse
import math
import struct

HEADER = """; Kernarg layout for this problem (48 bytes, ptrs only, base s[0:1]):
"""
NAME = "standalone__mha_softmax__decode_kernel"


def f2u(x):
    return struct.unpack("<I", struct.pack("<f", x))[0]


class Asm:
    def __init__(self):
        self.lines = []
        self.vm = []

    def __call__(self, s):
        self.lines.append("    " + s)

    def label(self, s):
        self.lines.append(s + ":")

    def c(self, s):
        self.lines.append("    ; " + s)

    def vmem(self, s, tag):
        self(s)
        self.vm.append(tag)
        assert len(self.vm) <= 63, "vmcnt overflow"

    def wait_tag(self, tag):
        idx = max(i for i, t in enumerate(self.vm) if t == tag)
        n = len(self.vm) - 1 - idx
        self(f"s_waitcnt vmcnt({n})")
        self.vm = self.vm[idx + 1:]

    def wait_all(self):
        self("s_waitcnt vmcnt(0)")
        self.vm = []


def gen(NW=8, S=8, R=12, pol="nt", interleave=1, kvmode=0, wgmap=0, stamp=0):
    T = 8192 // (S * NW * 16)
    assert T * S * NW * 16 == 8192
    R = min(R, 2 * T)
    NWG = 32 * S
    lgNW = int(math.log2(NW))
    lgS = int(math.log2(S))
    chunk = (2 << 20) // S
    a = Asm()
    vK, vV = 1, 2
    vT0, vT1 = 3, 4
    vC = 5
    vM = 6
    vL = 7
    vD = 8
    vO = 12
    vMask = 16
    vA = 20
    vS = 36
    vRing = (vS + T + 3) // 4 * 4
    nv = vRing + 16 * R
    need = max(nv, vRing + 2 * max(NW, S) + 8)
    nv = need
    assert nv <= 512 // max(1, NW // 4), (nv, NW)
    assert nv <= 256
    pol = (" " + pol) if pol else ""

    def slot(n):
        return vRing + 16 * (n % R)

    tstride = 4096 * NW if interleave else 4096
    wstride = 4096 if interleave else 4096 * T

    def issue_tile(n):
        isK = n < T
        i = n if isK else n - T
        va = vK if isK else vV
        base = "s[6:7]" if isK else "s[8:9]"
        if kvmode == 0:
            step = 1024 if isK else 256
        else:
            step = 256 if isK else 1024
        if i > 0:
            a(f"v_add_u32 v{va}, {tstride}, v{va}")
        r = slot(n)
        for t in range(4):
            off = f" offset:{t*step}" if t else ""
            a.vmem(f"global_load_dwordx4 v[{r+4*t}:{r+4*t+3}], v{va}, {base}{off}{pol}", ("t", n))
        return 4 + (1 if i > 0 else 0)

    a(f"s_cmpk_ge_u32 s2, {NWG}")
    a("s_cbranch_scc1 L_end")
    a("s_load_dwordx8 s[4:11], s[0:1], 0")
    a("s_load_dwordx4 s[12:15], s[0:1], 32")
    if stamp:
        a("s_memrealtime s[40:41]")
    if wgmap == 0:
        a(f"s_lshr_b32 s17, s2, {lgS}")
        a(f"s_and_b32 s18, s2, {S-1}")
    else:
        a(f"s_and_b32 s17, s2, 31")
        a(f"s_lshr_b32 s18, s2, 5")
    a(f"s_lshl_b32 s19, s17, 21")
    a(f"s_lshl_b32 s20, s18, {int(math.log2(chunk))}")
    a(f"s_add_u32 s19, s19, s20")
    a(f"v_lshrrev_b32 v{vT0}, 6, v0")
    a(f"v_and_b32 v0, 63, v0")
    a(f"v_readfirstlane_b32 s16, v{vT0}")
    a(f"v_lshlrev_b32 v{vT0}, {int(math.log2(wstride))}, v{vT0}")
    a(f"v_add_u32 v{vT0}, s19, v{vT0}")
    a(f"v_and_b32 v{vT1}, 3, v0")
    a(f"v_lshlrev_b32 v{vT1}, 4, v{vT1}")
    a(f"v_and_b32 v{vM}, 48, v0")
    a(f"v_lshl_add_u32 v{vT1}, v{vM}, 2, v{vT1}")
    a(f"v_and_b32 v{vL}, 12, v0")
    if kvmode == 0:
        a(f"v_lshl_add_u32 v{vK}, v{vL}, 6, v{vT1}")
        a(f"v_add_u32 v{vK}, v{vK}, v{vT0}")
        a(f"v_and_b32 v{vL}, 15, v0")
        a(f"v_lshlrev_b32 v{vL}, 4, v{vL}")
        a(f"v_lshl_add_u32 v{vV}, v{vM}, 6, v{vL}")
        a(f"v_add_u32 v{vV}, v{vV}, v{vT0}")
    else:
        a(f"v_lshl_add_u32 v{vK}, v{vL}, 8, v{vT1}")
        a(f"v_add_u32 v{vK}, v{vK}, v{vT0}")
        a(f"v_lshl_add_u32 v{vV}, v0, 4, v{vT0}")
    a(f"s_lshl_b32 s20, s17, 8")
    a(f"v_add_u32 v{vT1}, s20, v{vT1}")
    a("s_waitcnt lgkmcnt(0)")
    a.vmem(f"global_load_dwordx4 v[{vD}:{vD+3}], v{vT1}, s[4:5]", "q")
    for n in range(R):
        issue_tile(n)
    a(f"v_and_b32 v{vT0}, 1, v0")
    a(f"v_lshlrev_b32 v{vT0}, 4, v{vT0}")
    a(f"s_mov_b32 s21, 0xffff")
    a(f"v_lshlrev_b32 v{vT0}, v{vT0}, s21")
    a(f"s_mov_b32 vcc_lo, 0x03030303")
    a(f"s_mov_b32 vcc_hi, vcc_lo")
    for i in range(4):
        a(f"v_cndmask_b32 v{vMask+i}, 0, v{vT0}, vcc")
        if i < 3:
            a(f"s_lshl_b64 vcc, vcc, 2")
    cval = math.log2(math.e) / math.sqrt(128.0)
    a(f"v_mov_b32 v{vC}, 0x{f2u(cval):08x}")
    a(f"s_mov_b32 vcc_lo, 0x000f000f")
    a(f"s_mov_b32 vcc_hi, vcc_lo")
    a.wait_tag("q")
    for t in range(4):
        for i in range(4):
            a(f"v_cndmask_b32 v{vA+4*t+i}, 0, v{vD+i}, vcc")
        if t < 3:
            a(f"s_lshl_b64 vcc, vcc, 4")
    for n in range(T):
        a.c(f"K tile {n}")
        a.wait_tag(("t", n))
        if n == 0:
            a("s_nop 0")
        r = slot(n)
        for t in range(4):
            cin = "0" if t == 0 else f"v[{vD}:{vD+3}]"
            a(f"v_mfma_f32_16x16x32_bf16 v[{vD}:{vD+3}], v[{vA+4*t}:{vA+4*t+3}], v[{r+4*t}:{r+4*t+3}], {cin}")
        st = 0
        if n + R < 2 * T:
            st = issue_tile(n + R)
        if st < 8:
            a(f"s_nop {8 - st - 1}")
        s = vS + n
        a(f"v_mov_b32_dpp v{s}, v{vD} quad_perm:[0,0,0,0] row_mask:0xf bank_mask:0xf")
        for b in range(1, 4):
            a(f"v_add_f32_dpp v{s}, v{vD+b}, v{s} quad_perm:[{b},{b},{b},{b}] row_mask:0xf bank_mask:0xf")
    a.c("wave max")
    if T == 1:
        a(f"v_mov_b32 v{vM}, v{vS}")
    else:
        a(f"v_max_f32 v{vM}, v{vS}, v{vS+1}")
        i = 2
        while i < T:
            a(f"v_max3_f32 v{vM}, v{vM}, v{vS+i}, v{vS+i+1}")
            i += 2
    for ctl in ("row_ror:4 row_mask:0xf", "row_ror:8 row_mask:0xf", "row_bcast:15 row_mask:0xa", "row_bcast:31 row_mask:0xc"):
        a("s_nop 1")
        a(f"v_max_f32_dpp v{vM}, v{vM}, v{vM} {ctl} bank_mask:0xf")
    a(f"v_mul_f32 v{vM}, v{vC}, v{vM}")
    a("s_nop 0")
    a(f"v_readlane_b32 s22, v{vM}, 63")
    a("s_nop 1")
    for n in range(T):
        a(f"v_fma_f32 v{vS+n}, v{vS+n}, v{vC}, -s22")
    for n in range(T):
        a(f"v_exp_f32 v{vS+n}, v{vS+n}")
    a(f"v_mov_b32 v{vM}, s22")
    if T == 1:
        a(f"v_mov_b32 v{vL}, v{vS}")
    else:
        a(f"v_add_f32 v{vL}, v{vS}, v{vS+1}")
        for n in range(2, T):
            a(f"v_add_f32 v{vL}, v{vL}, v{vS+n}")
    for n in range(T):
        a(f"v_cvt_pk_bf16_f32 v{vS+n}, v{vS+n}, v{vS+n}")
    for ctl in ("row_ror:4 row_mask:0xf", "row_ror:8 row_mask:0xf", "row_bcast:15 row_mask:0xa", "row_bcast:31 row_mask:0xc"):
        a("s_nop 1")
        a(f"v_add_f32_dpp v{vL}, v{vL}, v{vL} {ctl} bank_mask:0xf")
    a(f"s_lshl_b32 s23, s16, 3")
    a(f"v_mov_b32 v{vT0}, s23")
    a(f"s_brev_b64 exec, 1")
    a(f"ds_write_b64 v{vT0}, v[{vM}:{vL}] offset:{NW*512}")
    a(f"s_mov_b64 exec, -1")
    a(f"v_and_b32 v{vT0}, 15, v0")
    a(f"v_lshlrev_b32 v{vT0}, 5, v{vT0}")
    a(f"v_and_b32 v{vT1}, 16, v0")
    a(f"s_lshl_b32 s23, s16, 9")
    a(f"v_add3_u32 v{vT0}, v{vT0}, v{vT1}, s23")
    for i in range(T):
        n = T + i
        a.c(f"V tile {i}")
        for u in range(4):
            for j in range(4):
                a(f"v_and_b32_dpp v{vA+4*u+j}, v{vS+i}, v{vMask+j} row_newbcast:{4*u} row_mask:0xf bank_mask:0xf")
        a.wait_tag(("t", n))
        a("s_nop 0")
        r = slot(n)
        for u in range(4):
            cin = "0" if (i == 0 and u == 0) else f"v[{vO}:{vO+3}]"
            a(f"v_mfma_f32_16x16x32_bf16 v[{vO}:{vO+3}], v[{vA+4*u}:{vA+4*u+3}], v[{r+4*u}:{r+4*u+3}], {cin}")
        if n + R < 2 * T:
            issue_tile(n + R)
    a("s_nop 7")
    a(f"ds_write_b128 v{vT0}, v[{vO}:{vO+3}]")
    a("s_waitcnt lgkmcnt(0)")
    a("s_barrier")
    a("s_cmp_lg_u32 s16, 0")
    a("s_cbranch_scc1 L_end")

    vP = vRing

    def combine(n, waitfn):
        lg = int(math.log2(n))
        waitfn("ml")
        a(f"v_mov_b32 v{vT0}, v{vM}")
        for k in range(lg):
            a("s_nop 1")
            a(f"v_max_f32_dpp v{vT0}, v{vT0}, v{vT0} row_ror:{1<<k} row_mask:0xf bank_mask:0xf")
        a(f"v_sub_f32 v{vT1}, v{vM}, v{vT0}")
        a(f"v_exp_f32 v{vT1}, v{vT1}")
        a(f"v_mov_b32 v{vM}, v{vT0}")
        a(f"v_mul_f32 v{vL}, v{vL}, v{vT1}")
        waitfn("o")
        for w in range(n):
            op = "v_mul_f32_dpp" if w == 0 else "v_fmac_f32_dpp"
            for h in range(2):
                a(f"{op} v{vO+h}, v{vT1}, v{vP+2*w+h} row_newbcast:{w} row_mask:0xf bank_mask:0xf")
            if w < lg:
                a(f"v_add_f32_dpp v{vL}, v{vL}, v{vL} row_ror:{1<<w} row_mask:0xf bank_mask:0xf")

    a.c("workgroup combine (wave 0)")
    a(f"v_and_b32 v{vT0}, {NW-1}, v0")
    a(f"v_lshlrev_b32 v{vT0}, 3, v{vT0}")
    a(f"v_lshlrev_b32 v{vK}, 3, v0")
    a(f"ds_read_b64 v[{vM}:{vL}], v{vT0} offset:{NW*512}")
    for w in range(NW):
        a(f"ds_read_b64 v[{vP+2*w}:{vP+2*w+1}], v{vK} offset:{w*512}")

    def ldswait(which):
        if which == "ml":
            a(f"s_waitcnt lgkmcnt({min(NW, 15)})")
        else:
            a("s_waitcnt lgkmcnt(0)")
    combine(NW, ldswait)
    a(f"s_lshl_b32 s24, s17, {lgS+10}")
    a(f"s_lshl_b32 s25, s18, 10")
    a(f"s_add_u32 s25, s25, s24")
    a(f"v_add_u32 v{vV}, s25, v{vK}")
    a.vmem(f"global_store_dwordx2 v{vV}, v[{vO}:{vO+1}], s[14:15] sc1", "st")
    a("s_mov_b64 exec, 1")
    a.vmem(f"global_store_dwordx2 v{vV}, v[{vM}:{vL}], s[14:15] offset:512 sc1", "st")
    a(f"s_lshl_b32 s26, s17, 3")
    a(f"v_mov_b32 v{vT0}, s26")
    a(f"v_mov_b32 v{vT1}, 1")
    a.wait_all()
    a.vmem(f"global_atomic_add v{vT1}, v{vT0}, v{vT1}, s[12:13] sc0", "at")
    a.wait_all()
    a(f"v_readfirstlane_b32 s27, v{vT1}")
    a("s_mov_b64 exec, -1")
    a(f"s_cmp_lg_u32 s27, {S-1}")
    a("s_cbranch_scc1 L_end")
    a.c("last workgroup of this head: final combine")
    a(f"v_and_b32 v{vT0}, {S-1}, v0")
    a(f"v_lshlrev_b32 v{vT0}, 10, v{vT0}")
    a(f"v_add_u32 v{vT0}, s24, v{vT0}")
    a.vmem(f"global_load_dwordx2 v[{vM}:{vL}], v{vT0}, s[14:15] offset:512 sc1", "ml")
    a(f"v_add_u32 v{vV}, s24, v{vK}")
    for w in range(S):
        if w and w % 4 == 0:
            a(f"v_add_u32 v{vV}, 4096, v{vV}")
        off = (w % 4) * 1024
        a.vmem(f"global_load_dwordx2 v[{vP+2*w}:{vP+2*w+1}], v{vV}, s[14:15] offset:{off} sc1", "o")
    combine(S, a.wait_tag)
    a(f"v_rcp_f32 v{vL}, v{vL}")
    a(f"v_lshlrev_b32 v{vT0}, 2, v0")
    a(f"v_add_u32 v{vT0}, s20, v{vT0}")
    a(f"v_mul_f32 v{vO}, v{vO}, v{vL}")
    a(f"v_mul_f32 v{vO+1}, v{vO+1}, v{vL}")
    a(f"v_cvt_pk_bf16_f32 v{vO}, v{vO}, v{vO+1}")
    a.vmem(f"global_store_dword v{vT0}, v{vO}, s[10:11]", "out")
    a.label("L_end")
    a("s_endpgm")

    lds = NW * 512 + NW * 8
    out = HEADER
    out += f"; @launch grid=({NWG},1,1) block=({NW*64},1,1) lds={lds}\n"
    out += '.amdgcn_target "amdgcn-amd-amdhsa--gfx950"\n.text\n'
    out += f".globl {NAME}\n.p2align 8\n.type {NAME},@function\n{NAME}:\n"
    out += "\n".join(a.lines) + "\n"
    acc = (nv + 3) // 4 * 4
    out += f""".section .rodata,"a"
.p2align 6
.amdhsa_kernel {NAME}
  .amdhsa_next_free_vgpr {nv}
  .amdhsa_next_free_sgpr 48
  .amdhsa_accum_offset {acc}
  .amdhsa_group_segment_fixed_size 0
  .amdhsa_kernarg_size 48
  .amdhsa_user_sgpr_count 2
  .amdhsa_user_sgpr_kernarg_segment_ptr 1
  .amdhsa_system_sgpr_workgroup_id_x 1
  .amdhsa_float_denorm_mode_32 3
.end_amdhsa_kernel
"""
    return out


if __name__ == "__main__":
    p = argparse.ArgumentParser()
    p.add_argument("-o", required=True)
    for k, d in dict(NW=8, S=8, R=12, interleave=1, kvmode=0, wgmap=0, stamp=0).items():
        p.add_argument("--" + k, type=int, default=d)
    p.add_argument("--pol", default="nt")
    args = vars(p.parse_args())
    o = args.pop("o")
    open(o, "w").write(gen(**args))
```

```python
import argparse
import math
import struct

HEADER = """; Kernarg layout for this problem (48 bytes, ptrs only, base s[0:1]):
"""
NAME = "standalone__mha_softmax__decode_kernel"


def f2u(x):
    return struct.unpack("<I", struct.pack("<f", x))[0]


class Asm:
    def __init__(self):
        self.lines = []
        self.vm = []

    def __call__(self, s):
        self.lines.append("    " + s)

    def label(self, s):
        self.lines.append(s + ":")

    def c(self, s):
        self.lines.append("    ; " + s)

    def vmem(self, s, tag):
        self(s)
        self.vm.append(tag)
        assert len(self.vm) <= 63, "vmcnt overflow"

    def wait_tag(self, tag):
        idx = max(i for i, t in enumerate(self.vm) if t == tag)
        n = len(self.vm) - 1 - idx
        self(f"s_waitcnt vmcnt({n})")
        self.vm = self.vm[idx + 1:]

    def wait_all(self):
        self("s_waitcnt vmcnt(0)")
        self.vm = []


def gen(NW=8, S=8, R=12, pol="nt", interleave=1, kvmode=0, wgmap=0, stamp=0, amp=0):
    T = 8192 // (S * NW * 16)
    assert T * S * NW * 16 == 8192
    R = min(R, 2 * T)
    NWG = 32 * S
    lgNW = int(math.log2(NW))
    lgS = int(math.log2(S))
    chunk = (2 << 20) // S
    a = Asm()
    vK, vV = 1, 2
    vT0, vT1 = 3, 4
    vC = 5
    vM = 6
    vL = 7
    vD = 8
    vO = 12
    vMask = 16
    vA = 20
    vS = 36
    vRing = (vS + T + 3) // 4 * 4
    nv = vRing + 16 * R
    need = max(nv, vRing + 2 * max(NW, S) + 8)
    nv = need
    assert nv <= 512 // max(1, NW // 4), (nv, NW)
    assert nv <= 256
    pol = (" " + pol) if pol else ""

    def slot(n):
        return vRing + 16 * (n % R)

    tstride = 4096 * NW if interleave else 4096
    wstride = 4096 if interleave else 4096 * T

    def issue_tile(n):
        isK = n < T
        i = n if isK else n - T
        va = vK if isK else vV
        base = "s[6:7]" if isK else "s[8:9]"
        if kvmode == 0:
            step = 1024 if isK else 256
        else:
            step = 256 if isK else 1024
        if i > 0:
            a(f"v_add_u32 v{va}, {tstride}, v{va}")
        r = slot(n)
        for t in range(4):
            off = f" offset:{t*step}" if t else ""
            a.vmem(f"global_load_dwordx4 v[{r+4*t}:{r+4*t+3}], v{va}, {base}{off}{pol}", ("t", n))
        return 4 + (1 if i > 0 else 0)

    a(f"s_cmpk_ge_u32 s2, {NWG}")
    a("s_cbranch_scc1 L_end")
    a("s_load_dwordx8 s[4:11], s[0:1], 0")
    a("s_load_dwordx4 s[12:15], s[0:1], 32")
    if stamp or amp:
        a("s_memrealtime s[40:41]")
    if wgmap == 0:
        a(f"s_lshr_b32 s17, s2, {lgS}")
        a(f"s_and_b32 s18, s2, {S-1}")
    else:
        a(f"s_and_b32 s17, s2, 31")
        a(f"s_lshr_b32 s18, s2, 5")
    a(f"s_lshl_b32 s19, s17, 21")
    a(f"s_lshl_b32 s20, s18, {int(math.log2(chunk))}")
    a(f"s_add_u32 s19, s19, s20")
    a(f"v_lshrrev_b32 v{vT0}, 6, v0")
    a(f"v_and_b32 v0, 63, v0")
    a(f"v_readfirstlane_b32 s16, v{vT0}")
    a(f"v_lshlrev_b32 v{vT0}, {int(math.log2(wstride))}, v{vT0}")
    a(f"v_add_u32 v{vT0}, s19, v{vT0}")
    a(f"v_and_b32 v{vT1}, 3, v0")
    a(f"v_lshlrev_b32 v{vT1}, 4, v{vT1}")
    a(f"v_and_b32 v{vM}, 48, v0")
    a(f"v_lshl_add_u32 v{vT1}, v{vM}, 2, v{vT1}")
    a(f"v_and_b32 v{vL}, 12, v0")
    if kvmode == 0:
        a(f"v_lshl_add_u32 v{vK}, v{vL}, 6, v{vT1}")
        a(f"v_add_u32 v{vK}, v{vK}, v{vT0}")
        a(f"v_and_b32 v{vL}, 15, v0")
        a(f"v_lshlrev_b32 v{vL}, 4, v{vL}")
        a(f"v_lshl_add_u32 v{vV}, v{vM}, 6, v{vL}")
        a(f"v_add_u32 v{vV}, v{vV}, v{vT0}")
    else:
        a(f"v_lshl_add_u32 v{vK}, v{vL}, 8, v{vT1}")
        a(f"v_add_u32 v{vK}, v{vK}, v{vT0}")
        a(f"v_lshl_add_u32 v{vV}, v0, 4, v{vT0}")
    a(f"s_lshl_b32 s20, s17, 8")
    a(f"v_add_u32 v{vT1}, s20, v{vT1}")
    a("s_waitcnt lgkmcnt(0)")
    a.vmem(f"global_load_dwordx4 v[{vD}:{vD+3}], v{vT1}, s[4:5]", "q")
    for n in range(R):
        issue_tile(n)
    a(f"v_and_b32 v{vT0}, 1, v0")
    a(f"v_lshlrev_b32 v{vT0}, 4, v{vT0}")
    a(f"s_mov_b32 s21, 0xffff")
    a(f"v_lshlrev_b32 v{vT0}, v{vT0}, s21")
    a(f"s_mov_b32 vcc_lo, 0x03030303")
    a(f"s_mov_b32 vcc_hi, vcc_lo")
    for i in range(4):
        a(f"v_cndmask_b32 v{vMask+i}, 0, v{vT0}, vcc")
        if i < 3:
            a(f"s_lshl_b64 vcc, vcc, 2")
    cval = math.log2(math.e) / math.sqrt(128.0)
    a(f"v_mov_b32 v{vC}, 0x{f2u(cval):08x}")
    a(f"s_mov_b32 vcc_lo, 0x000f000f")
    a(f"s_mov_b32 vcc_hi, vcc_lo")
    a.wait_tag("q")
    for t in range(4):
        for i in range(4):
            a(f"v_cndmask_b32 v{vA+4*t+i}, 0, v{vD+i}, vcc")
        if t < 3:
            a(f"s_lshl_b64 vcc, vcc, 4")
    for n in range(T):
        a.c(f"K tile {n}")
        a.wait_tag(("t", n))
        if n == 0:
            a("s_nop 0")
        r = slot(n)
        for t in range(4):
            cin = "0" if t == 0 else f"v[{vD}:{vD+3}]"
            a(f"v_mfma_f32_16x16x32_bf16 v[{vD}:{vD+3}], v[{vA+4*t}:{vA+4*t+3}], v[{r+4*t}:{r+4*t+3}], {cin}")
        st = 0
        if n + R < 2 * T:
            st = issue_tile(n + R)
        if st < 8:
            a(f"s_nop {8 - st - 1}")
        s = vS + n
        a(f"v_mov_b32_dpp v{s}, v{vD} quad_perm:[0,0,0,0] row_mask:0xf bank_mask:0xf")
        for b in range(1, 4):
            a(f"v_add_f32_dpp v{s}, v{vD+b}, v{s} quad_perm:[{b},{b},{b},{b}] row_mask:0xf bank_mask:0xf")
    a.c("wave max")
    if T == 1:
        a(f"v_mov_b32 v{vM}, v{vS}")
    else:
        a(f"v_max_f32 v{vM}, v{vS}, v{vS+1}")
        i = 2
        while i < T:
            a(f"v_max3_f32 v{vM}, v{vM}, v{vS+i}, v{vS+i+1}")
            i += 2
    for ctl in ("row_ror:4 row_mask:0xf", "row_ror:8 row_mask:0xf", "row_bcast:15 row_mask:0xa", "row_bcast:31 row_mask:0xc"):
        a("s_nop 1")
        a(f"v_max_f32_dpp v{vM}, v{vM}, v{vM} {ctl} bank_mask:0xf")
    a(f"v_mul_f32 v{vM}, v{vC}, v{vM}")
    a("s_nop 0")
    a(f"v_readlane_b32 s22, v{vM}, 63")
    a("s_nop 1")
    for n in range(T):
        a(f"v_fma_f32 v{vS+n}, v{vS+n}, v{vC}, -s22")
    for n in range(T):
        a(f"v_exp_f32 v{vS+n}, v{vS+n}")
    a(f"v_mov_b32 v{vM}, s22")
    if T == 1:
        a(f"v_mov_b32 v{vL}, v{vS}")
    else:
        a(f"v_add_f32 v{vL}, v{vS}, v{vS+1}")
        for n in range(2, T):
            a(f"v_add_f32 v{vL}, v{vL}, v{vS+n}")
    for n in range(T):
        a(f"v_cvt_pk_bf16_f32 v{vS+n}, v{vS+n}, v{vS+n}")
    for ctl in ("row_ror:4 row_mask:0xf", "row_ror:8 row_mask:0xf", "row_bcast:15 row_mask:0xa", "row_bcast:31 row_mask:0xc"):
        a("s_nop 1")
        a(f"v_add_f32_dpp v{vL}, v{vL}, v{vL} {ctl} bank_mask:0xf")
    a(f"s_lshl_b32 s23, s16, 3")
    a(f"v_mov_b32 v{vT0}, s23")
    a(f"s_brev_b64 exec, 1")
    a(f"ds_write_b64 v{vT0}, v[{vM}:{vL}] offset:{NW*512}")
    a(f"s_mov_b64 exec, -1")
    a(f"v_and_b32 v{vT0}, 15, v0")
    a(f"v_lshlrev_b32 v{vT0}, 5, v{vT0}")
    a(f"v_and_b32 v{vT1}, 16, v0")
    a(f"s_lshl_b32 s23, s16, 9")
    a(f"v_add3_u32 v{vT0}, v{vT0}, v{vT1}, s23")
    for i in range(T):
        n = T + i
        a.c(f"V tile {i}")
        for u in range(4):
            for j in range(4):
                a(f"v_and_b32_dpp v{vA+4*u+j}, v{vS+i}, v{vMask+j} row_newbcast:{4*u} row_mask:0xf bank_mask:0xf")
        a.wait_tag(("t", n))
        a("s_nop 0")
        r = slot(n)
        for u in range(4):
            cin = "0" if (i == 0 and u == 0) else f"v[{vO}:{vO+3}]"
            a(f"v_mfma_f32_16x16x32_bf16 v[{vO}:{vO+3}], v[{vA+4*u}:{vA+4*u+3}], v[{r+4*u}:{r+4*u+3}], {cin}")
        if n + R < 2 * T:
            issue_tile(n + R)
    a("s_nop 7")
    a(f"ds_write_b128 v{vT0}, v[{vO}:{vO+3}]")
    a("s_waitcnt lgkmcnt(0)")
    a("s_barrier")
    a("s_cmp_lg_u32 s16, 0")
    a("s_cbranch_scc1 L_end")

    vP = vRing

    def combine(n, waitfn):
        lg = int(math.log2(n))
        waitfn("ml")
        a(f"v_mov_b32 v{vT0}, v{vM}")
        for k in range(lg):
            a("s_nop 1")
            a(f"v_max_f32_dpp v{vT0}, v{vT0}, v{vT0} row_ror:{1<<k} row_mask:0xf bank_mask:0xf")
        a(f"v_sub_f32 v{vT1}, v{vM}, v{vT0}")
        a(f"v_exp_f32 v{vT1}, v{vT1}")
        a(f"v_mov_b32 v{vM}, v{vT0}")
        a(f"v_mul_f32 v{vL}, v{vL}, v{vT1}")
        waitfn("o")
        for w in range(n):
            op = "v_mul_f32_dpp" if w == 0 else "v_fmac_f32_dpp"
            for h in range(2):
                a(f"{op} v{vO+h}, v{vT1}, v{vP+2*w+h} row_newbcast:{w} row_mask:0xf bank_mask:0xf")
            if w < lg:
                a(f"v_add_f32_dpp v{vL}, v{vL}, v{vL} row_ror:{1<<w} row_mask:0xf bank_mask:0xf")

    a.c("workgroup combine (wave 0)")
    a(f"v_and_b32 v{vT0}, {NW-1}, v0")
    a(f"v_lshlrev_b32 v{vT0}, 3, v{vT0}")
    a(f"v_lshlrev_b32 v{vK}, 3, v0")
    a(f"ds_read_b64 v[{vM}:{vL}], v{vT0} offset:{NW*512}")
    for w in range(NW):
        a(f"ds_read_b64 v[{vP+2*w}:{vP+2*w+1}], v{vK} offset:{w*512}")

    def ldswait(which):
        if which == "ml":
            a(f"s_waitcnt lgkmcnt({min(NW, 15)})")
        else:
            a("s_waitcnt lgkmcnt(0)")
    combine(NW, ldswait)
    a(f"s_lshl_b32 s24, s17, {lgS+10}")
    a(f"s_lshl_b32 s25, s18, 10")
    a(f"s_add_u32 s25, s25, s24")
    a(f"v_add_u32 v{vV}, s25, v{vK}")
    a.vmem(f"global_store_dwordx2 v{vV}, v[{vO}:{vO+1}], s[14:15] sc1", "st")
    a("s_mov_b64 exec, 1")
    a.vmem(f"global_store_dwordx2 v{vV}, v[{vM}:{vL}], s[14:15] offset:512 sc1", "st")
    a(f"s_lshl_b32 s26, s17, 3")
    a(f"v_mov_b32 v{vT0}, s26")
    a(f"v_mov_b32 v{vT1}, 1")
    a.wait_all()
    a.vmem(f"global_atomic_add v{vT1}, v{vT0}, v{vT1}, s[12:13] sc0", "at")
    a.wait_all()
    a(f"v_readfirstlane_b32 s27, v{vT1}")
    a("s_mov_b64 exec, -1")
    a(f"s_cmp_lg_u32 s27, {S-1}")
    a("s_cbranch_scc1 L_fin")
    a.c("last workgroup of this head: final combine")
    a(f"v_and_b32 v{vT0}, {S-1}, v0")
    a(f"v_lshlrev_b32 v{vT0}, 10, v{vT0}")
    a(f"v_add_u32 v{vT0}, s24, v{vT0}")
    a.vmem(f"global_load_dwordx2 v[{vM}:{vL}], v{vT0}, s[14:15] offset:512 sc1", "ml")
    a(f"v_add_u32 v{vV}, s24, v{vK}")
    for w in range(S):
        if w and w % 4 == 0:
            a(f"v_add_u32 v{vV}, 4096, v{vV}")
        off = (w % 4) * 1024
        a.vmem(f"global_load_dwordx2 v[{vP+2*w}:{vP+2*w+1}], v{vV}, s[14:15] offset:{off} sc1", "o")
    combine(S, a.wait_tag)
    a(f"v_rcp_f32 v{vL}, v{vL}")
    a(f"v_lshlrev_b32 v{vT0}, 2, v0")
    a(f"v_add_u32 v{vT0}, s20, v{vT0}")
    a(f"v_mul_f32 v{vO}, v{vO}, v{vL}")
    a(f"v_mul_f32 v{vO+1}, v{vO+1}, v{vL}")
    a(f"v_cvt_pk_bf16_f32 v{vO}, v{vO}, v{vO+1}")
    a.vmem(f"global_store_dword v{vT0}, v{vO}, s[10:11]", "out")
    if amp:
        a.wait_all()
        a(f"v_mov_b32 v{vT0}, 4")
        a(f"v_mov_b32 v{vT1}, 1")
        a("s_mov_b64 exec, 1")
        a.vmem(f"global_atomic_add v{vT0}, v{vT1}, s[12:13]", "at")
    a.label("L_fin")
    if amp:
        a.c("diagnostic only: workgroup 0 waits for all heads, then holds for amp x elapsed")
        a("s_cmp_lg_u32 s2, 0")
        a("s_cbranch_scc1 L_end")
        a("s_mov_b64 exec, 1")
        a(f"v_mov_b32 v{vT0}, 4")
        a("s_mov_b32 s44, 200000")
        a.label("L_poll")
        a(f"global_load_dword v{vT1}, v{vT0}, s[12:13] sc1")
        a("s_waitcnt vmcnt(0)")
        a(f"v_readfirstlane_b32 s45, v{vT1}")
        a("s_sub_u32 s44, s44, 1")
        a("s_cmp_eq_u32 s44, 0")
        a("s_cbranch_scc1 L_end")
        a("s_cmp_lt_u32 s45, 32")
        a("s_cbranch_scc1 L_poll")
        a("s_memrealtime s[42:43]")
        a("s_waitcnt lgkmcnt(0)")
        a("s_sub_u32 s44, s42, s40")
        a(f"v_mov_b32 v{vT1}, s44")
        a(f"global_store_dword v{vT0}, v{vT1}, s[12:13] offset:8")
        a("s_min_u32 s44, s44, 20000")
        a(f"s_mul_i32 s44, s44, {amp}")
        a("s_add_u32 s40, s42, s44")
        a.label("L_spin")
        a("s_memrealtime s[42:43]")
        a("s_waitcnt lgkmcnt(0)")
        a("s_sub_u32 s42, s42, s40")
        a("s_cmp_lt_i32 s42, 0")
        a("s_cbranch_scc1 L_spin")
    if stamp:
        a.c("diagnostic only: hold workgroup 0 until a fixed time after its start")
        a("s_cmp_lg_u32 s2, 0")
        a("s_cbranch_scc1 L_end")
        a(f"s_add_u32 s40, s40, {stamp}")
        a("s_addc_u32 s41, s41, 0")
        a.label("L_spin")
        a("s_memrealtime s[42:43]")
        a("s_waitcnt lgkmcnt(0)")
        a("s_sub_u32 s42, s42, s40")
        a("s_cmp_lt_i32 s42, 0")
        a("s_cbranch_scc1 L_spin")
    a.label("L_end")
    a("s_endpgm")

    lds = NW * 512 + NW * 8
    out = HEADER
    out += f"; @launch grid=({NWG},1,1) block=({NW*64},1,1) lds={lds}\n"
    out += '.amdgcn_target "amdgcn-amd-amdhsa--gfx950"\n.text\n'
    out += f".globl {NAME}\n.p2align 8\n.type {NAME},@function\n{NAME}:\n"
    out += "\n".join(a.lines) + "\n"
    acc = (nv + 3) // 4 * 4
    out += f""".section .rodata,"a"
.p2align 6
.amdhsa_kernel {NAME}
  .amdhsa_next_free_vgpr {nv}
  .amdhsa_next_free_sgpr 48
  .amdhsa_accum_offset {acc}
  .amdhsa_group_segment_fixed_size 0
  .amdhsa_kernarg_size 48
  .amdhsa_user_sgpr_count 2
  .amdhsa_user_sgpr_kernarg_segment_ptr 1
  .amdhsa_system_sgpr_workgroup_id_x 1
  .amdhsa_float_denorm_mode_32 3
.end_amdhsa_kernel
"""
    return out


if __name__ == "__main__":
    p = argparse.ArgumentParser()
    p.add_argument("-o", required=True)
    for k, d in dict(NW=8, S=8, R=12, interleave=1, kvmode=0, wgmap=0, stamp=0, amp=0).items():
        p.add_argument("--" + k, type=int, default=d)
    p.add_argument("--pol", default="nt")
    args = vars(p.parse_args())
    o = args.pop("o")
    open(o, "w").write(gen(**args))
```

```python
import argparse
import math
import struct

HEADER = """; Kernarg layout for this problem (48 bytes, ptrs only, base s[0:1]):
"""
NAME = "standalone__mha_softmax__decode_kernel"


def f2u(x):
    return struct.unpack("<I", struct.pack("<f", x))[0]


class Asm:
    def __init__(self):
        self.lines = []
        self.vm = []

    def __call__(self, s):
        self.lines.append("    " + s)

    def label(self, s):
        self.lines.append(s + ":")

    def c(self, s):
        self.lines.append("    ; " + s)

    def vmem(self, s, tag):
        self(s)
        self.vm.append(tag)
        assert len(self.vm) <= 63, "vmcnt overflow"

    def wait_tag(self, tag):
        idx = max(i for i, t in enumerate(self.vm) if t == tag)
        n = len(self.vm) - 1 - idx
        self(f"s_waitcnt vmcnt({n})")
        self.vm = self.vm[idx + 1:]

    def wait_all(self):
        self("s_waitcnt vmcnt(0)")
        self.vm = []


def gen(NW=8, S=8, R=12, pol="nt", interleave=1, kvmode=0, wgmap=0, stamp=0, amp=0, tl=0, rot=0, ldsmin=0, xmask=255, chase=0, cbase=0, cstride=0x80000, cn=64, cwarm=1, numa=0, pk=0, pv=0, table=0, pf=0, outsc=0):
    T = 8192 // (S * NW * 16)
    assert T * S * NW * 16 == 8192
    R = min(R, 2 * T)
    NWG = 32 * S
    lgNW = int(math.log2(NW))
    lgS = int(math.log2(S))
    chunk = (2 << 20) // S
    a = Asm()
    vK, vV = 1, 2
    vT0, vT1 = 3, 4
    vC = 5
    vM = 6
    vL = 7
    vD = 8
    vO = 12
    vMask = 16
    vA = 20
    vTA = 36
    vTS = 37
    vS = 38
    vRing = (vS + T + 3) // 4 * 4
    nv = vRing + 16 * R
    need = max(nv, vRing + 2 * max(NW, S) + 8)
    nv = need
    assert nv <= 512 // max(1, NW // 4), (nv, NW)
    assert nv <= 256
    pol = (" " + pol) if pol else ""

    def slot(n):
        return vRing + 16 * (n % R)

    tstride = [4096, 4096 * NW, 4096 * NW * S][interleave]
    wstride = 4096 if interleave else 4096 * T
    if interleave == 2:
        chunk = 4096 * NW

    if numa:
        assert NW in (4, 8, 16) and S == 8
        tstride = 8192 * NW

    def issue_tile(n):
        isK = n < T
        i = n if isK else n - T
        va = vK if isK else vV
        base = "s[6:7]" if isK else "s[8:9]"
        if kvmode == 0:
            step = 1024 if isK else 256
        else:
            step = 256 if isK else 1024
        if table:
            a(f"v_add_u32 v{vT0 if False else vTA}, s{68 + n}, v{va}")
            va = vTA
        elif i > 0:
            if rot:
                a(f"v_xor_b32 v{va}, {tstride * (i ^ (i - 1))}, v{va}")
            else:
                a(f"v_add_u32 v{va}, {tstride}, v{va}")
        r = slot(n)
        for t in range(4):
            off = f" offset:{t*step}" if t else ""
            a.vmem(f"global_load_dwordx4 v[{r+4*t}:{r+4*t+3}], v{va}, {base}{off}{pol}", ("t", n))
        return 4 + (1 if (i > 0 or table) else 0)

    def tstamp(i):
        if tl:
            a(f"s_memrealtime s[{48+2*i}:{49+2*i}]")

    def tile_stamp(n):
        if tl < 2:
            return
        if n > 0:
            a("s_waitcnt lgkmcnt(0)")
            a(f"v_writelane_b32 v{vTS}, s28, {n-1}")
        if n < 2 * T:
            a("s_memrealtime s[28:29]")

    def tdump():
        if not tl:
            return
        if tl >= 2:
            a("s_mov_b64 exec, -1")
            a(f"s_lshl_b32 s46, s2, {lgNW}")
            a(f"s_add_u32 s46, s46, s16")
            a(f"s_lshl_b32 s46, s46, 8")
            a(f"s_add_u32 s46, s46, 0x400000")
            a(f"v_lshlrev_b32 v{vT0}, 2, v0")
            a(f"v_add_u32 v{vT0}, s46, v{vT0}")
            a(f"global_store_dword v{vT0}, v{vTS}, s[14:15]")
        a("s_mov_b64 exec, -1")
        a("s_getreg_b32 s46, hwreg(HW_REG_XCC_ID)")
        a("s_getreg_b32 s47, hwreg(HW_REG_HW_ID)")
        a("s_waitcnt lgkmcnt(0)")
        a(f"v_mov_b32 v{vT1}, 0")
        for i in range(10):
            a(f"v_writelane_b32 v{vT1}, s{48+2*i}, {i}")
        a(f"v_writelane_b32 v{vT1}, s46, 14")
        a(f"v_writelane_b32 v{vT1}, s47, 15")
        a(f"s_lshl_b32 s46, s2, {lgNW}")
        a(f"s_add_u32 s46, s46, s16")
        a(f"s_lshl_b32 s46, s46, 6")
        a(f"s_add_u32 s46, s46, 0x100000")
        a(f"v_lshlrev_b32 v{vT0}, 2, v0")
        a(f"v_add_u32 v{vT0}, s46, v{vT0}")
        a("s_mov_b64 exec, 0xffff")
        a(f"global_store_dword v{vT0}, v{vT1}, s[14:15]")

    a(f"s_cmpk_ge_u32 s2, {NWG}")
    a("s_cbranch_scc1 L_end")
    if xmask != 255:
        a("s_getreg_b32 s3, hwreg(HW_REG_XCC_ID, 0, 4)")
        a(f"s_lshr_b32 s3, {xmask}, s3")
        a("s_and_b32 s3, s3, 1")
        a("s_cbranch_scc0 L_end")
    a("s_load_dwordx8 s[4:11], s[0:1], 0")
    a("s_load_dwordx4 s[12:15], s[0:1], 32")
    if stamp or amp:
        a("s_memrealtime s[40:41]")
    if tl:
        for i in range(1, 10):
            a(f"s_mov_b32 s{48+2*i}, 0")
    tstamp(0)
    if wgmap == 0:
        a(f"s_lshr_b32 s17, s2, {lgS}")
        a(f"s_and_b32 s18, s2, {S-1}")
    elif wgmap == 1:
        a(f"s_and_b32 s17, s2, 31")
        a(f"s_lshr_b32 s18, s2, 5")
    elif wgmap == 2:
        a(f"s_and_b32 s17, s2, 7")
        a(f"s_lshl_b32 s17, s17, 2")
        a(f"s_bfe_u32 s18, s2, {3 + (2 << 16)}")
        a(f"s_add_u32 s17, s17, s18")
        a(f"s_lshr_b32 s18, s2, 5")
    elif wgmap == 3:
        a(f"s_and_b32 s17, s2, 7")
        a(f"s_lshr_b32 s18, s2, {3 + lgS}")
        a(f"s_lshl_b32 s18, s18, 3")
        a(f"s_add_u32 s17, s17, s18")
        a(f"s_bfe_u32 s18, s2, {3 + (lgS << 16)}")
    if numa:
        a("s_getreg_b32 s30, hwreg(HW_REG_XCC_ID, 0, 4)")
        a("s_and_b32 s17, s30, 3")
        a("s_lshl_b32 s17, s17, 3")
        a("s_bfe_u32 s18, s2, 0x30003")
        a("s_add_u32 s17, s17, s18")
        a("s_lshr_b32 s31, s30, 2")
        a("s_lshr_b32 s18, s2, 6")
        a("s_lshl_b32 s32, s18, 19")
        a("s_lshl_b32 s18, s18, 1")
        a("s_add_u32 s18, s18, s31")
        a("s_xor_b32 s31, s31, s17")
        a("s_and_b32 s31, s31, 1")
        a(f"s_xor_b32 s31, s31, {pk}")
        a("s_lshl_b32 s31, s31, 13")
        a("s_add_u32 s32, s32, s31")
    a(f"s_lshl_b32 s19, s17, 21")
    if numa:
        a("s_mov_b32 s20, s32")
    else:
        a(f"s_lshl_b32 s20, s18, {int(math.log2(chunk))}")
    a(f"s_add_u32 s19, s19, s20")
    if rot:
        sh = {1: 3, 2: 4, 3: 0, 4: 5}[rot]
        a(f"s_lshr_b32 s20, s2, {sh}")
        if rot == 4:
            a(f"s_lshl_b32 s20, s20, 1")
        a(f"s_and_b32 s20, s20, {T-1}")
        a(f"s_mul_i32 s20, s20, {tstride}")
        a(f"s_add_u32 s19, s19, s20")
    if pf:
        a("s_getpc_b64 s[22:23]")
        a(f"v_lshlrev_b32 v{vT1}, 7, v0")
        a(f"v_min_u32 v{vT1}, L_end-.-64, v{vT1}")
        a.vmem(f"global_load_dword v{vC}, v{vT1}, s[22:23]", "pf")
    a(f"v_lshrrev_b32 v{vT0}, 6, v0")
    a(f"v_and_b32 v0, 63, v0")
    a(f"v_readfirstlane_b32 s16, v{vT0}")
    if numa:
        a(f"v_and_b32 v{vT1}, 1, v{vT0}")
        a(f"v_lshrrev_b32 v{vT0}, 1, v{vT0}")
        a(f"v_lshlrev_b32 v{vT0}, 14, v{vT0}")
        a(f"v_lshl_add_u32 v{vT0}, v{vT1}, 12, v{vT0}")
    else:
        a(f"v_lshlrev_b32 v{vT0}, {int(math.log2(wstride))}, v{vT0}")
    a(f"v_add_u32 v{vT0}, s19, v{vT0}")
    a(f"v_and_b32 v{vT1}, 3, v0")
    a(f"v_lshlrev_b32 v{vT1}, 4, v{vT1}")
    a(f"v_and_b32 v{vM}, 48, v0")
    a(f"v_lshl_add_u32 v{vT1}, v{vM}, 2, v{vT1}")
    a(f"v_and_b32 v{vL}, 12, v0")
    if kvmode == 0:
        a(f"v_lshl_add_u32 v{vK}, v{vL}, 6, v{vT1}")
        a(f"v_add_u32 v{vK}, v{vK}, v{vT0}")
        a(f"v_and_b32 v{vL}, 15, v0")
        a(f"v_lshlrev_b32 v{vL}, 4, v{vL}")
        a(f"v_lshl_add_u32 v{vV}, v{vM}, 6, v{vL}")
        a(f"v_add_u32 v{vV}, v{vV}, v{vT0}")
    else:
        a(f"v_lshl_add_u32 v{vK}, v{vL}, 8, v{vT1}")
        a(f"v_add_u32 v{vK}, v{vK}, v{vT0}")
        a(f"v_lshl_add_u32 v{vV}, v0, 4, v{vT0}")
    if numa and pk != pv:
        a(f"v_xor_b32 v{vV}, 0x2000, v{vV}")
    if table:
        a("s_waitcnt lgkmcnt(0)")
        a(f"v_sub_u32 v{vK}, v{vK}, v{vT0}")
        a(f"v_sub_u32 v{vV}, v{vV}, v{vT0}")
        a(f"s_lshl_b32 s30, s2, {lgNW}")
        a(f"s_add_u32 s30, s30, s16")
        a(f"s_lshl_b32 s30, s30, 8")
        a(f"s_add_u32 s30, s30, 0x200000")
        a(f"s_add_u32 s30, s14, s30")
        a(f"s_addc_u32 s31, s15, 0")
        a(f"s_load_dwordx16 s[68:83], s[30:31], 0")
        a(f"s_load_dwordx16 s[84:99], s[30:31], 64")
        a(f"s_load_dwordx2 s[34:35], s[30:31], 128")
        a("s_waitcnt lgkmcnt(0)")
        a("s_and_b32 s17, s34, 31")
        a(f"s_and_b32 s18, s35, {S-1}")
        for n in range(2 * T):
            a(f"s_and_b32 s{68+n}, s{68+n}, 0x3fff000")
    a(f"s_lshl_b32 s20, s17, 8")
    a(f"v_add_u32 v{vT1}, s20, v{vT1}")
    a("s_waitcnt lgkmcnt(0)")
    if chase:
        base = {1: "s[6:7]", 2: "s[8:9]", 3: "s[14:15]"}[chase]
        a.c("diagnostic only: dependent-load latency probe by one wave while the others hold")
        a("s_or_b32 s44, s2, s16")
        a("s_cmp_lg_u32 s44, 0")
        a("s_cbranch_scc1 L_hold")
        a("s_mov_b64 exec, 1")
        for ps in range(2):
            if ps == 0 and not cwarm:
                continue
            a(f"v_mov_b32 v{vD}, {cbase + (0 if ps else 0x2300)}")
            a(f"s_mov_b32 s44, {cn}")
            if ps:
                a("s_memrealtime s[36:37]")
                a("s_waitcnt lgkmcnt(0)")
            a.label(f"L_chase{ps}")
            a(f"global_load_dword v{vD+1}, v{vD}, {base} nt")
            a("s_waitcnt vmcnt(0)")
            a(f"v_add_u32 v{vD}, {cstride}, v{vD}")
            a("s_sub_u32 s44, s44, 1")
            a("s_cmp_lg_u32 s44, 0")
            a(f"s_cbranch_scc1 L_chase{ps}")
        a("s_memrealtime s[38:39]")
        a("s_waitcnt lgkmcnt(0)")
        a("s_sub_u32 s36, s38, s36")
        a("s_mov_b64 exec, -1")
        a.label("L_hold")
        a("s_add_u32 s38, s40, 10000")
        a.label("L_hold2")
        a("s_memrealtime s[42:43]")
        a("s_waitcnt lgkmcnt(0)")
        a("s_sub_u32 s42, s42, s38")
        a("s_cmp_lt_i32 s42, 0")
        a("s_cbranch_scc1 L_hold2")
    tstamp(1)
    a.vmem(f"global_load_dwordx4 v[{vD}:{vD+3}], v{vT1}, s[4:5]", "q")
    for n in range(R):
        issue_tile(n)
    tstamp(2)
    a(f"v_and_b32 v{vT0}, 1, v0")
    a(f"v_lshlrev_b32 v{vT0}, 4, v{vT0}")
    a(f"s_mov_b32 s21, 0xffff")
    a(f"v_lshlrev_b32 v{vT0}, v{vT0}, s21")
    a(f"s_mov_b32 vcc_lo, 0x03030303")
    a(f"s_mov_b32 vcc_hi, vcc_lo")
    for i in range(4):
        a(f"v_cndmask_b32 v{vMask+i}, 0, v{vT0}, vcc")
        if i < 3:
            a(f"s_lshl_b64 vcc, vcc, 2")
    cval = math.log2(math.e) / math.sqrt(128.0)
    a(f"s_mov_b32 vcc_lo, 0x000f000f")
    a(f"s_mov_b32 vcc_hi, vcc_lo")
    a.wait_tag("q")
    a(f"v_mov_b32 v{vC}, 0x{f2u(cval):08x}")
    for t in range(4):
        for i in range(4):
            a(f"v_cndmask_b32 v{vA+4*t+i}, 0, v{vD+i}, vcc")
        if t < 3:
            a(f"s_lshl_b64 vcc, vcc, 4")
    for n in range(T):
        a.c(f"K tile {n}")
        a.wait_tag(("t", n))
        tile_stamp(n)
        if n == 0:
            a("s_nop 0")
            tstamp(3)
        r = slot(n)
        for t in range(4):
            cin = "0" if t == 0 else f"v[{vD}:{vD+3}]"
            a(f"v_mfma_f32_16x16x32_bf16 v[{vD}:{vD+3}], v[{vA+4*t}:{vA+4*t+3}], v[{r+4*t}:{r+4*t+3}], {cin}")
        st = 0
        if n + R < 2 * T:
            st = issue_tile(n + R)
        if st < 8:
            a(f"s_nop {8 - st - 1}")
        s = vS + n
        a(f"v_mov_b32_dpp v{s}, v{vD} quad_perm:[0,0,0,0] row_mask:0xf bank_mask:0xf")
        for b in range(1, 4):
            a(f"v_add_f32_dpp v{s}, v{vD+b}, v{s} quad_perm:[{b},{b},{b},{b}] row_mask:0xf bank_mask:0xf")
    a.c("wave max")
    tstamp(4)
    if T == 1:
        a(f"v_mov_b32 v{vM}, v{vS}")
    else:
        a(f"v_max_f32 v{vM}, v{vS}, v{vS+1}")
        i = 2
        while i < T:
            a(f"v_max3_f32 v{vM}, v{vM}, v{vS+i}, v{vS+i+1}")
            i += 2
    for ctl in ("row_ror:4 row_mask:0xf", "row_ror:8 row_mask:0xf", "row_bcast:15 row_mask:0xa", "row_bcast:31 row_mask:0xc"):
        a("s_nop 1")
        a(f"v_max_f32_dpp v{vM}, v{vM}, v{vM} {ctl} bank_mask:0xf")
    a(f"v_mul_f32 v{vM}, v{vC}, v{vM}")
    a("s_nop 0")
    a(f"v_readlane_b32 s22, v{vM}, 63")
    a("s_nop 1")
    for n in range(T):
        a(f"v_fma_f32 v{vS+n}, v{vS+n}, v{vC}, -s22")
    for n in range(T):
        a(f"v_exp_f32 v{vS+n}, v{vS+n}")
    a(f"v_mov_b32 v{vM}, s22")
    if T == 1:
        a(f"v_mov_b32 v{vL}, v{vS}")
    else:
        a(f"v_add_f32 v{vL}, v{vS}, v{vS+1}")
        for n in range(2, T):
            a(f"v_add_f32 v{vL}, v{vL}, v{vS+n}")
    for n in range(T):
        a(f"v_cvt_pk_bf16_f32 v{vS+n}, v{vS+n}, v{vS+n}")
    for ctl in ("row_ror:4 row_mask:0xf", "row_ror:8 row_mask:0xf", "row_bcast:15 row_mask:0xa", "row_bcast:31 row_mask:0xc"):
        a("s_nop 1")
        a(f"v_add_f32_dpp v{vL}, v{vL}, v{vL} {ctl} bank_mask:0xf")
    a(f"s_lshl_b32 s23, s16, 3")
    a(f"v_mov_b32 v{vT0}, s23")
    a(f"s_brev_b64 exec, 1")
    a(f"ds_write_b64 v{vT0}, v[{vM}:{vL}] offset:{NW*512}")
    a(f"s_mov_b64 exec, -1")
    a(f"v_and_b32 v{vT0}, 15, v0")
    a(f"v_lshlrev_b32 v{vT0}, 5, v{vT0}")
    a(f"v_and_b32 v{vT1}, 16, v0")
    a(f"s_lshl_b32 s23, s16, 9")
    a(f"v_add3_u32 v{vT0}, v{vT0}, v{vT1}, s23")
    for i in range(T):
        n = T + i
        a.c(f"V tile {i}")
        for u in range(4):
            for j in range(4):
                a(f"v_and_b32_dpp v{vA+4*u+j}, v{vS+i}, v{vMask+j} row_newbcast:{4*u} row_mask:0xf bank_mask:0xf")
        a.wait_tag(("t", n))
        tile_stamp(n)
        a("s_nop 0")
        r = slot(n)
        for u in range(4):
            cin = "0" if (i == 0 and u == 0) else f"v[{vO}:{vO+3}]"
            a(f"v_mfma_f32_16x16x32_bf16 v[{vO}:{vO+3}], v[{vA+4*u}:{vA+4*u+3}], v[{r+4*u}:{r+4*u+3}], {cin}")
        if n + R < 2 * T:
            issue_tile(n + R)
    a("s_nop 7")
    tile_stamp(2 * T)
    tstamp(5)
    a(f"ds_write_b128 v{vT0}, v[{vO}:{vO+3}]")
    a("s_waitcnt lgkmcnt(0)")
    a("s_barrier")
    tstamp(6)
    a("s_cmp_lg_u32 s16, 0")
    a("s_cbranch_scc1 L_fin")

    vP = vRing

    def combine(n, waitfn):
        lg = int(math.log2(n))
        waitfn("ml")
        a(f"v_mov_b32 v{vT0}, v{vM}")
        for k in range(lg):
            a("s_nop 1")
            a(f"v_max_f32_dpp v{vT0}, v{vT0}, v{vT0} row_ror:{1<<k} row_mask:0xf bank_mask:0xf")
        a(f"v_sub_f32 v{vT1}, v{vM}, v{vT0}")
        a(f"v_exp_f32 v{vT1}, v{vT1}")
        a(f"v_mov_b32 v{vM}, v{vT0}")
        a(f"v_mul_f32 v{vL}, v{vL}, v{vT1}")
        waitfn("o")
        for w in range(n):
            op = "v_mul_f32_dpp" if w == 0 else "v_fmac_f32_dpp"
            for h in range(2):
                a(f"{op} v{vO+h}, v{vT1}, v{vP+2*w+h} row_newbcast:{w} row_mask:0xf bank_mask:0xf")
            if w < lg:
                a(f"v_add_f32_dpp v{vL}, v{vL}, v{vL} row_ror:{1<<w} row_mask:0xf bank_mask:0xf")

    a.c("workgroup combine (wave 0)")
    a(f"v_and_b32 v{vT0}, {NW-1}, v0")
    a(f"v_lshlrev_b32 v{vT0}, 3, v{vT0}")
    a(f"v_lshlrev_b32 v{vK}, 3, v0")
    a(f"ds_read_b64 v[{vM}:{vL}], v{vT0} offset:{NW*512}")
    for w in range(NW):
        a(f"ds_read_b64 v[{vP+2*w}:{vP+2*w+1}], v{vK} offset:{w*512}")

    def ldswait(which):
        if which == "ml" and not tl:
            a(f"s_waitcnt lgkmcnt({min(NW, 15)})")
        else:
            a("s_waitcnt lgkmcnt(0)")
    combine(NW, ldswait)
    a(f"s_lshl_b32 s24, s17, {lgS+10}")
    a(f"s_lshl_b32 s25, s18, 10")
    a(f"s_add_u32 s25, s25, s24")
    a(f"v_add_u32 v{vV}, s25, v{vK}")
    a.vmem(f"global_store_dwordx2 v{vV}, v[{vO}:{vO+1}], s[14:15] sc1", "st")
    a("s_mov_b64 exec, 1")
    a.vmem(f"global_store_dwordx2 v{vV}, v[{vM}:{vL}], s[14:15] offset:512 sc1", "st")
    a(f"s_lshl_b32 s26, s17, 3")
    a(f"v_mov_b32 v{vT0}, s26")
    a(f"v_mov_b32 v{vT1}, 1")
    a.wait_all()
    tstamp(7)
    a.vmem(f"global_atomic_add v{vT1}, v{vT0}, v{vT1}, s[12:13] sc0", "at")
    a.wait_all()
    tstamp(8)
    a(f"v_readfirstlane_b32 s27, v{vT1}")
    a("s_mov_b64 exec, -1")
    a(f"s_cmp_lg_u32 s27, {S-1}")
    a("s_cbranch_scc1 L_fin")
    a.c("last workgroup of this head: final combine")
    a(f"v_and_b32 v{vT0}, {S-1}, v0")
    a(f"v_lshlrev_b32 v{vT0}, 10, v{vT0}")
    a(f"v_add_u32 v{vT0}, s24, v{vT0}")
    a.vmem(f"global_load_dwordx2 v[{vM}:{vL}], v{vT0}, s[14:15] offset:512 sc1", "ml")
    a(f"v_add_u32 v{vV}, s24, v{vK}")
    for w in range(S):
        if w and w % 4 == 0:
            a(f"v_add_u32 v{vV}, 4096, v{vV}")
        off = (w % 4) * 1024
        a.vmem(f"global_load_dwordx2 v[{vP+2*w}:{vP+2*w+1}], v{vV}, s[14:15] offset:{off} sc1", "o")
    combine(S, a.wait_tag)
    a(f"v_rcp_f32 v{vL}, v{vL}")
    a(f"v_lshlrev_b32 v{vT0}, 2, v0")
    a(f"v_add_u32 v{vT0}, s20, v{vT0}")
    a(f"v_mul_f32 v{vO}, v{vO}, v{vL}")
    a(f"v_mul_f32 v{vO+1}, v{vO+1}, v{vL}")
    a(f"v_cvt_pk_bf16_f32 v{vO}, v{vO}, v{vO+1}")
    a.vmem(f"global_store_dword v{vT0}, v{vO}, s[10:11]" + ["", " sc1", " sc0 sc1", " nt"][outsc], "out")
    if tl:
        a.wait_all()
        tstamp(9)
    if amp:
        a.wait_all()
        a(f"v_mov_b32 v{vT0}, 4")
        a(f"v_mov_b32 v{vT1}, 1")
        a("s_mov_b64 exec, 1")
        a.vmem(f"global_atomic_add v{vT0}, v{vT1}, s[12:13]", "at")
    a.label("L_fin")
    tdump()
    if amp:
        a.c("diagnostic only: workgroup 0 waits for all heads, then holds for amp x elapsed")
        a("s_or_b32 s44, s2, s16")
        a("s_cmp_lg_u32 s44, 0")
        a("s_cbranch_scc1 L_end")
        a("s_mov_b64 exec, 1")
        a(f"v_mov_b32 v{vT0}, 4")
        a("s_mov_b32 s44, 200000")
        a.label("L_poll")
        a(f"global_load_dword v{vT1}, v{vT0}, s[12:13] sc1")
        a("s_waitcnt vmcnt(0)")
        a(f"v_readfirstlane_b32 s45, v{vT1}")
        a("s_sub_u32 s44, s44, 1")
        a("s_cmp_eq_u32 s44, 0")
        a("s_cbranch_scc1 L_end")
        a("s_cmp_lt_u32 s45, 32")
        a("s_cbranch_scc1 L_poll")
        a("s_memrealtime s[42:43]")
        a("s_waitcnt lgkmcnt(0)")
        a("s_sub_u32 s44, s42, s40")
        if chase:
            a("s_mov_b32 s44, s36")
        a(f"v_mov_b32 v{vT1}, s44")
        a(f"global_store_dword v{vT0}, v{vT1}, s[12:13] offset:8")
        a("s_min_u32 s44, s44, 20000")
        a(f"s_mul_i32 s44, s44, {amp}")
        a("s_add_u32 s40, s42, s44")
        a.label("L_spin")
        a("s_memrealtime s[42:43]")
        a("s_waitcnt lgkmcnt(0)")
        a("s_sub_u32 s42, s42, s40")
        a("s_cmp_lt_i32 s42, 0")
        a("s_cbranch_scc1 L_spin")
    if stamp:
        a.c("diagnostic only: hold workgroup 0 until a fixed time after its start")
        a("s_or_b32 s44, s2, s16")
        a("s_cmp_lg_u32 s44, 0")
        a("s_cbranch_scc1 L_end")
        a(f"s_add_u32 s40, s40, {stamp}")
        a("s_addc_u32 s41, s41, 0")
        a.label("L_spin")
        a("s_memrealtime s[42:43]")
        a("s_waitcnt lgkmcnt(0)")
        a("s_sub_u32 s42, s42, s40")
        a("s_cmp_lt_i32 s42, 0")
        a("s_cbranch_scc1 L_spin")
    a.label("L_end")
    a("s_endpgm")

    lds = max(ldsmin, NW * 512 + NW * 8)
    out = HEADER
    out += f"; @launch grid=({NWG},1,1) block=({NW*64},1,1) lds={lds}\n"
    out += '.amdgcn_target "amdgcn-amd-amdhsa--gfx950"\n.text\n'
    out += f".globl {NAME}\n.p2align 8\n.type {NAME},@function\n{NAME}:\n"
    out += "\n".join(a.lines) + "\n"
    acc = (nv + 3) // 4 * 4
    out += f""".section .rodata,"a"
.p2align 6
.amdhsa_kernel {NAME}
  .amdhsa_next_free_vgpr {nv}
  .amdhsa_next_free_sgpr {100 if table else (72 if tl else 48)}
  .amdhsa_accum_offset {acc}
  .amdhsa_group_segment_fixed_size 0
  .amdhsa_kernarg_size 48
  .amdhsa_user_sgpr_count 2
  .amdhsa_user_sgpr_kernarg_segment_ptr 1
  .amdhsa_system_sgpr_workgroup_id_x 1
  .amdhsa_float_denorm_mode_32 3
.end_amdhsa_kernel
"""
    return out


if __name__ == "__main__":
    p = argparse.ArgumentParser()
    p.add_argument("-o", required=True)
    for k, d in dict(NW=8, S=8, R=12, interleave=1, kvmode=0, wgmap=0, stamp=0, amp=0, tl=0, rot=0, ldsmin=0, xmask=255, chase=0, cbase=0, cstride=0x80000, cn=64, cwarm=1, numa=0, pk=0, pv=0, table=0, pf=0, outsc=0).items():
        p.add_argument("--" + k, type=int, default=d)
    p.add_argument("--pol", default="nt")
    args = vars(p.parse_args())
    o = args.pop("o")
    open(o, "w").write(gen(**args))
```

```python
import argparse
import math
import struct

HEADER = """; Kernarg layout for this problem (48 bytes, ptrs only, base s[0:1]):
"""
NAME = "standalone__mha_softmax__decode_kernel"


def f2u(x):
    return struct.unpack("<I", struct.pack("<f", x))[0]


class Asm:
    def __init__(self):
        self.lines = []
        self.vm = []

    def __call__(self, s):
        self.lines.append("    " + s)

    def label(self, s):
        self.lines.append(s + ":")

    def c(self, s):
        self.lines.append("    ; " + s)

    def vmem(self, s, tag):
        self(s)
        self.vm.append(tag)
        assert len(self.vm) <= 63, "vmcnt overflow"

    def wait_tag(self, tag):
        idx = max(i for i, t in enumerate(self.vm) if t == tag)
        n = len(self.vm) - 1 - idx
        self(f"s_waitcnt vmcnt({n})")
        self.vm = self.vm[idx + 1:]

    def wait_all(self):
        self("s_waitcnt vmcnt(0)")
        self.vm = []


def gen(NW=8, S=8, R=12, pol="nt", interleave=1, kvmode=0, wgmap=0, stamp=0, amp=0, tl=0, rot=0, ldsmin=0, xmask=255, chase=0, cbase=0, cstride=0x80000, cn=64, cwarm=1, numa=0, pk=0, pv=0, table=0, pf=0, outsc=0, tail=1, tk=8, spec=1, warm=0, clr=-1, pst=1, pld=1, pcl=1, full=0, wpoll=-1, wown=-1, pat='', kpat=0):
    T = 8192 // (S * NW * 16)
    assert T * S * NW * 16 == 8192
    R = min(R, 2 * T)
    NWG = 32 * S
    lgNW = int(math.log2(NW))
    lgS = int(math.log2(S))
    chunk = (2 << 20) // S
    a = Asm()
    vK, vV = 1, 2
    vT0, vT1 = 3, 4
    vC = 5
    vM = 6
    vL = 7
    vD = 8
    vO = 12
    vMask = 16
    vA = 20
    vTA = 36
    vTS = 37
    vS = 38
    vRing = (vS + T + 3) // 4 * 4
    nv = vRing + 16 * R
    need = max(nv, vRing + 2 * max(NW, S) + 8)
    nv = need
    vQ = (nv + 1) // 2 * 2
    if tail == 2:
        nv = vQ + 2 * S + 6
    vQM, vQL, vQA, vQB, vQS = vQ + 2 * S, vQ + 2 * S + 1, vQ + 2 * S + 2, vQ + 2 * S + 3, vQ + 2 * S + 4
    assert nv <= 512 // max(1, NW // 4), (nv, NW)
    assert nv <= 256
    pol = (" " + pol) if pol else ""

    def slot(n):
        return vRing + 16 * (n % R)

    tstride = [4096, 4096 * NW, 4096 * NW * S][interleave]
    wstride = 4096 if interleave else 4096 * T
    if interleave == 2:
        chunk = 4096 * NW

    if numa:
        assert NW in (4, 8, 16) and S == 8
        tstride = 8192 * NW

    if pat:
        lt = int(math.log2(T))
        names = ["x0", "x1", "x2", "j0", "j1", "j2", "j3", "j4"] + [f"w{i}" for i in range(lgNW)] + [f"t{i}" for i in range(lt)]
        terms = pat.replace(",", " ").split()
        assert len(terms) == 17, "14 address terms + 3 split terms"
        col = {nm: 0 for nm in names}
        for pos, tm in enumerate(terms):
            for nm in tm.split("^"):
                col[nm] ^= 1 << pos

        def tmask(i):
            m = 0
            for b in range(lt):
                if i >> b & 1:
                    m ^= col[f"t{b}"]
            return m << 12

    def issue_tile(n):
        isK = n < T
        i = n if isK else n - T
        va = vK if isK else vV
        base = "s[6:7]" if isK else "s[8:9]"
        if kvmode == 0:
            step = 1024 if isK else 256
        else:
            step = 256 if isK else 1024
        if table:
            a(f"v_add_u32 v{vT0 if False else vTA}, s{68 + n}, v{va}")
            va = vTA
        elif i > 0:
            if kpat:
                kk = (i ^ (i - 1)).bit_length() - 1
                a(f"v_xor_b32 v{va}, s{78 + kk}, v{va}")
            elif pat:
                a(f"v_xor_b32 v{va}, {tmask(i) ^ tmask(i - 1)}, v{va}")
            elif rot:
                a(f"v_xor_b32 v{va}, {tstride * (i ^ (i - 1))}, v{va}")
            else:
                a(f"v_add_u32 v{va}, {tstride}, v{va}")
        r = slot(n)
        for t in range(4):
            off = f" offset:{t*step}" if t else ""
            a.vmem(f"global_load_dwordx4 v[{r+4*t}:{r+4*t+3}], v{va}, {base}{off}{pol}", ("t", n))
        return 4 + (1 if (i > 0 or table) else 0)

    def tstamp(i):
        if tl:
            a(f"s_memrealtime s[{48+2*i}:{49+2*i}]")

    def tile_stamp(n):
        if tl < 2:
            return
        if n > 0:
            a("s_waitcnt lgkmcnt(0)")
            a(f"v_writelane_b32 v{vTS}, s28, {n-1}")
        if n < 2 * T:
            a("s_memrealtime s[28:29]")

    def tdump():
        if not tl:
            return
        if tl >= 2:
            a("s_mov_b64 exec, -1")
            a(f"s_lshl_b32 s46, s2, {lgNW}")
            a(f"s_add_u32 s46, s46, s16")
            a(f"s_lshl_b32 s46, s46, 8")
            a(f"s_add_u32 s46, s46, 0x400000")
            a(f"v_lshlrev_b32 v{vT0}, 2, v0")
            a(f"v_add_u32 v{vT0}, s46, v{vT0}")
            a(f"global_store_dword v{vT0}, v{vTS}, s[14:15]")
        a("s_mov_b64 exec, -1")
        a("s_getreg_b32 s46, hwreg(HW_REG_XCC_ID)")
        a("s_getreg_b32 s47, hwreg(HW_REG_HW_ID)")
        a("s_waitcnt lgkmcnt(0)")
        a(f"v_mov_b32 v{vT1}, 0")
        for i in range(10):
            a(f"v_writelane_b32 v{vT1}, s{48+2*i}, {i}")
        if tail == 2:
            a(f"v_writelane_b32 v{vT1}, s30, 11")
        a(f"v_writelane_b32 v{vT1}, s46, 14")
        a(f"v_writelane_b32 v{vT1}, s47, 15")
        a(f"s_lshl_b32 s46, s2, {lgNW}")
        a(f"s_add_u32 s46, s46, s16")
        a(f"s_lshl_b32 s46, s46, 6")
        a(f"s_add_u32 s46, s46, 0x100000")
        a(f"v_lshlrev_b32 v{vT0}, 2, v0")
        a(f"v_add_u32 v{vT0}, s46, v{vT0}")
        a("s_mov_b64 exec, 0xffff")
        a(f"global_store_dword v{vT0}, v{vT1}, s[14:15]")

    a(f"s_cmpk_ge_u32 s2, {NWG}")
    a("s_cbranch_scc1 L_end")
    if xmask != 255:
        a("s_getreg_b32 s3, hwreg(HW_REG_XCC_ID, 0, 4)")
        a(f"s_lshr_b32 s3, {xmask}, s3")
        a("s_and_b32 s3, s3, 1")
        a("s_cbranch_scc0 L_end")
    a("s_load_dwordx8 s[4:11], s[0:1], 0")
    a("s_load_dwordx4 s[12:15], s[0:1], 32")
    if kpat:
        a("s_load_dwordx16 s[68:83], s[0:1], 48")
    if stamp or amp:
        a("s_memrealtime s[40:41]")
    if tl:
        for i in range(1, 10):
            a(f"s_mov_b32 s{48+2*i}, 0")
    tstamp(0)
    if wgmap == 0:
        a(f"s_lshr_b32 s17, s2, {lgS}")
        a(f"s_and_b32 s18, s2, {S-1}")
    elif wgmap == 1:
        a(f"s_and_b32 s17, s2, 31")
        a(f"s_lshr_b32 s18, s2, 5")
    elif wgmap == 2:
        a(f"s_and_b32 s17, s2, 7")
        a(f"s_lshl_b32 s17, s17, 2")
        a(f"s_bfe_u32 s18, s2, {3 + (2 << 16)}")
        a(f"s_add_u32 s17, s17, s18")
        a(f"s_lshr_b32 s18, s2, 5")
    elif wgmap == 3:
        a(f"s_and_b32 s17, s2, 7")
        a(f"s_lshr_b32 s18, s2, {3 + lgS}")
        a(f"s_lshl_b32 s18, s18, 3")
        a(f"s_add_u32 s17, s17, s18")
        a(f"s_bfe_u32 s18, s2, {3 + (lgS << 16)}")
    if numa:
        a("s_getreg_b32 s30, hwreg(HW_REG_XCC_ID, 0, 4)")
        a("s_and_b32 s17, s30, 3")
        a("s_lshl_b32 s17, s17, 3")
        a("s_bfe_u32 s18, s2, 0x30003")
        a("s_add_u32 s17, s17, s18")
        a("s_lshr_b32 s31, s30, 2")
        a("s_lshr_b32 s18, s2, 6")
        a("s_lshl_b32 s32, s18, 19")
        a("s_lshl_b32 s18, s18, 1")
        a("s_add_u32 s18, s18, s31")
        a("s_xor_b32 s31, s31, s17")
        a("s_and_b32 s31, s31, 1")
        a(f"s_xor_b32 s31, s31, {pk}")
        a("s_lshl_b32 s31, s31, 13")
        a("s_add_u32 s32, s32, s31")
    if kpat:
        assert NW == 4
        a(f"v_lshrrev_b32 v{vT0}, 6, v0")
        a("s_nop 0")
        a(f"v_readfirstlane_b32 s16, v{vT0}")
        a("s_mov_b32 s19, 0")
        a("s_lshl_b32 s21, s16, 8")
        a("s_or_b32 s21, s21, s2")
        a("s_waitcnt lgkmcnt(0)")
        for b in range(10):
            a(f"s_bitcmp1_b32 s21, {b}")
            a(f"s_cselect_b32 s20, s{68 + b}, 0")
            a("s_xor_b32 s19, s19, s20")
        for b in range(4):
            a(f"s_and_b32 s{78+b}, s{78+b}, 0x1ff000")
        a("s_bfe_u32 s18, s19, 0x3000e")
        a("s_bfe_u32 s17, s19, 0x50009")
        a("s_and_b32 s19, s19, 0x3fff")
        a("s_lshl_b32 s19, s19, 12")
    elif pat:
        a("s_mov_b32 s19, 0")
        for b in range(8):
            a(f"s_bitcmp1_b32 s2, {b}")
            a(f"s_cselect_b32 s20, {col[names[b]]}, 0")
            a("s_xor_b32 s19, s19, s20")
        a("s_lshr_b32 s18, s19, 14")
        a("s_bfe_u32 s17, s19, 0x50009")
        a("s_and_b32 s19, s19, 0x3fff")
        a("s_lshl_b32 s19, s19, 12")
    else:
        a(f"s_lshl_b32 s19, s17, 21")
    if pat or kpat:
        a("s_mov_b32 s20, 0")
    elif numa:
        a("s_mov_b32 s20, s32")
    else:
        a(f"s_lshl_b32 s20, s18, {int(math.log2(chunk))}")
    a(f"s_add_u32 s19, s19, s20")
    if rot:
        sh = {1: 3, 2: 4, 3: 0, 4: 5}[rot]
        a(f"s_lshr_b32 s20, s2, {sh}")
        if rot == 4:
            a(f"s_lshl_b32 s20, s20, 1")
        a(f"s_and_b32 s20, s20, {T-1}")
        a(f"s_mul_i32 s20, s20, {tstride}")
        a(f"s_add_u32 s19, s19, s20")
    if pf:
        a("s_getpc_b64 s[22:23]")
        a(f"v_lshlrev_b32 v{vT1}, 7, v0")
        a(f"v_min_u32 v{vT1}, L_end-.-64, v{vT1}")
        a.vmem(f"global_load_dword v{vC}, v{vT1}, s[22:23]", "pf")
    a(f"v_lshrrev_b32 v{vT0}, 6, v0")
    a(f"v_and_b32 v0, 63, v0")
    a(f"v_readfirstlane_b32 s16, v{vT0}")
    if kpat:
        a(f"v_mov_b32 v{vT0}, 0")
    elif pat:
        a("s_nop 0")
        for b in range(lgNW):
            a(f"s_bitcmp1_b32 s16, {b}")
            a(f"s_cselect_b32 s20, {col[f'w{b}'] << 12}, 0")
            a("s_xor_b32 s19, s19, s20")
        a(f"v_mov_b32 v{vT0}, 0")
    elif numa:
        a(f"v_and_b32 v{vT1}, 1, v{vT0}")
        a(f"v_lshrrev_b32 v{vT0}, 1, v{vT0}")
        a(f"v_lshlrev_b32 v{vT0}, 14, v{vT0}")
        a(f"v_lshl_add_u32 v{vT0}, v{vT1}, 12, v{vT0}")
    else:
        a(f"v_lshlrev_b32 v{vT0}, {int(math.log2(wstride))}, v{vT0}")
    a(f"v_add_u32 v{vT0}, s19, v{vT0}")
    a(f"v_and_b32 v{vT1}, 3, v0")
    a(f"v_lshlrev_b32 v{vT1}, 4, v{vT1}")
    a(f"v_and_b32 v{vM}, 48, v0")
    a(f"v_lshl_add_u32 v{vT1}, v{vM}, 2, v{vT1}")
    a(f"v_and_b32 v{vL}, 12, v0")
    if kvmode == 0:
        a(f"v_lshl_add_u32 v{vK}, v{vL}, 6, v{vT1}")
        a(f"v_add_u32 v{vK}, v{vK}, v{vT0}")
        a(f"v_and_b32 v{vL}, 15, v0")
        a(f"v_lshlrev_b32 v{vL}, 4, v{vL}")
        a(f"v_lshl_add_u32 v{vV}, v{vM}, 6, v{vL}")
        a(f"v_add_u32 v{vV}, v{vV}, v{vT0}")
    else:
        a(f"v_lshl_add_u32 v{vK}, v{vL}, 8, v{vT1}")
        a(f"v_add_u32 v{vK}, v{vK}, v{vT0}")
        a(f"v_lshl_add_u32 v{vV}, v0, 4, v{vT0}")
    if numa and pk != pv:
        a(f"v_xor_b32 v{vV}, 0x2000, v{vV}")
    if table:
        a("s_waitcnt lgkmcnt(0)")
        a(f"v_sub_u32 v{vK}, v{vK}, v{vT0}")
        a(f"v_sub_u32 v{vV}, v{vV}, v{vT0}")
        a(f"s_lshl_b32 s30, s2, {lgNW}")
        a(f"s_add_u32 s30, s30, s16")
        a(f"s_lshl_b32 s30, s30, 8")
        a(f"s_add_u32 s30, s30, 0x200000")
        a(f"s_add_u32 s30, s14, s30")
        a(f"s_addc_u32 s31, s15, 0")
        a(f"s_load_dwordx16 s[68:83], s[30:31], 0")
        a(f"s_load_dwordx16 s[84:99], s[30:31], 64")
        a(f"s_load_dwordx2 s[34:35], s[30:31], 128")
        a("s_waitcnt lgkmcnt(0)")
        a("s_and_b32 s17, s34, 31")
        a(f"s_and_b32 s18, s35, {S-1}")
        for n in range(2 * T):
            a(f"s_and_b32 s{68+n}, s{68+n}, 0x3fff000")
    a(f"s_lshl_b32 s20, s17, 8")
    a(f"v_add_u32 v{vT1}, s20, v{vT1}")
    if tail == 1:
        a(f"s_lshl_b32 s24, s17, {lgS+10}")
    if tail == 2:
        a(f"s_lshl_b32 s24, s17, {lgS+10}")
        a(f"s_lshl_b32 s25, s18, 10")
        a(f"s_add_u32 s25, s25, s24")
        a(f"v_lshl_add_u32 v{vQS}, v0, 3, s25")
        a(f"v_mov_b32 v{vQM}, -1")
        a(f"v_mov_b32 v{vQL}, -1")
        a("s_mov_b32 s27, 1")
        if tl:
            a("s_mov_b32 s30, 0")
    a("s_waitcnt lgkmcnt(0)")
    if chase:
        base = {1: "s[6:7]", 2: "s[8:9]", 3: "s[14:15]"}[chase]
        a.c("diagnostic only: dependent-load latency probe by one wave while the others hold")
        a("s_or_b32 s44, s2, s16")
        a("s_cmp_lg_u32 s44, 0")
        a("s_cbranch_scc1 L_hold")
        a("s_mov_b64 exec, 1")
        for ps in range(2):
            if ps == 0 and not cwarm:
                continue
            a(f"v_mov_b32 v{vD}, {cbase + (0 if ps else 0x2300)}")
            a(f"s_mov_b32 s44, {cn}")
            if ps:
                a("s_memrealtime s[36:37]")
                a("s_waitcnt lgkmcnt(0)")
            a.label(f"L_chase{ps}")
            a(f"global_load_dword v{vD+1}, v{vD}, {base} nt")
            a("s_waitcnt vmcnt(0)")
            a(f"v_add_u32 v{vD}, {cstride}, v{vD}")
            a("s_sub_u32 s44, s44, 1")
            a("s_cmp_lg_u32 s44, 0")
            a(f"s_cbranch_scc1 L_chase{ps}")
        a("s_memrealtime s[38:39]")
        a("s_waitcnt lgkmcnt(0)")
        a("s_sub_u32 s36, s38, s36")
        a("s_mov_b64 exec, -1")
        a.label("L_hold")
        a("s_add_u32 s38, s40, 10000")
        a.label("L_hold2")
        a("s_memrealtime s[42:43]")
        a("s_waitcnt lgkmcnt(0)")
        a("s_sub_u32 s42, s42, s38")
        a("s_cmp_lt_i32 s42, 0")
        a("s_cbranch_scc1 L_hold2")
    tstamp(1)
    if tail == 2 and clr == -1:
        a("s_cmp_lg_u32 s16, 0")
        a("s_cbranch_scc1 L_noclear")
        a.c("wave 0 marks this workgroup's hand-off slot as empty")
        a(f"global_store_dwordx2 v{vQS}, v[{vQM}:{vQL}], s[14:15]" + ["", " sc1"][pcl])
        a("s_mov_b64 exec, " + ("0xffff" if full else "1"))
        a(f"global_store_dwordx2 v{vQS}, v[{vQM}:{vQL}], s[14:15] offset:512" + ["", " sc1"][pcl])
        a("s_mov_b64 exec, -1")
        a.label("L_noclear")
    a.vmem(f"global_load_dwordx4 v[{vD}:{vD+3}], v{vT1}, s[4:5]", "q")
    for n in range(R):
        issue_tile(n)
    tstamp(2)
    if warm & 1:
        a("s_load_dword s3, s[14:15], s24")
    if warm & 2:
        a("s_load_dword s21, s[8:9], s19")
    if warm & 4:
        a("s_load_dword s33, s[10:11], s20")
    if warm & 8:
        a("s_load_dword s32, s[12:13], 0")
    a(f"v_and_b32 v{vT0}, 1, v0")
    a(f"v_lshlrev_b32 v{vT0}, 4, v{vT0}")
    a(f"s_mov_b32 s23, 0xffff")
    a(f"v_lshlrev_b32 v{vT0}, v{vT0}, s23")
    a(f"s_mov_b32 vcc_lo, 0x03030303")
    a(f"s_mov_b32 vcc_hi, vcc_lo")
    for i in range(4):
        a(f"v_cndmask_b32 v{vMask+i}, 0, v{vT0}, vcc")
        if i < 3:
            a(f"s_lshl_b64 vcc, vcc, 2")
    cval = math.log2(math.e) / math.sqrt(128.0)
    a(f"s_mov_b32 vcc_lo, 0x000f000f")
    a(f"s_mov_b32 vcc_hi, vcc_lo")
    a.wait_tag("q")
    a(f"v_mov_b32 v{vC}, 0x{f2u(cval):08x}")
    for t in range(4):
        for i in range(4):
            a(f"v_cndmask_b32 v{vA+4*t+i}, 0, v{vD+i}, vcc")
        if t < 3:
            a(f"s_lshl_b64 vcc, vcc, 4")
    for n in range(T):
        a.c(f"K tile {n}")
        a.wait_tag(("t", n))
        tile_stamp(n)
        if n == 0:
            a("s_nop 0")
            tstamp(3)
        r = slot(n)
        for t in range(4):
            cin = "0" if t == 0 else f"v[{vD}:{vD+3}]"
            a(f"v_mfma_f32_16x16x32_bf16 v[{vD}:{vD+3}], v[{vA+4*t}:{vA+4*t+3}], v[{r+4*t}:{r+4*t+3}], {cin}")
        st = 0
        if n + R < 2 * T:
            st = issue_tile(n + R)
        if tail == 2 and n == clr:
            a("s_cmp_lg_u32 s16, 0")
            a("s_cbranch_scc1 L_noclear")
            a.c("wave 0 marks this workgroup's hand-off slot as empty (later counted waits ignore these two stores: stricter)")
            a(f"global_store_dwordx2 v{vQS}, v[{vQM}:{vQL}], s[14:15]" + ["", " sc1"][pcl])
            a("s_mov_b64 exec, " + ("0xffff" if full else "1"))
            a(f"global_store_dwordx2 v{vQS}, v[{vQM}:{vQL}], s[14:15] offset:512" + ["", " sc1"][pcl])
            a("s_mov_b64 exec, -1")
            a.label("L_noclear")
            st += 2
        if st < 8:
            a(f"s_nop {8 - st - 1}")
        s = vS + n
        a(f"v_mov_b32_dpp v{s}, v{vD} quad_perm:[0,0,0,0] row_mask:0xf bank_mask:0xf")
        for b in range(1, 4):
            a(f"v_add_f32_dpp v{s}, v{vD+b}, v{s} quad_perm:[{b},{b},{b},{b}] row_mask:0xf bank_mask:0xf")
    a.c("wave max")
    tstamp(4)
    if T == 1:
        a(f"v_mov_b32 v{vM}, v{vS}")
    else:
        a(f"v_max_f32 v{vM}, v{vS}, v{vS+1}")
        i = 2
        while i < T:
            a(f"v_max3_f32 v{vM}, v{vM}, v{vS+i}, v{vS+i+1}")
            i += 2
    for ctl in ("row_ror:4 row_mask:0xf", "row_ror:8 row_mask:0xf", "row_bcast:15 row_mask:0xa", "row_bcast:31 row_mask:0xc"):
        a("s_nop 1")
        a(f"v_max_f32_dpp v{vM}, v{vM}, v{vM} {ctl} bank_mask:0xf")
    a(f"v_mul_f32 v{vM}, v{vC}, v{vM}")
    a("s_nop 0")
    a(f"v_readlane_b32 s22, v{vM}, 63")
    a("s_nop 1")
    for n in range(T):
        a(f"v_fma_f32 v{vS+n}, v{vS+n}, v{vC}, -s22")
    for n in range(T):
        a(f"v_exp_f32 v{vS+n}, v{vS+n}")
    a(f"v_mov_b32 v{vM}, s22")
    if T == 1:
        a(f"v_mov_b32 v{vL}, v{vS}")
    else:
        a(f"v_add_f32 v{vL}, v{vS}, v{vS+1}")
        for n in range(2, T):
            a(f"v_add_f32 v{vL}, v{vL}, v{vS+n}")
    for n in range(T):
        a(f"v_cvt_pk_bf16_f32 v{vS+n}, v{vS+n}, v{vS+n}")
    for ctl in ("row_ror:4 row_mask:0xf", "row_ror:8 row_mask:0xf", "row_bcast:15 row_mask:0xa", "row_bcast:31 row_mask:0xc"):
        a("s_nop 1")
        a(f"v_add_f32_dpp v{vL}, v{vL}, v{vL} {ctl} bank_mask:0xf")
    a(f"s_lshl_b32 s23, s16, 3")
    a(f"v_mov_b32 v{vT0}, s23")
    a(f"s_brev_b64 exec, 1")
    a(f"ds_write_b64 v{vT0}, v[{vM}:{vL}] offset:{NW*512}")
    a(f"s_mov_b64 exec, -1")
    a(f"v_and_b32 v{vT0}, 15, v0")
    a(f"v_lshlrev_b32 v{vT0}, 5, v{vT0}")
    a(f"v_and_b32 v{vT1}, 16, v0")
    a(f"s_lshl_b32 s23, s16, 9")
    a(f"v_add3_u32 v{vT0}, v{vT0}, v{vT1}, s23")
    def poll_issue():
        pl = ["", " sc1", " sc0", " sc0 sc1", " nt"][pld]
        a(f"global_load_dwordx2 v[{vQM}:{vQL}], v{vQS+1}, s[14:15] offset:512{pl}")
        for w in range(S):
            a(f"global_load_dwordx2 v[{vQ+2*w}:{vQ+2*w+1}], v{vQA if w < 4 else vQB}, s[14:15] offset:{(w % 4) * 1024}{pl}")
    for i in range(T):
        n = T + i
        a.c(f"V tile {i}")
        for u in range(4):
            for j in range(4):
                a(f"v_and_b32_dpp v{vA+4*u+j}, v{vS+i}, v{vMask+j} row_newbcast:{4*u} row_mask:0xf bank_mask:0xf")
        a.wait_tag(("t", n))
        tile_stamp(n)
        a("s_nop 0")
        r = slot(n)
        for u in range(4):
            cin = "0" if (i == 0 and u == 0) else f"v[{vO}:{vO+3}]"
            a(f"v_mfma_f32_16x16x32_bf16 v[{vO}:{vO+3}], v[{vA+4*u}:{vA+4*u+3}], v[{r+4*u}:{r+4*u+3}], {cin}")
        if n + R < 2 * T:
            issue_tile(n + R)
        if tail == 2 and n == clr:
            a("s_cmp_lg_u32 s16, 0")
            a("s_cbranch_scc1 L_noclear")
            a(f"global_store_dwordx2 v{vQS}, v[{vQM}:{vQL}], s[14:15]" + ["", " sc1"][pcl])
            a("s_mov_b64 exec, " + ("0xffff" if full else "1"))
            a(f"global_store_dwordx2 v{vQS}, v[{vQM}:{vQL}], s[14:15] offset:512" + ["", " sc1"][pcl])
            a("s_mov_b64 exec, -1")
            a.label("L_noclear")
        if tail == 2 and i == min(tk, T - 1):
            a("s_cmp_lg_u32 s16, 0")
            a("s_cbranch_scc1 L_noticket")
            a(f"s_lshl_b32 s26, s17, 3")
            a(f"s_atomic_add s27, s[12:13], s26 glc")
            a.label("L_noticket")
            a(f"v_lshl_add_u32 v{vQA}, v0, 3, s24")
            a(f"v_add_u32 v{vQB}, 4096, v{vQA}")
            a(f"v_and_b32 v{vQM}, {S-1}, v0")
            a(f"v_cmp_eq_u32 s[34:35], s18, v{vQM}")
            a(f"v_lshlrev_b32 v{vQM}, 10, v{vQM}")
            a(f"v_add_u32 v{vQS+1}, s24, v{vQM}")
            a(f"s_lshl_b32 s31, s18, 1")
        if tail == 2 and i == wown:
            a("s_cmp_lg_u32 s16, 0")
            a("s_cbranch_scc1 L_nowown")
            a(f"v_lshl_add_u32 v{vTA}, v0, 7, s25")
            a("s_mov_b64 exec, 31")
            a(f"global_load_dword v{vTA}, v{vTA}, s[14:15] sc1")
            a("s_mov_b64 exec, -1")
            a.label("L_nowown")
        if tail == 2 and i == wpoll:
            a("s_waitcnt lgkmcnt(0)")
            a(f"s_cmp_lg_u32 s27, {S-1}")
            a("s_cbranch_scc1 L_nowarm")
            poll_issue()
            a.label("L_nowarm")

    if tail == 2 and spec:
        a("s_waitcnt lgkmcnt(0)")
        a(f"s_cmp_lg_u32 s27, {S-1}")
        a("s_cbranch_scc1 L_nospec")
        poll_issue()
        a.label("L_nospec")
        a("s_nop 4")
    else:
        a("s_nop 7")
    tile_stamp(2 * T)
    tstamp(5)
    a(f"ds_write_b128 v{vT0}, v[{vO}:{vO+3}]")
    a("s_waitcnt lgkmcnt(0)")
    a("s_barrier")
    tstamp(6)
    a("s_cmp_lg_u32 s16, 0")
    a("s_cbranch_scc1 L_fin")

    vP = vRing

    def combine(n, waitfn):
        lg = int(math.log2(n))
        waitfn("ml")
        a(f"v_mov_b32 v{vT0}, v{vM}")
        for k in range(lg):
            a("s_nop 1")
            a(f"v_max_f32_dpp v{vT0}, v{vT0}, v{vT0} row_ror:{1<<k} row_mask:0xf bank_mask:0xf")
        a(f"v_sub_f32 v{vT1}, v{vM}, v{vT0}")
        a(f"v_exp_f32 v{vT1}, v{vT1}")
        a(f"v_mov_b32 v{vM}, v{vT0}")
        a(f"v_mul_f32 v{vL}, v{vL}, v{vT1}")
        waitfn("o")
        for w in range(n):
            op = "v_mul_f32_dpp" if w == 0 else "v_fmac_f32_dpp"
            for h in range(2):
                a(f"{op} v{vO+h}, v{vT1}, v{vP+2*w+h} row_newbcast:{w} row_mask:0xf bank_mask:0xf")
            if w < lg:
                a(f"v_add_f32_dpp v{vL}, v{vL}, v{vL} row_ror:{1<<w} row_mask:0xf bank_mask:0xf")

    a.c("workgroup combine (wave 0)")
    a(f"v_and_b32 v{vT0}, {NW-1}, v0")
    a(f"v_lshlrev_b32 v{vT0}, 3, v{vT0}")
    a(f"v_lshlrev_b32 v{vK}, 3, v0")
    a(f"ds_read_b64 v[{vM}:{vL}], v{vT0} offset:{NW*512}")
    for w in range(NW):
        a(f"ds_read_b64 v[{vP+2*w}:{vP+2*w+1}], v{vK} offset:{w*512}")

    def ldswait(which):
        if which == "ml" and not tl:
            a(f"s_waitcnt lgkmcnt({min(NW, 15)})")
        else:
            a("s_waitcnt lgkmcnt(0)")
    combine(NW, ldswait)
    if tail == 2:
        assert S == 8
        a(f"s_cmp_eq_u32 s27, {S-1}")
        for r in (vO, vO + 1, vM, vL):
            a(f"v_min_u32 v{r}, -2, v{r}")
        a("s_cbranch_scc1 L_consume")
        ps = ["", " sc1", " sc0", " sc0 sc1", " nt"][pst]
        a(f"global_store_dwordx2 v{vQS}, v[{vO}:{vO+1}], s[14:15]{ps}")
        a("s_mov_b64 exec, " + ("0xffff" if full else "1"))
        a(f"global_store_dwordx2 v{vQS}, v[{vM}:{vL}], s[14:15] offset:512{ps}")
        tstamp(7)
        a("s_branch L_fin")
        a.label("L_consume")
        tstamp(7)
        a("s_mov_b32 s30, 0x4000")
        if spec:
            a("s_branch L_check")
        a.label("L_poll2")
        poll_issue()
        a.label("L_check")
        a("s_waitcnt vmcnt(0)")
        a(f"s_set_gpr_idx_on s31, gpr_idx(DST)")
        a("s_nop 0")
        a(f"v_mov_b32 v{vQ}, v{vO}")
        a(f"v_mov_b32 v{vQ+1}, v{vO+1}")
        a("s_set_gpr_idx_off")
        a(f"v_cndmask_b32 v{vQM}, v{vQM}, v{vM}, s[34:35]")
        a(f"v_cndmask_b32 v{vQL}, v{vQL}, v{vL}, s[34:35]")
        a(f"v_max3_u32 v{vT0}, v{vQ}, v{vQ+1}, v{vQ+2}")
        a(f"v_max3_u32 v{vT1}, v{vQ+3}, v{vQ+4}, v{vQ+5}")
        for r in range(6, 18, 4):
            a(f"v_max3_u32 v{vT0}, v{vT0}, v{vQ+r}, v{vQ+r+1}")
            a(f"v_max3_u32 v{vT1}, v{vT1}, v{vQ+r+2}, v{vQ+r+3}")
        a(f"v_max_u32 v{vT0}, v{vT0}, v{vT1}")
        a(f"v_cmp_eq_u32 vcc, -1, v{vT0}")
        a("s_cbranch_vccz L_ready")
        a("s_sub_u32 s30, s30, 1")
        a("s_cmp_lg_u32 s30, 0")
        a("s_cbranch_scc1 L_poll2")
        a.label("L_ready")
        tstamp(8)
        a(f"v_mov_b32 v{vM}, v{vQM}")
        a(f"v_mov_b32 v{vL}, v{vQL}")
        vP = vQ
        combine(S, lambda which: a("s_nop 0"))
    keep_lines = len(a.lines)
    a(f"s_lshl_b32 s24, s17, {lgS+10}")
    a(f"s_lshl_b32 s25, s18, 10")
    a(f"s_add_u32 s25, s25, s24")
    a(f"v_add_u32 v{vV}, s25, v{vK}")
    a.vmem(f"global_store_dwordx2 v{vV}, v[{vO}:{vO+1}], s[14:15] sc1", "st")
    a("s_mov_b64 exec, 1")
    a.vmem(f"global_store_dwordx2 v{vV}, v[{vM}:{vL}], s[14:15] offset:512 sc1", "st")
    a(f"s_lshl_b32 s26, s17, 3")
    a(f"v_mov_b32 v{vT0}, s26")
    a(f"v_mov_b32 v{vT1}, 1")
    a.wait_all()
    tstamp(7)
    a.vmem(f"global_atomic_add v{vT1}, v{vT0}, v{vT1}, s[12:13] sc0", "at")
    a.wait_all()
    tstamp(8)
    a(f"v_readfirstlane_b32 s27, v{vT1}")
    a("s_mov_b64 exec, -1")
    a(f"s_cmp_lg_u32 s27, {S-1}")
    a("s_cbranch_scc1 L_fin")
    a.c("last workgroup of this head: final combine")
    a(f"v_and_b32 v{vT0}, {S-1}, v0")
    a(f"v_lshlrev_b32 v{vT0}, 10, v{vT0}")
    a(f"v_add_u32 v{vT0}, s24, v{vT0}")
    a.vmem(f"global_load_dwordx2 v[{vM}:{vL}], v{vT0}, s[14:15] offset:512 sc1", "ml")
    a(f"v_add_u32 v{vV}, s24, v{vK}")
    for w in range(S):
        if w and w % 4 == 0:
            a(f"v_add_u32 v{vV}, 4096, v{vV}")
        off = (w % 4) * 1024
        a.vmem(f"global_load_dwordx2 v[{vP+2*w}:{vP+2*w+1}], v{vV}, s[14:15] offset:{off} sc1", "o")
    combine(S, a.wait_tag)
    if tail == 2:
        del a.lines[keep_lines:]
        a.vm = []
    a(f"v_rcp_f32 v{vL}, v{vL}")
    a(f"v_lshlrev_b32 v{vT0}, 2, v0")
    a(f"v_add_u32 v{vT0}, s20, v{vT0}")
    a(f"v_mul_f32 v{vO}, v{vO}, v{vL}")
    a(f"v_mul_f32 v{vO+1}, v{vO+1}, v{vL}")
    a(f"v_cvt_pk_bf16_f32 v{vO}, v{vO}, v{vO+1}")
    a.vmem(f"global_store_dword v{vT0}, v{vO}, s[10:11]" + ["", " sc1", " sc0 sc1", " nt"][outsc], "out")
    if tl:
        a.wait_all()
        tstamp(9)
    if amp:
        a.wait_all()
        a(f"v_mov_b32 v{vT0}, 4")
        a(f"v_mov_b32 v{vT1}, 1")
        a("s_mov_b64 exec, 1")
        a.vmem(f"global_atomic_add v{vT0}, v{vT1}, s[12:13]", "at")
    a.label("L_fin")
    tdump()
    if amp:
        a.c("diagnostic only: workgroup 0 waits for all heads, then holds for amp x elapsed")
        a("s_or_b32 s44, s2, s16")
        a("s_cmp_lg_u32 s44, 0")
        a("s_cbranch_scc1 L_end")
        a("s_mov_b64 exec, 1")
        a(f"v_mov_b32 v{vT0}, 4")
        a("s_mov_b32 s44, 200000")
        a.label("L_poll")
        a(f"global_load_dword v{vT1}, v{vT0}, s[12:13] sc1")
        a("s_waitcnt vmcnt(0)")
        a(f"v_readfirstlane_b32 s45, v{vT1}")
        a("s_sub_u32 s44, s44, 1")
        a("s_cmp_eq_u32 s44, 0")
        a("s_cbranch_scc1 L_end")
        a("s_cmp_lt_u32 s45, 32")
        a("s_cbranch_scc1 L_poll")
        a("s_memrealtime s[42:43]")
        a("s_waitcnt lgkmcnt(0)")
        a("s_sub_u32 s44, s42, s40")
        if chase:
            a("s_mov_b32 s44, s36")
        a(f"v_mov_b32 v{vT1}, s44")
        a(f"global_store_dword v{vT0}, v{vT1}, s[12:13] offset:8")
        a("s_min_u32 s44, s44, 20000")
        a(f"s_mul_i32 s44, s44, {amp}")
        a("s_add_u32 s40, s42, s44")
        a.label("L_spin")
        a("s_memrealtime s[42:43]")
        a("s_waitcnt lgkmcnt(0)")
        a("s_sub_u32 s42, s42, s40")
        a("s_cmp_lt_i32 s42, 0")
        a("s_cbranch_scc1 L_spin")
    if stamp:
        a.c("diagnostic only: hold workgroup 0 until a fixed time after its start")
        a("s_or_b32 s44, s2, s16")
        a("s_cmp_lg_u32 s44, 0")
        a("s_cbranch_scc1 L_end")
        a(f"s_add_u32 s40, s40, {stamp}")
        a("s_addc_u32 s41, s41, 0")
        a.label("L_spin")
        a("s_memrealtime s[42:43]")
        a("s_waitcnt lgkmcnt(0)")
        a("s_sub_u32 s42, s42, s40")
        a("s_cmp_lt_i32 s42, 0")
        a("s_cbranch_scc1 L_spin")
    a.label("L_end")
    a("s_endpgm")

    lds = max(ldsmin, NW * 512 + NW * 8)
    out = HEADER
    if tail == 2 and clr == -2:
        out += "; hostclear\n"
    out += f"; @launch grid=({NWG},1,1) block=({NW*64},1,1) lds={lds}\n"
    out += '.amdgcn_target "amdgcn-amd-amdhsa--gfx950"\n.text\n'
    out += f".globl {NAME}\n.p2align 8\n.type {NAME},@function\n{NAME}:\n"
    out += "\n".join(a.lines) + "\n"
    acc = (nv + 3) // 4 * 4
    out += f""".section .rodata,"a"
.p2align 6
.amdhsa_kernel {NAME}
  .amdhsa_next_free_vgpr {nv}
  .amdhsa_next_free_sgpr {100 if (table or kpat) else (72 if tl else 48)}
  .amdhsa_accum_offset {acc}
  .amdhsa_group_segment_fixed_size 0
  .amdhsa_kernarg_size 48
  .amdhsa_user_sgpr_count 2
  .amdhsa_user_sgpr_kernarg_segment_ptr 1
  .amdhsa_system_sgpr_workgroup_id_x 1
  .amdhsa_float_denorm_mode_32 3
.end_amdhsa_kernel
"""
    return out


if __name__ == "__main__":
    p = argparse.ArgumentParser()
    p.add_argument("-o", required=True)
    for k, d in dict(NW=8, S=8, R=12, interleave=1, kvmode=0, wgmap=0, stamp=0, amp=0, tl=0, rot=0, ldsmin=0, xmask=255, chase=0, cbase=0, cstride=0x80000, cn=64, cwarm=1, numa=0, pk=0, pv=0, table=0, pf=0, outsc=0, tail=1, tk=8, spec=1, warm=0, clr=-1, pst=1, pld=1, pcl=1, full=0, wpoll=-1, wown=-1).items():
        p.add_argument("--" + k, type=int, default=d)
    p.add_argument("--pol", default="nt")
    p.add_argument("--pat", default="")
    args = vars(p.parse_args())
    o = args.pop("o")
    open(o, "w").write(gen(**args))
```

```python
import argparse
import math
from gen1 import HEADER, NAME, Asm, f2u

G1 = "j0^w0^t3 w1 j2^t0 j2 t1 j0 t2 j4 t3 j3 x1 x2 x0 j1"
DEFAULTS = dict(R=4, R2=0, pol="nt", pat=G1, kvmode=0, tl=0, amp=0, pf=1, wld=1, clr=6, flg=12, chk=22,
                chkmode=0, spec=1, forceslow=0, qpos=1, fine=1, kpat=0, cap=0x1000000, psel=0, iodfix=0, xrot=0)

NW, S, T = 4, 8, 16
NWG = 256
NAMES = ["x0", "x1", "x2", "j0", "j1", "j2", "j3", "j4", "w0", "w1", "t0", "t1", "t2", "t3"]


def rank(ms):
    ms = list(ms)
    r = 0
    for bit in range(14):
        pv = next((m for m in ms if m >> bit & 1), None)
        if pv is None:
            continue
        ms.remove(pv)
        ms = [m ^ pv if m >> bit & 1 else m for m in ms]
        r += 1
    return r


def columns(pat):
    rows = []
    for tm in pat.replace(",", " ").split()[:14]:
        m = 0
        for n in tm.split("^"):
            m ^= 1 << NAMES.index(n)
        rows.append(m)
    assert rank(rows) == 14 and not any(m >> 8 for m in rows[9:])
    sp = []
    for bit in range(8):
        if rank(rows[9:] + sp + [1 << bit]) == 5 + len(sp) + 1:
            sp.append(1 << bit)
    rows += sp
    return [sum(((rows[pos] >> i) & 1) << pos for pos in range(17)) for i in range(14)]


def gen(**kw):
    o = dict(DEFAULTS)
    o.update(kw)
    tl, amp, kvmode, kpat = o["tl"], o["amp"], o["kvmode"], o["kpat"]
    pol = (" " + o["pol"]) if o["pol"] else ""
    col = columns(o["pat"])
    assert o["flg"] >= o["clr"] + max(o["R"], o["R2"]) + 1 and o["chk"] > o["flg"]
    SLOW = 0x40000
    Rmax = max(o["R"], o["R2"])
    a = Asm()
    vK, vV, vT0, vT1, vC, vM, vL = 1, 2, 3, 4, 5, 6, 7
    vD, vO, vMask, vA = 8, 12, 16, 20
    vS = 36
    vQ = 52
    vQM, vQL = 68, 69
    vQA, vQB, vQC, vQS = 70, 71, 72, 73
    vLA, vTS, vX, vQD = 74, 75, 76, 77
    vRing = 80
    nv = vRing + 16 * Rmax
    assert nv <= 256
    sW, sHead, sSplit, sBase, sOut = 16, 17, 18, 19, 20
    sMc = 22
    sHB, sSlot, sDbg = 24, 25, 26
    sRole = 28
    sMine, sDone, sCap, sChk = 30, 31, 32, 33
    sOwn = 34

    def tstamp(i):
        if tl:
            a(f"s_memrealtime s[{48+2*i}:{49+2*i}]")

    def tmask(i):
        m = 0
        for b in range(4):
            if i >> b & 1:
                m ^= col[10 + b]
        return m << 12

    kstep, vstep = (1024, 256) if kvmode == 0 else (256, 1024)

    a(f"s_cmpk_ge_u32 s2, {NWG}")
    a("s_cbranch_scc1 L_end")
    a("s_load_dwordx8 s[4:11], s[0:1], 0")
    a("s_load_dwordx4 s[12:15], s[0:1], 32")
    if kpat:
        a("s_load_dwordx16 s[76:91], s[0:1], 48")
    if amp:
        a("s_memrealtime s[40:41]")
    if tl:
        for i in range(1, 10):
            a(f"s_mov_b32 s{48+2*i}, 0")
        a(f"s_mov_b32 s{sCap}, 0")
    tstamp(0)
    a(f"v_lshrrev_b32 v{vT0}, 6, v0")
    if o["pf"]:
        a.c("pull the kernel's own code into L2 while the kernel arguments are on their way")
        a("s_getpc_b64 s[22:23]")
        a(f"v_lshlrev_b32 v{vT1}, 7, v0")
        a(f"v_min_u32 v{vT1}, L_end-.-64, v{vT1}")
        a.vmem(f"global_load_dword v{vC}, v{vT1}, s[22:23]", "pf")
    else:
        a("s_nop 0")
    a(f"v_readfirstlane_b32 s{sW}, v{vT0}")
    a(f"v_and_b32 v0, 63, v0")
    a.c("(workgroup, wave) -> first tile, head and split: an xor-linear map of the id bits")
    a(f"s_lshl_b32 s21, s{sW}, 8")
    if o["xrot"]:
        a(f"s_add_u32 s3, s2, {o['xrot']}")
        a("s_and_b32 s3, s3, 7")
        a("s_and_b32 s23, s2, 0xf8")
        a("s_or_b32 s23, s23, s3")
        a(f"s_or_b32 s21, s21, s23")
    else:
        a(f"s_or_b32 s21, s21, s2")
    if kpat:
        a("s_waitcnt lgkmcnt(0)")
    for b in range(10):
        src = f"s{76+b}" if kpat else str(col[b])
        a(f"s_bitcmp1_b32 s21, {b}")
        if b == 0:
            a(f"s_cselect_b32 s{sBase}, {src}, 0")
        else:
            a(f"s_cselect_b32 s3, {src}, 0")
            a(f"s_xor_b32 s{sBase}, s{sBase}, s3")
    if o["iodfix"]:
        a.c("order of this wave's own tiles follows the die it really runs on (speed only)")
        a("s_getreg_b32 s3, hwreg(HW_REG_XCC_ID, 0, 4)")
        a("s_xor_b32 s3, s3, s21")
        a("s_bitcmp1_b32 s3, 2")
        a(f"s_cselect_b32 s3, {col[13]}, 0")
        a(f"s_xor_b32 s{sBase}, s{sBase}, s3")
    if kpat:
        for b in range(4):
            a(f"s_and_b32 s{86+b}, s{86+b}, 0x1ff000")
    a(f"s_bfe_u32 s{sSplit}, s{sBase}, 0x3000e")
    a(f"s_bfe_u32 s{sHead}, s{sBase}, 0x50009")
    a(f"s_and_b32 s{sBase}, s{sBase}, 0x3fff")
    a(f"s_lshl_b32 s{sBase}, s{sBase}, 12")
    a.c("lane patterns: lane = (g, a, b) for K and q, (g, c) for V")
    a(f"v_and_b32 v{vT1}, 3, v0")
    a(f"v_lshlrev_b32 v{vT1}, 4, v{vT1}")
    a(f"v_and_b32 v{vM}, 48, v0")
    a(f"v_lshl_add_u32 v{vT1}, v{vM}, 2, v{vT1}")
    a(f"v_and_b32 v{vL}, 12, v0")
    a(f"v_lshlrev_b32 v{vL}, {6 if kvmode == 0 else 8}, v{vL}")
    a(f"v_add3_u32 v{vK}, v{vL}, v{vT1}, s{sBase}")
    a(f"s_lshl_b32 s{sOut}, s{sHead}, 8")
    a(f"v_add_u32 v{vT1}, s{sOut}, v{vT1}")
    if o["R2"]:
        if o["psel"] == 0:
            a("s_bitcmp1_b32 s2, 0")
        else:
            a("s_getreg_b32 s3, hwreg(HW_REG_XCC_ID, 0, 4)")
            a("s_bitcmp1_b32 s3, 0")
    a("s_waitcnt lgkmcnt(0)")
    tstamp(1)
    if o["R2"]:
        a("s_cbranch_scc1 L_body1")
    vm0 = list(a.vm)

    def poll_issue():
        a(f"global_load_dwordx2 v[{vQM}:{vQL}], v{vQC}, s[14:15] sc1")
        for w in range(1, S):
            a(f"global_load_dwordx2 v[{vQ+2*w}:{vQ+2*w+1}], v{vQA}, s[14:15] offset:{w * 512} sc1")

    def body(R, sfx):
        a.vm = list(vm0)

        def slot(n):
            return vRing + 16 * (n % R)

        def issue_tile(n):
            isK = n < T
            i = n if isK else n - T
            va, base, step = (vK, "s[6:7]", kstep) if isK else (vV, "s[8:9]", vstep)
            if i > 0:
                if kpat:
                    a(f"v_xor_b32 v{va}, s{86 + (i ^ (i - 1)).bit_length() - 1}, v{va}")
                else:
                    a(f"v_xor_b32 v{va}, {tmask(i) ^ tmask(i - 1)}, v{va}")
            r = slot(n)
            for t in range(4):
                off = f" offset:{t*step}" if t else ""
                a.vmem(f"global_load_dwordx4 v[{r+4*t}:{r+4*t+3}], v{va}, {base}{off}{pol}", ("t", n, t))
            return 4 + (1 if i > 0 else 0)

        def side_work(n):
            st = 0
            if n == o["wld"]:
                a(f"s_cmp_lg_u32 s{sRole}, 0")
                a(f"s_cbranch_scc1 L_nowld{sfx}")
                a.c("collector: bring the hand-off lines into its L2 (values unused)")
                a(f"global_load_dword v{vX}, v{vX}, s[14:15] sc1")
                a.label(f"L_nowld{sfx}")
                st += 2
            if n == o["clr"]:
                a(f"s_cmp_lg_u32 s{sRole}, 0")
                a(f"s_cbranch_scc1 L_noclr{sfx}")
                a.c("collector: mark all hand-off words of this head as empty")
                for k in range(4):
                    a(f"global_store_dwordx4 v{vQB}, v[{vQ}:{vQ+3}], s[14:15] offset:{k*1024}")
                a(f"global_store_dwordx2 v{vQC}, v[{vQ}:{vQ+1}], s[14:15]")
                a.label(f"L_noclr{sfx}")
                st += 2
            if n == o["flg"]:
                a(f"s_cmp_lg_u32 s{sRole}, 0")
                a(f"s_cbranch_scc1 L_noflg{sfx}")
                a.c("collector: the marks are in place; tell the other seven which die collects")
                a(f"v_mov_b32 v{vQ}, s{sDbg}")
                a(f"v_mov_b32 v{vQ+1}, s{sMine}")
                a("s_mov_b64 exec, 1")
                a(f"global_store_dword v{vQ}, v{vQ+1}, s[12:13] sc1")
                a("s_mov_b64 exec, -1")
                a.label(f"L_noflg{sfx}")
                st += 2
            if n == o["chk"]:
                a(f"s_cmp_lg_u32 s{sW}, 0")
                a(f"s_cbranch_scc1 L_nochk{sfx}")
                a(f"s_load_dword s{sChk}, s[12:13], s{sDbg}" + (" glc" if o["chkmode"] else ""))
                a.label(f"L_nochk{sfx}")
                st += 2
            return st

        for n in range(R):
            issue_tile(n)
            if n + 1 == o["qpos"] or (n == 0 and o["qpos"] == 0):
                a.vmem(f"global_load_dwordx4 v[{vD}:{vD+3}], v{vT1}, s[4:5]", "q")
        tstamp(2)
        if kvmode == 0:
            a(f"v_and_b32 v{vL}, 15, v0")
            a(f"v_lshlrev_b32 v{vL}, 4, v{vL}")
            a(f"v_lshl_add_u32 v{vV}, v{vM}, 6, v{vL}")
            a(f"v_add_u32 v{vV}, s{sBase}, v{vV}")
        else:
            a(f"v_lshl_add_u32 v{vV}, v0, 4, s{sBase}")
        a.c("hand-off addresses and constants")
        a(f"s_lshl_b32 s{sHB}, s{sHead}, 13")
        a(f"s_lshl_b32 s{sSlot}, s{sSplit}, 9")
        a(f"s_add_u32 s{sSlot}, s{sSlot}, s{sHB}")
        a(f"s_lshl_b32 s{sDbg}, s{sHead}, 2")
        a(f"s_or_b32 s{sRole}, s{sSplit}, s{sW}")
        a(f"s_getreg_b32 s{sMine}, hwreg(HW_REG_XCC_ID, 0, 4)")
        a(f"s_or_b32 s{sMine}, s{sMine}, 0x100")
        a(f"s_mov_b32 s{sChk}, 0")
        a(f"s_mov_b32 s{sOwn}, 0x01010101")
        a(f"s_mov_b32 s{sOwn+1}, s{sOwn}")
        a(f"v_lshl_add_u32 v{vQS}, v0, 3, s{sSlot}")
        a(f"v_min_u32 v{vX}, 32, v0")
        a(f"v_lshl_add_u32 v{vX}, v{vX}, 7, s{sHB}")
        a(f"v_lshl_add_u32 v{vQA}, v0, 3, s{sHB}")
        a(f"v_lshl_add_u32 v{vQB}, v0, 4, s{sHB}")
        a(f"s_add_u32 s3, s{sHB}, 4096")
        a(f"v_and_b32 v{vQC}, 7, v0")
        a(f"v_lshl_add_u32 v{vQC}, v{vQC}, 3, s3")
        a(f"s_lshl_b32 s21, s{sSplit}, 3")
        a(f"s_add_u32 s21, s21, s3")
        a(f"v_mov_b32 v{vQD}, s21")
        for k in range(4):
            a(f"v_mov_b32 v{vQ+k}, -1")
        a.c("LDS address of this wave's partial: w*512 + c*32 + (g&1)*16")
        a(f"v_and_b32 v{vT0}, 15, v0")
        a(f"v_lshlrev_b32 v{vT0}, 5, v{vT0}")
        a(f"v_and_b32 v{vLA}, 16, v0")
        a(f"s_lshl_b32 s3, s{sW}, 9")
        a(f"v_add3_u32 v{vLA}, v{vT0}, v{vLA}, s3")
        a.c("half-word masks that place p on the diagonal of the P operand")
        a(f"v_and_b32 v{vT0}, 1, v0")
        a(f"v_lshlrev_b32 v{vT0}, 4, v{vT0}")
        a(f"s_mov_b32 s3, 0xffff")
        a(f"v_lshlrev_b32 v{vT0}, v{vT0}, s3")
        a(f"s_mov_b32 vcc_lo, 0x03030303")
        a(f"s_mov_b32 vcc_hi, vcc_lo")
        for i in range(4):
            a(f"v_cndmask_b32 v{vMask+i}, 0, v{vT0}, vcc")
            if i < 3:
                a(f"s_lshl_b64 vcc, vcc, 2")
        a(f"s_mov_b32 vcc_lo, 0x000f000f")
        a(f"s_mov_b32 vcc_hi, vcc_lo")
        a.wait_tag("q")
        cval = math.log2(math.e) / math.sqrt(128.0)
        a(f"v_mov_b32 v{vC}, 0x{f2u(cval):08x}")
        a.c("q operand t is q in rows 4t..4t+3 and zero elsewhere")
        for t in range(4):
            for i in range(4):
                a(f"v_cndmask_b32 v{vA+4*t+i}, 0, v{vD+i}, vcc")
            if t < 3:
                a(f"s_lshl_b64 vcc, vcc, 4")

        def wait_tile(n, t=3):
            if any(x == ("t", n, t) for x in a.vm):
                a.wait_tag(("t", n, t))
                return 1
            return 0

        for n in range(T):
            a.c(f"K tile {n}")
            w = wait_tile(n)
            if n == 0:
                a("s_nop 0" if w else "s_nop 1")
                tstamp(3)
            r = slot(n)
            for t in range(4):
                cin = "0" if t == 0 else f"v[{vD}:{vD+3}]"
                a(f"v_mfma_f32_16x16x32_bf16 v[{vD}:{vD+3}], v[{vA+4*t}:{vA+4*t+3}], v[{r+4*t}:{r+4*t+3}], {cin}")
            st = issue_tile(n + R)
            st += side_work(n)
            if st < 8:
                a(f"s_nop {8 - st - 1}")
            s = vS + n
            a(f"v_mov_b32_dpp v{s}, v{vD} quad_perm:[0,0,0,0] row_mask:0xf bank_mask:0xf")
            for b in range(1, 4):
                a(f"v_add_f32_dpp v{s}, v{vD+b}, v{s} quad_perm:[{b},{b},{b},{b}] row_mask:0xf bank_mask:0xf")
            if n == 1:
                a(f"v_max_f32 v{vM}, v{vS}, v{vS+1}")
            elif n > 1 and n % 2 == 1:
                a(f"v_max3_f32 v{vM}, v{vM}, v{s-1}, v{s}")
        a.c("true maximum of this wave's scores")
        tstamp(4)
        red = ("row_ror:4 row_mask:0xf", "row_ror:8 row_mask:0xf", "row_bcast:15 row_mask:0xa", "row_bcast:31 row_mask:0xc")
        for ctl in red:
            a("s_nop 1")
            a(f"v_max_f32_dpp v{vM}, v{vM}, v{vM} {ctl} bank_mask:0xf")
        a(f"v_mul_f32 v{vM}, v{vC}, v{vM}")
        a("s_nop 0")
        a(f"v_readlane_b32 s{sMc}, v{vM}, 63")
        a("s_nop 1")
        for n in range(T):
            a(f"v_fma_f32 v{vS+n}, v{vS+n}, v{vC}, -s{sMc}")
        for n in range(T):
            a(f"v_exp_f32 v{vS+n}, v{vS+n}")
        a(f"v_mov_b32 v{vM}, s{sMc}")
        a(f"v_add_f32 v{vL}, v{vS}, v{vS+1}")
        for n in range(2, T):
            a(f"v_add_f32 v{vL}, v{vL}, v{vS+n}")
        for n in range(T):
            a(f"v_cvt_pk_bf16_f32 v{vS+n}, v{vS+n}, v{vS+n}")
        for ctl in red:
            a(f"v_add_f32_dpp v{vL}, v{vL}, v{vL} {ctl} bank_mask:0xf")
            a("s_nop 1")
        a(f"s_lshl_b32 s3, s{sW}, 3")
        a(f"v_mov_b32 v{vT0}, s3")
        a(f"s_brev_b64 exec, 1")
        a(f"ds_write_b64 v{vT0}, v[{vM}:{vL}] offset:{NW*512}")
        a(f"s_mov_b64 exec, -1")
        for i in range(T):
            n = T + i
            a.c(f"V tile {i}")
            for u in range(4):
                for j in range(4):
                    a(f"v_and_b32_dpp v{vA+4*u+j}, v{vS+i}, v{vMask+j} row_newbcast:{4*u} row_mask:0xf bank_mask:0xf")
            fine = o["fine"] and i == T - 1
            if not fine:
                wait_tile(n)
                a("s_nop 0")
            r = slot(n)
            for u in range(4):
                if fine:
                    wait_tile(n, u)
                    if u == 0:
                        a("s_nop 0")
                cin = "0" if (i == 0 and u == 0) else f"v[{vO}:{vO+3}]"
                a(f"v_mfma_f32_16x16x32_bf16 v[{vO}:{vO+3}], v[{vA+4*u}:{vA+4*u+3}], v[{r+4*u}:{r+4*u+3}], {cin}")
            if n + R < 2 * T:
                issue_tile(n + R)
            side_work(n)

    body(o["R"], "a")
    if o["R2"]:
        a("s_branch L_join")
        a.label("L_body1")
        body(o["R2"], "b")
        a.label("L_join")
    a.vm = []
    if o["spec"]:
        a(f"s_cmp_lg_u32 s{sRole}, 0")
        a("s_cbranch_scc1 L_nospec")
        poll_issue()
        a.label("L_nospec")
        a("s_nop 5")
    else:
        a("s_nop 7")
    tstamp(5)
    a(f"ds_write_b128 v{vLA}, v[{vO}:{vO+3}]")
    a(f"v_and_b32 v{vT0}, {NW-1}, v0")
    a(f"v_lshlrev_b32 v{vT0}, 3, v{vT0}")
    a(f"v_lshlrev_b32 v{vK}, 3, v0")
    a(f"s_cmp_lg_u32 s{sW}, 0")
    a("s_waitcnt lgkmcnt(0)")
    a("s_barrier")
    tstamp(6)
    a("s_cbranch_scc1 L_fin")

    def combine(n, vP, m, l, waitfn):
        lg = int(math.log2(n))
        waitfn("ml")
        a(f"v_max_f32_dpp v{vT0}, v{m}, v{m} row_ror:1 row_mask:0xf bank_mask:0xf")
        for k in range(1, lg):
            a("s_nop 1")
            a(f"v_max_f32_dpp v{vT0}, v{vT0}, v{vT0} row_ror:{1<<k} row_mask:0xf bank_mask:0xf")
        a(f"v_sub_f32 v{vT1}, v{m}, v{vT0}")
        a(f"v_exp_f32 v{vT1}, v{vT1}")
        a(f"v_mov_b32 v{vM}, v{vT0}")
        a(f"v_mul_f32 v{vL}, v{l}, v{vT1}")
        waitfn("o")
        for w in range(n):
            op = "v_mul_f32_dpp" if w == 0 else "v_fmac_f32_dpp"
            for h in range(2):
                a(f"{op} v{vO+h}, v{vT1}, v{vP+2*w+h} row_newbcast:{w} row_mask:0xf bank_mask:0xf")
            if w < lg:
                a(f"v_add_f32_dpp v{vL}, v{vL}, v{vL} row_ror:{1<<w} row_mask:0xf bank_mask:0xf")

    a.c("wave 0 merges the four waves' partials")
    a(f"ds_read_b64 v[{vM}:{vL}], v{vT0} offset:{NW*512}")
    for w in range(NW):
        a(f"ds_read_b64 v[{vRing+2*w}:{vRing+2*w+1}], v{vK} offset:{w*512}")

    def ldswait(which):
        a(f"s_waitcnt lgkmcnt({NW if which == 'ml' and not tl else 0})")
    combine(NW, vRing, vM, vL, ldswait)
    a(f"s_cmp_eq_u32 s{sRole}, 0")
    for r in (vO, vO + 1, vM, vL):
        a(f"v_min_u32 v{r}, -2, v{r}")
    a("s_cbranch_scc1 L_collect")
    if o["forceslow"] == 1:
        a(f"s_mov_b32 s{sChk}, 0")
    elif o["forceslow"] == 2:
        a(f"s_bitcmp1_b32 s{sSplit}, 0")
        a(f"s_cselect_b32 s{sChk}, 0, s{sChk}")
    a(f"s_cmp_lg_u32 s{sChk}, s{sMine}")
    a("s_cbranch_scc1 L_slowput")
    a.c("the collector runs on this die and has marked the slot: plain stores meet it in the shared L2")
    a(f"global_store_dwordx2 v{vQS}, v[{vO}:{vO+1}], s[14:15]")
    a("s_mov_b64 exec, 1")
    a(f"global_store_dwordx2 v{vQD}, v[{vM}:{vL}], s[14:15]")
    tstamp(7)
    a("s_branch L_fin" if (tl or amp) else "s_endpgm")
    a.label("L_collect")
    tstamp(7)
    a(f"s_mov_b32 s{sCap}, {o['cap']}")
    a(f"s_mov_b32 s{sDone}, 0")
    a(f"v_mov_b32 v{vQ}, v{vO}")
    a(f"v_mov_b32 v{vQ+1}, v{vO+1}")
    if o["spec"]:
        a("s_branch L_check")
    a.label("L_poll")
    poll_issue()
    a.label("L_check")
    a("s_waitcnt vmcnt(7)")
    a(f"v_cndmask_b32 v{vQM}, v{vQM}, v{vM}, s[{sOwn}:{sOwn+1}]")
    a(f"v_cndmask_b32 v{vQL}, v{vQL}, v{vL}, s[{sOwn}:{sOwn+1}]")
    a(f"v_max_u32 v{vT0}, v{vQM}, v{vQL}")
    for w in range(1, S):
        a(f"s_waitcnt vmcnt({S-1-w})")
        a(f"v_max3_u32 v{vT0}, v{vT0}, v{vQ+2*w}, v{vQ+2*w+1}")
    a(f"v_cmp_eq_u32 vcc, -1, v{vT0}")
    a("s_cbranch_vccz L_ready")
    a(f"s_sub_u32 s{sCap}, s{sCap}, 1")
    a(f"s_and_b32 s3, s{sCap}, 7")
    a(f"s_cselect_b32 s3, s{sDone}, 1")
    a(f"s_cmp_eq_u32 s3, 0")
    a("s_cbranch_scc1 L_poll")
    a("s_branch L_slowpoll")
    a.label("L_ready")
    tstamp(8)
    combine(S, vQ, vQM, vQL, lambda which: a("s_nop 0") if which == "o" else None)
    a(f"v_rcp_f32 v{vL}, v{vL}")
    a(f"v_lshl_add_u32 v{vT0}, v0, 2, s{sOut}")
    a(f"v_mul_f32 v{vO}, v{vO}, v{vL}")
    a(f"v_mul_f32 v{vO+1}, v{vO+1}, v{vL}")
    a(f"v_cvt_pk_bf16_f32 v{vO}, v{vO}, v{vO+1}")
    a(f"global_store_dword v{vT0}, v{vO}, s[10:11]")
    if tl:
        a("s_waitcnt vmcnt(0)")
        tstamp(9)
    if amp:
        a("s_waitcnt vmcnt(0)")
        a(f"v_mov_b32 v{vT0}, 128")
        a(f"v_mov_b32 v{vT1}, 0x10000")
        a("s_mov_b64 exec, 1")
        a(f"global_atomic_add v{vT0}, v{vT1}, s[12:13]")
    a("s_branch L_fin" if (tl or amp) else "s_endpgm")
    a.label("L_slowput")
    a.c("collector on another die, or not announced yet: write through to the second slot set, then flag this split as done")
    a(f"v_add_u32 v{vQS}, {SLOW}, v{vQS}")
    a(f"s_lshl_b32 s3, s{sSplit}, 8")
    a(f"s_add_u32 s3, s3, s{sHB}")
    a(f"s_add_u32 s3, s3, {SLOW + 4096}")
    a(f"v_mov_b32 v{vQD}, s3")
    a(f"global_store_dwordx2 v{vQS}, v[{vO}:{vO+1}], s[14:15] sc1")
    a("s_mov_b64 exec, 1")
    a(f"global_store_dwordx2 v{vQD}, v[{vM}:{vL}], s[14:15] sc1")
    a(f"s_lshl_b32 s3, 1, s{sSplit}")
    a(f"v_mov_b32 v{vT0}, s{sDbg}")
    a(f"v_mov_b32 v{vT1}, s3")
    a("s_waitcnt vmcnt(0)")
    a(f"global_atomic_or v{vT0}, v{vT1}, s[12:13] offset:128")
    if tl:
        a(f"s_mov_b32 s{sCap}, 0")
        a(f"s_mov_b32 s71, 100")
    a("s_branch L_fin" if (tl or amp) else "s_endpgm")
    a.label("L_slowpoll")
    a.c("collector: look for splits that used the second slot set")
    a(f"s_cmp_eq_u32 s{sCap}, 0")
    a("s_cbranch_scc1 L_fin")
    a(f"v_mov_b32 v{vT0}, s{sDbg}")
    a(f"global_load_dword v{vT1}, v{vT0}, s[12:13] offset:128 sc1")
    a(f"v_and_b32 v{vT0}, 7, v0")
    a("s_waitcnt vmcnt(0)")
    a(f"v_readfirstlane_b32 s{sDone}, v{vT1}")
    a(f"v_lshrrev_b32 v{vT1}, v{vT0}, v{vT1}")
    a(f"v_and_b32 v{vT1}, 1, v{vT1}")
    a(f"v_cmp_eq_u32 vcc, 1, v{vT1}")
    a(f"s_add_u32 s3, s{sHB}, {SLOW + 4096}")
    a(f"v_lshl_add_u32 v{vT0}, v{vT0}, 8, s3")
    a(f"s_and_b32 s{sDone}, s{sDone}, 0xff")
    a(f"v_cndmask_b32 v{vT1}, v{vQC}, v{vT0}, vcc")
    a(f"global_load_dwordx2 v[{vQM}:{vQL}], v{vT1}, s[14:15] sc1")
    for w in range(1, S):
        a(f"s_bitcmp1_b32 s{sDone}, {w}")
        a(f"s_cselect_b32 s3, {SLOW}, 0")
        a(f"v_add_u32 v{vT1}, s3, v{vQA}")
        a(f"global_load_dwordx2 v[{vQ+2*w}:{vQ+2*w+1}], v{vT1}, s[14:15] offset:{w * 512} sc1")
    a("s_branch L_check")
    a.label("L_fin")
    if tl:
        a("s_mov_b64 exec, -1")
        a("s_getreg_b32 s46, hwreg(HW_REG_XCC_ID)")
        a("s_getreg_b32 s47, hwreg(HW_REG_HW_ID)")
        a("s_waitcnt lgkmcnt(0)")
        a(f"v_mov_b32 v{vT1}, 0")
        for i in range(10):
            a(f"v_writelane_b32 v{vT1}, s{48+2*i}, {i}")
        a(f"v_writelane_b32 v{vT1}, s{sCap}, 11")
        a(f"v_writelane_b32 v{vT1}, s71, 12")
        a(f"v_writelane_b32 v{vT1}, s46, 14")
        a(f"v_writelane_b32 v{vT1}, s47, 15")
        a(f"s_lshl_b32 s46, s2, 2")
        a(f"s_add_u32 s46, s46, s{sW}")
        a(f"s_lshl_b32 s46, s46, 6")
        a(f"s_add_u32 s46, s46, 0x100000")
        a(f"v_lshlrev_b32 v{vT0}, 2, v0")
        a(f"v_add_u32 v{vT0}, s46, v{vT0}")
        a("s_mov_b64 exec, 0xffff")
        a(f"global_store_dword v{vT0}, v{vT1}, s[14:15]")
    if amp:
        a.c("diagnostic only: workgroup 0 waits for all heads, then holds for amp x elapsed")
        a(f"s_or_b32 s44, s2, s{sW}")
        a("s_cmp_lg_u32 s44, 0")
        a("s_cbranch_scc1 L_end")
        a("s_mov_b64 exec, 1")
        a(f"v_mov_b32 v{vT0}, 128")
        a("s_mov_b32 s44, 200000")
        a.label("L_apoll")
        a(f"global_load_dword v{vT1}, v{vT0}, s[12:13] sc1")
        a("s_waitcnt vmcnt(0)")
        a(f"v_readfirstlane_b32 s45, v{vT1}")
        a("s_lshr_b32 s45, s45, 16")
        a("s_sub_u32 s44, s44, 1")
        a("s_cmp_eq_u32 s44, 0")
        a("s_cbranch_scc1 L_end")
        a("s_cmp_lt_u32 s45, 32")
        a("s_cbranch_scc1 L_apoll")
        a("s_memrealtime s[42:43]")
        a("s_waitcnt lgkmcnt(0)")
        a("s_sub_u32 s44, s42, s40")
        a("s_min_u32 s44, s44, 20000")
        if amp > 0:
            a(f"s_mul_i32 s44, s44, {amp}")
        else:
            a("s_getreg_b32 s44, hwreg(HW_REG_XCC_ID, 0, 4)")
            a("s_mul_i32 s44, s44, 10000")
        a("s_add_u32 s40, s42, s44")
        a.label("L_spin")
        a("s_memrealtime s[42:43]")
        a("s_waitcnt lgkmcnt(0)")
        a("s_sub_u32 s42, s42, s40")
        a("s_cmp_lt_i32 s42, 0")
        a("s_cbranch_scc1 L_spin")
    a.label("L_end")
    a("s_endpgm")
    if tl:
        i = next(k for k, ln in enumerate(a.lines) if "s_memrealtime s[48:49]" in ln)
        a.lines.insert(i, "    s_mov_b32 s71, 0")

    lds = NW * 512 + NW * 8
    out = HEADER
    out += f"; @launch grid=({NWG},1,1) block=({NW*64},1,1) lds={lds}\n"
    out += '.amdgcn_target "amdgcn-amd-amdhsa--gfx950"\n.text\n'
    out += f".globl {NAME}\n.p2align 8\n.type {NAME},@function\n{NAME}:\n"
    out += "\n".join(a.lines) + "\n"
    acc = (nv + 3) // 4 * 4
    out += f""".section .rodata,"a"
.p2align 6
.amdhsa_kernel {NAME}
  .amdhsa_next_free_vgpr {nv}
  .amdhsa_next_free_sgpr {96 if kpat else (72 if tl else 48)}
  .amdhsa_accum_offset {acc}
  .amdhsa_group_segment_fixed_size 0
  .amdhsa_kernarg_size 48
  .amdhsa_user_sgpr_count 2
  .amdhsa_user_sgpr_kernarg_segment_ptr 1
  .amdhsa_system_sgpr_workgroup_id_x 1
  .amdhsa_float_denorm_mode_32 3
.end_amdhsa_kernel
"""
    return out


if __name__ == "__main__":
    p = argparse.ArgumentParser()
    p.add_argument("-o", required=True)
    for k, d in DEFAULTS.items():
        p.add_argument("--" + k, type=type(d), default=d)
    args = vars(p.parse_args())
    fn = args.pop("o")
    open(fn, "w").write(gen(**args))
```

```python
import argparse
import math
from gen1 import HEADER, NAME, Asm, f2u

G1 = "j0^w0^t3 w1 j2^t0 j2 t1 j0 t2 j4 t3 j3 x1 x2 x0 j1"
DEFAULTS = dict(R=4, R2=0, pol="nt", pat=G1, kvmode=0, tl=0, amp=0, pf=1, wld=1, clr=6, flg=12, chk=22,
                chkmode=0, spec=1, forceslow=0, qpos=1, fine=1, kpat=0, cap=0x1000000, psel=0, iodfix=0, xrot=0, pst=0, tpad=0, kpad=0)

NW, S, T = 4, 8, 16
NWG = 256
NAMES = ["x0", "x1", "x2", "j0", "j1", "j2", "j3", "j4", "w0", "w1", "t0", "t1", "t2", "t3"]


def rank(ms):
    ms = list(ms)
    r = 0
    for bit in range(14):
        pv = next((m for m in ms if m >> bit & 1), None)
        if pv is None:
            continue
        ms.remove(pv)
        ms = [m ^ pv if m >> bit & 1 else m for m in ms]
        r += 1
    return r


def columns(pat):
    rows = []
    for tm in pat.replace(",", " ").split()[:14]:
        m = 0
        for n in tm.split("^"):
            m ^= 1 << NAMES.index(n)
        rows.append(m)
    assert rank(rows) == 14 and not any(m >> 8 for m in rows[9:])
    sp = []
    for bit in range(8):
        if rank(rows[9:] + sp + [1 << bit]) == 5 + len(sp) + 1:
            sp.append(1 << bit)
    rows += sp
    return [sum(((rows[pos] >> i) & 1) << pos for pos in range(17)) for i in range(14)]


def gen(**kw):
    o = dict(DEFAULTS)
    o.update(kw)
    tl, amp, kvmode, kpat = o["tl"], o["amp"], o["kvmode"], o["kpat"]
    pol = (" " + o["pol"]) if o["pol"] else ""
    col = columns(o["pat"])
    assert o["flg"] >= o["clr"] + max(o["R"], o["R2"]) + 1 and o["chk"] > o["flg"]
    SLOW = 0x40000
    Rmax = max(o["R"], o["R2"])
    a = Asm()
    vK, vV, vT0, vT1, vC, vM, vL = 1, 2, 3, 4, 5, 6, 7
    vD, vO, vMask, vA = 8, 12, 16, 20
    vS = 36
    vQ = 52
    vQM, vQL = 68, 69
    vQA, vQB, vQC, vQS = 70, 71, 72, 73
    vLA, vTS, vX, vQD = 74, 75, 76, 77
    vRing = 80
    nv = vRing + 16 * Rmax
    assert nv <= 256
    sW, sHead, sSplit, sBase, sOut = 16, 17, 18, 19, 20
    sMc = 22
    sHB, sSlot, sDbg = 24, 25, 26
    sRole = 28
    sMine, sDone, sCap, sChk = 30, 31, 32, 33
    sOwn = 34

    def tstamp(i):
        if tl:
            a(f"s_memrealtime s[{48+2*i}:{49+2*i}]")

    def tmask(i):
        m = 0
        for b in range(4):
            if i >> b & 1:
                m ^= col[10 + b]
        return m << 12

    kstep, vstep = (1024, 256) if kvmode == 0 else (256, 1024)

    a(f"s_cmpk_ge_u32 s2, {NWG}")
    a("s_cbranch_scc1 L_end")
    a("s_load_dwordx8 s[4:11], s[0:1], 0")
    a("s_load_dwordx4 s[12:15], s[0:1], 32")
    if kpat:
        a("s_load_dwordx16 s[76:91], s[0:1], 48")
    if amp:
        a("s_memrealtime s[40:41]")
    if tl:
        for i in range(1, 10):
            a(f"s_mov_b32 s{48+2*i}, 0")
        a(f"s_mov_b32 s{sCap}, 0")
    tstamp(0)
    a(f"v_lshrrev_b32 v{vT0}, 6, v0")
    if o["pf"]:
        a.c("pull the kernel's own code into L2 while the kernel arguments are on their way")
        a("s_getpc_b64 s[22:23]")
        a(f"v_lshlrev_b32 v{vT1}, 7, v0")
        a(f"v_min_u32 v{vT1}, L_end-.-64, v{vT1}")
        a.vmem(f"global_load_dword v{vC}, v{vT1}, s[22:23]", "pf")
    else:
        a("s_nop 0")
    a(f"v_readfirstlane_b32 s{sW}, v{vT0}")
    a(f"v_and_b32 v0, 63, v0")
    a.c("(workgroup, wave) -> first tile, head and split: an xor-linear map of the id bits")
    a(f"s_lshl_b32 s21, s{sW}, 8")
    if o["xrot"]:
        a(f"s_add_u32 s3, s2, {o['xrot']}")
        a("s_and_b32 s3, s3, 7")
        a("s_and_b32 s23, s2, 0xf8")
        a("s_or_b32 s23, s23, s3")
        a(f"s_or_b32 s21, s21, s23")
    else:
        a(f"s_or_b32 s21, s21, s2")
    if kpat:
        a("s_waitcnt lgkmcnt(0)")
    for b in range(10):
        src = f"s{76+b}" if kpat else str(col[b])
        a(f"s_bitcmp1_b32 s21, {b}")
        if b == 0:
            a(f"s_cselect_b32 s{sBase}, {src}, 0")
        else:
            a(f"s_cselect_b32 s3, {src}, 0")
            a(f"s_xor_b32 s{sBase}, s{sBase}, s3")
    if o["iodfix"]:
        a.c("order of this wave's own tiles follows the die it really runs on (speed only)")
        a("s_getreg_b32 s3, hwreg(HW_REG_XCC_ID, 0, 4)")
        a("s_xor_b32 s3, s3, s21")
        a("s_bitcmp1_b32 s3, 2")
        a(f"s_cselect_b32 s3, {col[13]}, 0")
        a(f"s_xor_b32 s{sBase}, s{sBase}, s3")
    if kpat:
        for b in range(4):
            a(f"s_and_b32 s{86+b}, s{86+b}, 0x1ff000")
    a(f"s_bfe_u32 s{sSplit}, s{sBase}, 0x3000e")
    a(f"s_bfe_u32 s{sHead}, s{sBase}, 0x50009")
    a(f"s_and_b32 s{sBase}, s{sBase}, 0x3fff")
    a(f"s_lshl_b32 s{sBase}, s{sBase}, 12")
    a.c("lane patterns: lane = (g, a, b) for K and q, (g, c) for V")
    a(f"v_and_b32 v{vT1}, 3, v0")
    a(f"v_lshlrev_b32 v{vT1}, 4, v{vT1}")
    a(f"v_and_b32 v{vM}, 48, v0")
    a(f"v_lshl_add_u32 v{vT1}, v{vM}, 2, v{vT1}")
    a(f"v_and_b32 v{vL}, 12, v0")
    a(f"v_lshlrev_b32 v{vL}, {6 if kvmode == 0 else 8}, v{vL}")
    a(f"v_add3_u32 v{vK}, v{vL}, v{vT1}, s{sBase}")
    a(f"s_lshl_b32 s{sOut}, s{sHead}, 8")
    a(f"v_add_u32 v{vT1}, s{sOut}, v{vT1}")
    if o["R2"]:
        if o["psel"] == 0:
            a("s_bitcmp1_b32 s2, 0")
        else:
            a("s_getreg_b32 s3, hwreg(HW_REG_XCC_ID, 0, 4)")
            a("s_bitcmp1_b32 s3, 0")
    if o["pst"]:
        tstamp(2)
    a("s_waitcnt lgkmcnt(0)")
    tstamp(1)
    if o["R2"]:
        a("s_cbranch_scc1 L_body1")
    vm0 = list(a.vm)

    def poll_issue():
        a(f"global_load_dwordx2 v[{vQM}:{vQL}], v{vQC}, s[14:15] sc1")
        for w in range(1, S):
            a(f"global_load_dwordx2 v[{vQ+2*w}:{vQ+2*w+1}], v{vQA}, s[14:15] offset:{w * 512} sc1")

    def body(R, sfx):
        a.vm = list(vm0)

        def slot(n):
            return vRing + 16 * (n % R)

        def issue_tile(n):
            isK = n < T
            i = n if isK else n - T
            va, base, step = (vK, "s[6:7]", kstep) if isK else (vV, "s[8:9]", vstep)
            if i > 0:
                if kpat:
                    a(f"v_xor_b32 v{va}, s{86 + (i ^ (i - 1)).bit_length() - 1}, v{va}")
                else:
                    a(f"v_xor_b32 v{va}, {tmask(i) ^ tmask(i - 1)}, v{va}")
            r = slot(n)
            for t in range(4):
                off = f" offset:{t*step}" if t else ""
                a.vmem(f"global_load_dwordx4 v[{r+4*t}:{r+4*t+3}], v{va}, {base}{off}{pol}", ("t", n, t))
            return 4 + (1 if i > 0 else 0)

        def side_work(n):
            st = 0
            if n == o["wld"]:
                a(f"s_cmp_lg_u32 s{sRole}, 0")
                a(f"s_cbranch_scc1 L_nowld{sfx}")
                a.c("collector: bring the hand-off lines into its L2 (values unused)")
                a(f"global_load_dword v{vX}, v{vX}, s[14:15] sc1")
                a.label(f"L_nowld{sfx}")
                st += 2
            if n == o["clr"]:
                a(f"s_cmp_lg_u32 s{sRole}, 0")
                a(f"s_cbranch_scc1 L_noclr{sfx}")
                a.c("collector: mark all hand-off words of this head as empty")
                for k in range(4):
                    a(f"global_store_dwordx4 v{vQB}, v[{vQ}:{vQ+3}], s[14:15] offset:{k*1024}")
                a(f"global_store_dwordx2 v{vQC}, v[{vQ}:{vQ+1}], s[14:15]")
                a.label(f"L_noclr{sfx}")
                st += 2
            if n == o["flg"]:
                a(f"s_cmp_lg_u32 s{sRole}, 0")
                a(f"s_cbranch_scc1 L_noflg{sfx}")
                a.c("collector: the marks are in place; tell the other seven which die collects")
                a(f"v_mov_b32 v{vQ}, s{sDbg}")
                a(f"v_mov_b32 v{vQ+1}, s{sMine}")
                a("s_mov_b64 exec, 1")
                a(f"global_store_dword v{vQ}, v{vQ+1}, s[12:13]")
                a("s_mov_b64 exec, -1")
                a.label(f"L_noflg{sfx}")
                st += 2
            if n == o["chk"]:
                a(f"s_cmp_lg_u32 s{sW}, 0")
                a(f"s_cbranch_scc1 L_nochk{sfx}")
                a(f"s_load_dword s{sChk}, s[12:13], s{sDbg}" + (" glc" if o["chkmode"] else ""))
                a.label(f"L_nochk{sfx}")
                st += 2
            return st

        for n in range(R):
            issue_tile(n)
            if n + 1 == o["qpos"] or (n == 0 and o["qpos"] == 0):
                a.vmem(f"global_load_dwordx4 v[{vD}:{vD+3}], v{vT1}, s[4:5]", "q")
        if not o["pst"]:
            tstamp(2)
        if kvmode == 0:
            a(f"v_and_b32 v{vL}, 15, v0")
            a(f"v_lshlrev_b32 v{vL}, 4, v{vL}")
            a(f"v_lshl_add_u32 v{vV}, v{vM}, 6, v{vL}")
            a(f"v_add_u32 v{vV}, s{sBase}, v{vV}")
        else:
            a(f"v_lshl_add_u32 v{vV}, v0, 4, s{sBase}")
        a.c("hand-off addresses and constants")
        a(f"s_lshl_b32 s{sHB}, s{sHead}, 13")
        a(f"s_lshl_b32 s{sSlot}, s{sSplit}, 9")
        a(f"s_add_u32 s{sSlot}, s{sSlot}, s{sHB}")
        a(f"s_lshl_b32 s{sDbg}, s{sHead}, 2")
        a(f"s_or_b32 s{sRole}, s{sSplit}, s{sW}")
        a(f"s_getreg_b32 s{sMine}, hwreg(HW_REG_XCC_ID, 0, 4)")
        a(f"s_or_b32 s{sMine}, s{sMine}, 0x100")
        a(f"s_mov_b32 s{sChk}, 0")
        a(f"s_mov_b32 s{sOwn}, 0x01010101")
        a(f"s_mov_b32 s{sOwn+1}, s{sOwn}")
        a(f"v_lshl_add_u32 v{vQS}, v0, 3, s{sSlot}")
        a(f"v_min_u32 v{vX}, 32, v0")
        a(f"v_lshl_add_u32 v{vX}, v{vX}, 7, s{sHB}")
        a(f"v_lshl_add_u32 v{vQA}, v0, 3, s{sHB}")
        a(f"v_lshl_add_u32 v{vQB}, v0, 4, s{sHB}")
        a(f"s_add_u32 s3, s{sHB}, 4096")
        a(f"v_and_b32 v{vQC}, 7, v0")
        a(f"v_lshl_add_u32 v{vQC}, v{vQC}, 3, s3")
        a(f"s_lshl_b32 s21, s{sSplit}, 3")
        a(f"s_add_u32 s21, s21, s3")
        a(f"v_mov_b32 v{vQD}, s21")
        for k in range(4):
            a(f"v_mov_b32 v{vQ+k}, -1")
        a.c("LDS address of this wave's partial: w*512 + c*32 + (g&1)*16")
        a(f"v_and_b32 v{vT0}, 15, v0")
        a(f"v_lshlrev_b32 v{vT0}, 5, v{vT0}")
        a(f"v_and_b32 v{vLA}, 16, v0")
        a(f"s_lshl_b32 s3, s{sW}, 9")
        a(f"v_add3_u32 v{vLA}, v{vT0}, v{vLA}, s3")
        a.c("half-word masks that place p on the diagonal of the P operand")
        a(f"v_and_b32 v{vT0}, 1, v0")
        a(f"v_lshlrev_b32 v{vT0}, 4, v{vT0}")
        a(f"s_mov_b32 s3, 0xffff")
        a(f"v_lshlrev_b32 v{vT0}, v{vT0}, s3")
        a(f"s_mov_b32 vcc_lo, 0x03030303")
        a(f"s_mov_b32 vcc_hi, vcc_lo")
        for i in range(4):
            a(f"v_cndmask_b32 v{vMask+i}, 0, v{vT0}, vcc")
            if i < 3:
                a(f"s_lshl_b64 vcc, vcc, 2")
        a(f"s_mov_b32 vcc_lo, 0x000f000f")
        a(f"s_mov_b32 vcc_hi, vcc_lo")
        a.wait_tag("q")
        cval = math.log2(math.e) / math.sqrt(128.0)
        a(f"v_mov_b32 v{vC}, 0x{f2u(cval):08x}")
        a.c("q operand t is q in rows 4t..4t+3 and zero elsewhere")
        for t in range(4):
            for i in range(4):
                a(f"v_cndmask_b32 v{vA+4*t+i}, 0, v{vD+i}, vcc")
            if t < 3:
                a(f"s_lshl_b64 vcc, vcc, 4")

        def wait_tile(n, t=3):
            if any(x == ("t", n, t) for x in a.vm):
                a.wait_tag(("t", n, t))
                return 1
            return 0

        for n in range(T):
            a.c(f"K tile {n}")
            w = wait_tile(n)
            if n == 0:
                a("s_nop 0" if w else "s_nop 1")
                tstamp(3)
            r = slot(n)
            for t in range(4):
                cin = "0" if t == 0 else f"v[{vD}:{vD+3}]"
                a(f"v_mfma_f32_16x16x32_bf16 v[{vD}:{vD+3}], v[{vA+4*t}:{vA+4*t+3}], v[{r+4*t}:{r+4*t+3}], {cin}")
            st = issue_tile(n + R)
            st += side_work(n)
            if st < 8:
                a(f"s_nop {8 - st - 1}")
            s = vS + n
            a(f"v_mov_b32_dpp v{s}, v{vD} quad_perm:[0,0,0,0] row_mask:0xf bank_mask:0xf")
            for b in range(1, 4):
                a(f"v_add_f32_dpp v{s}, v{vD+b}, v{s} quad_perm:[{b},{b},{b},{b}] row_mask:0xf bank_mask:0xf")
            if n == 1:
                a(f"v_max_f32 v{vM}, v{vS}, v{vS+1}")
            elif n > 1 and n % 2 == 1:
                a(f"v_max3_f32 v{vM}, v{vM}, v{s-1}, v{s}")
        a.c("true maximum of this wave's scores")
        tstamp(4)
        red = ("row_ror:4 row_mask:0xf", "row_ror:8 row_mask:0xf", "row_bcast:15 row_mask:0xa", "row_bcast:31 row_mask:0xc")
        for ctl in red:
            a("s_nop 1")
            a(f"v_max_f32_dpp v{vM}, v{vM}, v{vM} {ctl} bank_mask:0xf")
        a(f"v_mul_f32 v{vM}, v{vC}, v{vM}")
        a("s_nop 0")
        a(f"v_readlane_b32 s{sMc}, v{vM}, 63")
        a("s_nop 1")
        for n in range(T):
            a(f"v_fma_f32 v{vS+n}, v{vS+n}, v{vC}, -s{sMc}")
        for n in range(T):
            a(f"v_exp_f32 v{vS+n}, v{vS+n}")
        a(f"v_mov_b32 v{vM}, s{sMc}")
        a(f"v_add_f32 v{vL}, v{vS}, v{vS+1}")
        for n in range(2, T):
            a(f"v_add_f32 v{vL}, v{vL}, v{vS+n}")
        for n in range(T):
            a(f"v_cvt_pk_bf16_f32 v{vS+n}, v{vS+n}, v{vS+n}")
        for ctl in red:
            a(f"v_add_f32_dpp v{vL}, v{vL}, v{vL} {ctl} bank_mask:0xf")
            a("s_nop 1")
        a(f"s_lshl_b32 s3, s{sW}, 3")
        a(f"v_mov_b32 v{vT0}, s3")
        a(f"s_brev_b64 exec, 1")
        a(f"ds_write_b64 v{vT0}, v[{vM}:{vL}] offset:{NW*512}")
        a(f"s_mov_b64 exec, -1")
        for i in range(T):
            n = T + i
            a.c(f"V tile {i}")
            for u in range(4):
                for j in range(4):
                    a(f"v_and_b32_dpp v{vA+4*u+j}, v{vS+i}, v{vMask+j} row_newbcast:{4*u} row_mask:0xf bank_mask:0xf")
            fine = o["fine"] and i == T - 1
            if not fine:
                wait_tile(n)
                a("s_nop 0")
            r = slot(n)
            for u in range(4):
                if fine:
                    wait_tile(n, u)
                    if u == 0:
                        a("s_nop 0")
                cin = "0" if (i == 0 and u == 0) else f"v[{vO}:{vO+3}]"
                a(f"v_mfma_f32_16x16x32_bf16 v[{vO}:{vO+3}], v[{vA+4*u}:{vA+4*u+3}], v[{r+4*u}:{r+4*u+3}], {cin}")
            if n + R < 2 * T:
                issue_tile(n + R)
            side_work(n)

    body(o["R"], "a")
    if o["R2"]:
        a("s_branch L_join")
        a.label("L_body1")
        body(o["R2"], "b")
        a.label("L_join")
    a.vm = []
    if o["spec"]:
        a(f"s_cmp_lg_u32 s{sRole}, 0")
        a("s_cbranch_scc1 L_nospec")
        poll_issue()
        a.label("L_nospec")
        a("s_nop 5")
    else:
        a("s_nop 7")
    tstamp(5)
    a(f"ds_write_b128 v{vLA}, v[{vO}:{vO+3}]")
    a(f"v_and_b32 v{vT0}, {NW-1}, v0")
    a(f"v_lshlrev_b32 v{vT0}, 3, v{vT0}")
    a(f"v_lshlrev_b32 v{vK}, 3, v0")
    a(f"s_cmp_lg_u32 s{sW}, 0")
    a("s_waitcnt lgkmcnt(0)")
    a("s_barrier")
    tstamp(6)
    a("s_cbranch_scc1 L_fin")

    def combine(n, vP, m, l, waitfn):
        lg = int(math.log2(n))
        waitfn("ml")
        a(f"v_max_f32_dpp v{vT0}, v{m}, v{m} row_ror:1 row_mask:0xf bank_mask:0xf")
        for k in range(1, lg):
            a("s_nop 1")
            a(f"v_max_f32_dpp v{vT0}, v{vT0}, v{vT0} row_ror:{1<<k} row_mask:0xf bank_mask:0xf")
        a(f"v_sub_f32 v{vT1}, v{m}, v{vT0}")
        a(f"v_exp_f32 v{vT1}, v{vT1}")
        a(f"v_mov_b32 v{vM}, v{vT0}")
        a(f"v_mul_f32 v{vL}, v{l}, v{vT1}")
        waitfn("o")
        for w in range(n):
            op = "v_mul_f32_dpp" if w == 0 else "v_fmac_f32_dpp"
            for h in range(2):
                a(f"{op} v{vO+h}, v{vT1}, v{vP+2*w+h} row_newbcast:{w} row_mask:0xf bank_mask:0xf")
            if w < lg:
                a(f"v_add_f32_dpp v{vL}, v{vL}, v{vL} row_ror:{1<<w} row_mask:0xf bank_mask:0xf")

    a.c("wave 0 merges the four waves' partials")
    a(f"ds_read_b64 v[{vM}:{vL}], v{vT0} offset:{NW*512}")
    for w in range(NW):
        a(f"ds_read_b64 v[{vRing+2*w}:{vRing+2*w+1}], v{vK} offset:{w*512}")

    def ldswait(which):
        a(f"s_waitcnt lgkmcnt({NW if which == 'ml' and not tl else 0})")
    combine(NW, vRing, vM, vL, ldswait)
    a(f"s_cmp_eq_u32 s{sRole}, 0")
    for r in (vO, vO + 1, vM, vL):
        a(f"v_min_u32 v{r}, -2, v{r}")
    a("s_cbranch_scc1 L_collect")
    if o["forceslow"] == 1:
        a(f"s_mov_b32 s{sChk}, 0")
    elif o["forceslow"] == 2:
        a(f"s_bitcmp1_b32 s{sSplit}, 0")
        a(f"s_cselect_b32 s{sChk}, 0, s{sChk}")
    a(f"s_cmp_lg_u32 s{sChk}, s{sMine}")
    a("s_cbranch_scc1 L_slowput")
    a.c("the collector runs on this die and has marked the slot: plain stores meet it in the shared L2")
    a(f"global_store_dwordx2 v{vQS}, v[{vO}:{vO+1}], s[14:15]")
    a("s_mov_b64 exec, 1")
    a(f"global_store_dwordx2 v{vQD}, v[{vM}:{vL}], s[14:15]")
    tstamp(7)
    a("s_branch L_fin" if (tl or amp) else "s_endpgm")
    a.label("L_collect")
    tstamp(7)
    a(f"s_mov_b32 s{sCap}, {o['cap']}")
    a(f"s_mov_b32 s{sDone}, 0")
    a(f"v_mov_b32 v{vQ}, v{vO}")
    a(f"v_mov_b32 v{vQ+1}, v{vO+1}")
    if o["spec"]:
        a("s_branch L_check")
    a.label("L_poll")
    poll_issue()
    a.label("L_check")
    a("s_waitcnt vmcnt(7)")
    a(f"v_cndmask_b32 v{vQM}, v{vQM}, v{vM}, s[{sOwn}:{sOwn+1}]")
    a(f"v_cndmask_b32 v{vQL}, v{vQL}, v{vL}, s[{sOwn}:{sOwn+1}]")
    a(f"v_max_u32 v{vT0}, v{vQM}, v{vQL}")
    for w in range(1, S):
        a(f"s_waitcnt vmcnt({S-1-w})")
        a(f"v_max3_u32 v{vT0}, v{vT0}, v{vQ+2*w}, v{vQ+2*w+1}")
    a(f"v_cmp_eq_u32 vcc, -1, v{vT0}")
    a("s_cbranch_vccz L_ready")
    a(f"s_sub_u32 s{sCap}, s{sCap}, 1")
    a(f"s_and_b32 s3, s{sCap}, 7")
    a(f"s_cselect_b32 s3, s{sDone}, 1")
    a(f"s_cmp_eq_u32 s3, 0")
    a("s_cbranch_scc1 L_poll")
    a("s_branch L_slowpoll")
    a.label("L_ready")
    tstamp(8)
    combine(S, vQ, vQM, vQL, lambda which: a("s_nop 0") if which == "o" else None)
    a(f"v_rcp_f32 v{vL}, v{vL}")
    a(f"v_lshl_add_u32 v{vT0}, v0, 2, s{sOut}")
    a(f"v_mul_f32 v{vO}, v{vO}, v{vL}")
    a(f"v_mul_f32 v{vO+1}, v{vO+1}, v{vL}")
    a(f"v_cvt_pk_bf16_f32 v{vO}, v{vO}, v{vO+1}")
    a(f"global_store_dword v{vT0}, v{vO}, s[10:11]")
    if tl:
        a("s_waitcnt vmcnt(0)")
        tstamp(9)
    if amp:
        a("s_waitcnt vmcnt(0)")
        a(f"v_mov_b32 v{vT0}, 128")
        a(f"v_mov_b32 v{vT1}, 0x10000")
        a("s_mov_b64 exec, 1")
        a(f"global_atomic_add v{vT0}, v{vT1}, s[12:13]")
    a("s_branch L_fin" if (tl or amp) else "s_endpgm")
    a.label("L_slowput")
    a.c("collector on another die, or not announced yet: write through to the second slot set, then flag this split as done")
    a(f"v_add_u32 v{vQS}, {SLOW}, v{vQS}")
    a(f"s_lshl_b32 s3, s{sSplit}, 8")
    a(f"s_add_u32 s3, s3, s{sHB}")
    a(f"s_add_u32 s3, s3, {SLOW + 4096}")
    a(f"v_mov_b32 v{vQD}, s3")
    a(f"global_store_dwordx2 v{vQS}, v[{vO}:{vO+1}], s[14:15] sc1")
    a("s_mov_b64 exec, 1")
    a(f"global_store_dwordx2 v{vQD}, v[{vM}:{vL}], s[14:15] sc1")
    a(f"s_lshl_b32 s3, 1, s{sSplit}")
    a(f"v_mov_b32 v{vT0}, s{sDbg}")
    a(f"v_mov_b32 v{vT1}, s3")
    a("s_waitcnt vmcnt(0)")
    a(f"global_atomic_or v{vT0}, v{vT1}, s[12:13] offset:128")
    if tl:
        a(f"s_mov_b32 s{sCap}, 0")
        a(f"s_mov_b32 s71, 100")
    a("s_branch L_fin" if (tl or amp) else "s_endpgm")
    a.label("L_slowpoll")
    a.c("collector: look for splits that used the second slot set")
    a(f"s_cmp_eq_u32 s{sCap}, 0")
    a("s_cbranch_scc1 L_fin")
    a(f"v_mov_b32 v{vT0}, s{sDbg}")
    a(f"global_load_dword v{vT1}, v{vT0}, s[12:13] offset:128 sc1")
    a(f"v_and_b32 v{vT0}, 7, v0")
    a("s_waitcnt vmcnt(0)")
    a(f"v_readfirstlane_b32 s{sDone}, v{vT1}")
    a(f"v_lshrrev_b32 v{vT1}, v{vT0}, v{vT1}")
    a(f"v_and_b32 v{vT1}, 1, v{vT1}")
    a(f"v_cmp_eq_u32 vcc, 1, v{vT1}")
    a(f"s_add_u32 s3, s{sHB}, {SLOW + 4096}")
    a(f"v_lshl_add_u32 v{vT0}, v{vT0}, 8, s3")
    a(f"s_and_b32 s{sDone}, s{sDone}, 0xff")
    a(f"v_cndmask_b32 v{vT1}, v{vQC}, v{vT0}, vcc")
    a(f"global_load_dwordx2 v[{vQM}:{vQL}], v{vT1}, s[14:15] sc1")
    for w in range(1, S):
        a(f"s_bitcmp1_b32 s{sDone}, {w}")
        a(f"s_cselect_b32 s3, {SLOW}, 0")
        a(f"v_add_u32 v{vT1}, s3, v{vQA}")
        a(f"global_load_dwordx2 v[{vQ+2*w}:{vQ+2*w+1}], v{vT1}, s[14:15] offset:{w * 512} sc1")
    a("s_branch L_check")
    a.label("L_fin")
    if tl:
        a("s_mov_b64 exec, -1")
        a("s_getreg_b32 s46, hwreg(HW_REG_XCC_ID)")
        a("s_getreg_b32 s47, hwreg(HW_REG_HW_ID)")
        a("s_waitcnt lgkmcnt(0)")
        a(f"v_mov_b32 v{vT1}, 0")
        for i in range(10):
            a(f"v_writelane_b32 v{vT1}, s{48+2*i}, {i}")
        a(f"v_writelane_b32 v{vT1}, s{sCap}, 11")
        a(f"v_writelane_b32 v{vT1}, s71, 12")
        a(f"v_writelane_b32 v{vT1}, s46, 14")
        a(f"v_writelane_b32 v{vT1}, s47, 15")
        a(f"s_lshl_b32 s46, s2, 2")
        a(f"s_add_u32 s46, s46, s{sW}")
        a(f"s_lshl_b32 s46, s46, 6")
        a(f"s_add_u32 s46, s46, 0x100000")
        a(f"v_lshlrev_b32 v{vT0}, 2, v0")
        a(f"v_add_u32 v{vT0}, s46, v{vT0}")
        a("s_mov_b64 exec, 0xffff")
        a(f"global_store_dword v{vT0}, v{vT1}, s[14:15]")
    if amp:
        if amp == -2:
            a(f"s_xor_b32 s44, s2, 4")
            a(f"s_or_b32 s44, s44, s{sW}")
            a("s_cmp_lg_u32 s44, 0")
            a("s_cbranch_scc1 L_not4")
            a("s_mov_b64 exec, 1")
            a(f"v_mov_b32 v{vT0}, 0x300000")
            a(f"v_mov_b32 v{vT1}, s40")
            a(f"global_store_dword v{vT0}, v{vT1}, s[14:15] sc1")
            a.label("L_not4")
        a.c("diagnostic only: workgroup 0 waits for all heads, then holds for amp x elapsed")
        a(f"s_or_b32 s44, s2, s{sW}")
        a("s_cmp_lg_u32 s44, 0")
        a("s_cbranch_scc1 L_end")
        a("s_mov_b64 exec, 1")
        a(f"v_mov_b32 v{vT0}, 128")
        a("s_mov_b32 s44, 200000")
        a.label("L_apoll")
        a(f"global_load_dword v{vT1}, v{vT0}, s[12:13] sc1")
        a("s_waitcnt vmcnt(0)")
        a(f"v_readfirstlane_b32 s45, v{vT1}")
        a("s_lshr_b32 s45, s45, 16")
        a("s_sub_u32 s44, s44, 1")
        a("s_cmp_eq_u32 s44, 0")
        a("s_cbranch_scc1 L_end")
        a("s_cmp_lt_u32 s45, 32")
        a("s_cbranch_scc1 L_apoll")
        a("s_memrealtime s[42:43]")
        a("s_waitcnt lgkmcnt(0)")
        a("s_sub_u32 s44, s42, s40")
        a("s_min_u32 s44, s44, 20000")
        if amp > 0:
            a(f"s_mul_i32 s44, s44, {amp}")
        elif amp == -2:
            a("s_add_u32 s44, s42, 300")
            a.label("L_w3")
            a("s_memrealtime s[42:43]")
            a("s_waitcnt lgkmcnt(0)")
            a("s_sub_u32 s45, s42, s44")
            a("s_cmp_lt_i32 s45, 0")
            a("s_cbranch_scc1 L_w3")
            a(f"v_mov_b32 v{vT0}, 0x300000")
            a(f"global_load_dword v{vT1}, v{vT0}, s[14:15] sc1")
            a("s_waitcnt vmcnt(0)")
            a(f"v_readfirstlane_b32 s44, v{vT1}")
            a("s_sub_u32 s44, s44, s40")
            a("s_add_u32 s44, s44, 50")
            a("s_min_u32 s44, s44, 200")
            a("s_mul_i32 s44, s44, 500")
        else:
            a("s_getreg_b32 s44, hwreg(HW_REG_XCC_ID, 0, 4)")
            a("s_mul_i32 s44, s44, 10000")
        a("s_add_u32 s40, s42, s44")
        a.label("L_spin")
        a("s_memrealtime s[42:43]")
        a("s_waitcnt lgkmcnt(0)")
        a("s_sub_u32 s42, s42, s40")
        a("s_cmp_lt_i32 s42, 0")
        a("s_cbranch_scc1 L_spin")
    a.label("L_end")
    a("s_endpgm")
    if tl:
        i = next(k for k, ln in enumerate(a.lines) if "s_memrealtime s[48:49]" in ln)
        a.lines.insert(i, "    s_mov_b32 s71, 0")

    lds = NW * 512 + NW * 8
    out = HEADER
    out += f"; @launch grid=({NWG},1,1) block=({NW*64},1,1) lds={lds}\n"
    out += '.amdgcn_target "amdgcn-amd-amdhsa--gfx950"\n.text\n'
    if o["tpad"]:
        out += f".fill {o['tpad'] // 4}, 4, 0xbf800000\n"
    out += f".globl {NAME}\n.p2align 8\n.type {NAME},@function\n{NAME}:\n"
    out += "\n".join(a.lines) + "\n"
    acc = (nv + 3) // 4 * 4
    out += '.section .rodata,"a"\n'
    if o["kpad"]:
        out += f".fill {o['kpad'] // 4}, 4, 0\n"
    out += f""".p2align 6
.amdhsa_kernel {NAME}
  .amdhsa_next_free_vgpr {nv}
  .amdhsa_next_free_sgpr {96 if kpat else (72 if tl else 48)}
  .amdhsa_accum_offset {acc}
  .amdhsa_group_segment_fixed_size 0
  .amdhsa_kernarg_size 48
  .amdhsa_user_sgpr_count 2
  .amdhsa_user_sgpr_kernarg_segment_ptr 1
  .amdhsa_system_sgpr_workgroup_id_x 1
  .amdhsa_float_denorm_mode_32 3
.end_amdhsa_kernel
"""
    return out


if __name__ == "__main__":
    p = argparse.ArgumentParser()
    p.add_argument("-o", required=True)
    for k, d in DEFAULTS.items():
        p.add_argument("--" + k, type=type(d), default=d)
    args = vars(p.parse_args())
    fn = args.pop("o")
    open(fn, "w").write(gen(**args))
```

```python
import argparse
import math
from gen1 import HEADER, NAME, Asm, f2u

G1 = "j0^w0^t3 w1 j2^t0 j2 t1 j0 t2 j4 t3 j3 x1 x2 x0 j1"
DEFAULTS = dict(R=7, R2=0, R0=0, pol="nt", pat=G1, kvmode=0, tl=0, amp=0, pf=1, barA=0, prio=3, noclr=0, noflg=3, pre=8, pipe=0, ua=10, ub=11,
                chkmode=0, spec=1, forceslow=0, qpos=1, fine=1, kpat=0, cap=0x1000000, psel=0, iodfix=0, xrot=0, pst=0)

NW, S, T = 4, 8, 16
NWG = 256
NAMES = ["x0", "x1", "x2", "j0", "j1", "j2", "j3", "j4", "w0", "w1", "t0", "t1", "t2", "t3"]


def rank(ms):
    ms = list(ms)
    r = 0
    for bit in range(14):
        pv = next((m for m in ms if m >> bit & 1), None)
        if pv is None:
            continue
        ms.remove(pv)
        ms = [m ^ pv if m >> bit & 1 else m for m in ms]
        r += 1
    return r


def columns(pat, ua=10, ub=11):
    rows = []
    for tm in pat.replace(",", " ").split()[:14]:
        m = 0
        for n in tm.split("^"):
            m ^= 1 << NAMES.index(n)
        rows.append(m)
    assert rank(rows) == 14 and not any(m >> 8 for m in rows[9:])
    sp = []
    for bit in range(8):
        if rank(rows[9:] + sp + [1 << bit]) == 5 + len(sp) + 1:
            sp.append(1 << bit)
    rows += sp
    bits = [b - 10 for b in range(10, 26) if b not in (ua, ub)] + [16, 17, 18]
    return [sum(((rows[pos] >> i) & 1) << bits[pos] for pos in range(17)) for i in range(14)]


def gen(**kw):
    o = dict(DEFAULTS)
    o.update(kw)
    tl, amp, kvmode, kpat = o["tl"], o["amp"], o["kvmode"], o["kpat"]
    pol = (" " + o["pol"]) if o["pol"] else ""
    ua, ub = o["ua"], o["ub"]
    assert ua < ub < 21 and kvmode == 0
    col = columns(o["pat"], ua, ub)
    SLOW = 0x40000
    Rmax = max(o["R"], o["R2"])
    a = Asm()
    vK, vV, vT0, vT1, vC, vM, vL = 1, 2, 3, 4, 5, 6, 7
    vD, vO, vMask, vA = 8, 12, 16, 20
    vS = 36
    vQ = 52
    vQM, vQL = 68, 69
    vQA, vQB, vQC, vQS = 70, 71, 72, 73
    vLA, vTS, vX, vQD, vG = 74, 75, 76, 77, 78
    vRing = 80
    nv = max(vRing + 4 * max(Rmax, o['R0']), vRing + 32)
    assert nv <= 256
    sW, sHead, sSplit, sBase, sOut = 16, 17, 18, 19, 20
    sMc = 22
    sHB, sSlot, sDbg = 24, 25, 26
    sRole = 28
    sMine, sDone, sCap, sChk = 30, 31, 32, 33
    sOwn = 34

    def tstamp(i):
        if tl:
            a(f"s_memrealtime s[{48+2*i}:{49+2*i}]")

    def tmask(i):
        m = 0
        for b in range(4):
            if i >> b & 1:
                m ^= col[10 + b]
        return m << 10

    kstep, vstep = (1024, 256) if kvmode == 0 else (256, 1024)

    a(f"s_cmpk_ge_u32 s2, {NWG}")
    a("s_cbranch_scc1 L_end")
    a("s_load_dwordx8 s[4:11], s[0:1], 0")
    a("s_load_dwordx4 s[12:15], s[0:1], 32")
    if kpat:
        a("s_load_dwordx16 s[76:91], s[0:1], 48")
    if amp:
        a("s_memrealtime s[40:41]")
    if tl:
        for i in range(1, 10):
            a(f"s_mov_b32 s{48+2*i}, 0")
        a(f"s_mov_b32 s{sCap}, 0")
    tstamp(0)
    a(f"v_lshrrev_b32 v{vT0}, 6, v0")
    if o["pf"]:
        a.c("pull the kernel's own code into L2 while the kernel arguments are on their way")
        a("s_getpc_b64 s[22:23]")
        a(f"v_lshlrev_b32 v{vT1}, 7, v0")
        a(f"v_min_u32 v{vT1}, L_end-.-64, v{vT1}")
        a.vmem(f"global_load_dword v{vC}, v{vT1}, s[22:23]", "pf")
    else:
        a("s_nop 0")
    a(f"v_readfirstlane_b32 s{sW}, v{vT0}")
    a(f"v_and_b32 v0, 63, v0")
    a.c("(workgroup, wave) -> first tile, head and split: an xor-linear map of the id bits")
    a(f"s_lshl_b32 s21, s{sW}, 8")
    if o["xrot"]:
        a(f"s_add_u32 s3, s2, {o['xrot']}")
        a("s_and_b32 s3, s3, 7")
        a("s_and_b32 s23, s2, 0xf8")
        a("s_or_b32 s23, s23, s3")
        a(f"s_or_b32 s21, s21, s23")
    else:
        a(f"s_or_b32 s21, s21, s2")
    if kpat:
        a("s_waitcnt lgkmcnt(0)")
    for b in range(10):
        src = f"s{76+b}" if kpat else str(col[b])
        a(f"s_bitcmp1_b32 s21, {b}")
        if b == 0:
            a(f"s_cselect_b32 s{sBase}, {src}, 0")
        else:
            a(f"s_cselect_b32 s3, {src}, 0")
            a(f"s_xor_b32 s{sBase}, s{sBase}, s3")
    if o["iodfix"]:
        a.c("order of this wave's own tiles follows the die it really runs on (speed only)")
        a("s_getreg_b32 s3, hwreg(HW_REG_XCC_ID, 0, 4)")
        a("s_xor_b32 s3, s3, s21")
        a("s_bitcmp1_b32 s3, 2")
        a(f"s_cselect_b32 s3, {col[13]}, 0")
        a(f"s_xor_b32 s{sBase}, s{sBase}, s3")
    if kpat:
        for b in range(4):
            a(f"s_and_b32 s{86+b}, s{86+b}, {0x1ffc00 & ~((1 << ua) | (1 << ub))}")
    a(f"s_bfe_u32 s{sSplit}, s{sBase}, 0x30010")
    a(f"s_bfe_u32 s{sHead}, s{sBase}, 0x5000b")
    a(f"s_and_b32 s{sBase}, s{sBase}, {0xffff & ~((1 << (ua - 10)) | (1 << (ub - 10)))}")
    a(f"s_lshl_b32 s{sBase}, s{sBase}, 10")
    a(f"s_cmp_eq_u32 s{sW}, {NW}")
    a("s_cbranch_scc1 L_finisher")
    a.c("lane patterns: lane = (g, a, b) for K and q, (g, c) for V")
    a(f"v_and_b32 v{vT1}, 3, v0")
    a(f"v_lshlrev_b32 v{vT1}, 4, v{vT1}")
    a(f"v_and_b32 v{vM}, 48, v0")
    a(f"v_lshl_add_u32 v{vT1}, v{vM}, 2, v{vT1}")
    a(f"v_and_b32 v{vL}, 12, v0")
    a(f"v_lshlrev_b32 v{vL}, {6 if kvmode == 0 else 8}, v{vL}")
    a(f"v_add3_u32 v{vK}, v{vL}, v{vT1}, s{sBase}")
    a(f"s_lshl_b32 s{sOut}, s{sHead}, 8")
    a(f"v_add_u32 v{vT1}, s{sOut}, v{vT1}")
    if o["R2"]:
        if o["psel"] == 0:
            a("s_bitcmp1_b32 s2, 0")
        else:
            a("s_getreg_b32 s3, hwreg(HW_REG_XCC_ID, 0, 4)")
            a("s_bitcmp1_b32 s3, 0")
    if o["pst"]:
        tstamp(2)
    a("s_waitcnt lgkmcnt(0)")
    tstamp(1)
    if o["R2"]:
        a("s_cbranch_scc1 L_body1")
    vm0 = list(a.vm)

    def poll_issue():
        a(f"global_load_dwordx2 v[{vQM}:{vQL}], v{vQC}, s[14:15] sc1")
        for w in range(1, S):
            a(f"global_load_dwordx2 v[{vQ+2*w}:{vQ+2*w+1}], v{vQA}, s[14:15] offset:{w * 512} sc1")

    def body(R, sfx):
        a.vm = list(vm0)

        NS = max(R, o["R0"])

        def slot(k):
            return vRing + 4 * (k % NS)

        his = sorted({(((t & 1) << ua) + ((t >> 1) << ub)) & ~0xfff for t in range(4)} - {0})
        kb = {hi: 24 + 2 * i for i, hi in enumerate(his)}
        made = set()

        issued = [0]

        def issue_upto(kmax):
            cnt = 0
            while issued[0] < min(kmax, 8 * T):
                k = issued[0]
                n, t = divmod(k, 4)
                isK = n < T
                i = n if isK else n - T
                va = vK if isK else vV
                if t == 0 and i > 0:
                    if kpat:
                        a(f"v_xor_b32 v{va}, s{86 + (i ^ (i - 1)).bit_length() - 1}, v{va}")
                    else:
                        a(f"v_xor_b32 v{va}, {tmask(i) ^ tmask(i - 1)}, v{va}")
                    cnt += 1
                if isK:
                    d = ((t & 1) << ua) + ((t >> 1) << ub)
                    hi = d & ~0xfff
                    bs = "s[6:7]" if not hi else f"s[{kb[hi]}:{kb[hi]+1}]"
                    if hi and hi not in made:
                        a(f"s_add_u32 s{kb[hi]}, s6, {hi}")
                        a(f"s_addc_u32 s{kb[hi]+1}, s7, 0")
                        made.add(hi)
                    off = f" offset:{d & 0xfff}" if d & 0xfff else ""
                else:
                    bs = "s[8:9]"
                    off = f" offset:{t*256}" if t else ""
                r = slot(k)
                a.vmem(f"global_load_dwordx4 v[{r}:{r+3}], v{va}, {bs}{off}{pol}", ("t", n, t))
                cnt += 1
                issued[0] += 1
            return cnt

        def side_work(n):
            if n == (o["barA"] or 2 * T - 4):
                a.c("every load of this wave is under way and its (m, l) is in LDS")
                a("s_waitcnt lgkmcnt(0)")
                a("s_barrier")
                return 2
            return 0

        issue_upto(min(4, R))
        a.vmem(f"global_load_dwordx4 v[{vD}:{vD+3}], v{vT1}, s[4:5]", "q")
        issue_upto(NS)
        if not o["pst"]:
            tstamp(2)
        if kvmode == 0:
            a(f"v_and_b32 v{vL}, 15, v0")
            a(f"v_lshlrev_b32 v{vL}, 4, v{vL}")
            if (ua, ub) == (10, 11):
                a(f"v_lshl_add_u32 v{vV}, v{vM}, 6, v{vL}")
            else:
                a(f"v_and_b32 v{vV}, 16, v0")
                a(f"v_lshl_add_u32 v{vL}, v{vV}, {ua - 4}, v{vL}")
                a(f"v_and_b32 v{vV}, 32, v0")
                a(f"v_lshl_add_u32 v{vV}, v{vV}, {ub - 5}, v{vL}")
            a(f"v_add_u32 v{vV}, s{sBase}, v{vV}")
        else:
            a(f"v_lshl_add_u32 v{vV}, v0, 4, s{sBase}")
        a.c("LDS address of this wave's partial: w*512 + c*32 + (g&1)*16")
        a(f"v_and_b32 v{vT0}, 15, v0")
        a(f"v_lshlrev_b32 v{vT0}, 5, v{vT0}")
        a(f"v_and_b32 v{vLA}, 16, v0")
        a(f"s_lshl_b32 s3, s{sW}, 9")
        a(f"v_add3_u32 v{vLA}, v{vT0}, v{vLA}, s3")
        a.c("half-word masks that place p on the diagonal of the P operand")
        a(f"v_and_b32 v{vT0}, 1, v0")
        a(f"v_lshlrev_b32 v{vT0}, 4, v{vT0}")
        a(f"s_mov_b32 s3, 0xffff")
        a(f"v_lshlrev_b32 v{vT0}, v{vT0}, s3")
        a(f"s_mov_b32 vcc_lo, 0x03030303")
        a(f"s_mov_b32 vcc_hi, vcc_lo")
        for i in range(4):
            a(f"v_cndmask_b32 v{vMask+i}, 0, v{vT0}, vcc")
            if i < 3:
                a(f"s_lshl_b64 vcc, vcc, 2")
        a(f"s_mov_b32 vcc_lo, 0x000f000f")
        a(f"s_mov_b32 vcc_hi, vcc_lo")
        a.wait_tag("q")
        cval = math.log2(math.e) / math.sqrt(128.0)
        a(f"v_mov_b32 v{vC}, 0x{f2u(cval):08x}")
        a.c("q operand t is q in rows 4t..4t+3 and zero elsewhere")
        for t in range(4):
            for i in range(4):
                a(f"v_cndmask_b32 v{vA+4*t+i}, 0, v{vD+i}, vcc")
            if t < 3:
                a(f"s_lshl_b64 vcc, vcc, 4")

        def wait_tile(n, t=3):
            if any(x == ("t", n, t) for x in a.vm):
                a.wait_tag(("t", n, t))
                return 1
            return 0

        for n in range(T):
            a.c(f"K tile {n}")
            st = 0
            for t in range(4):
                w = wait_tile(n, t)
                if n == 0 and t == 0:
                    a("s_nop 0" if w else "s_nop 1")
                    tstamp(3)
                r = slot(4 * n + t)
                cin = "0" if t == 0 else f"v[{vD}:{vD+3}]"
                a(f"v_mfma_f32_16x16x32_bf16 v[{vD}:{vD+3}], v[{vA+4*t}:{vA+4*t+3}], v[{r}:{r+3}], {cin}")
                st = issue_upto(4 * n + t + 1 + R)
            st += side_work(n)
            if st < 8:
                a(f"s_nop {8 - st - 1}")
            s = vS + n
            a(f"v_mov_b32_dpp v{s}, v{vD} quad_perm:[0,0,0,0] row_mask:0xf bank_mask:0xf")
            for b in range(1, 4):
                a(f"v_add_f32_dpp v{s}, v{vD+b}, v{s} quad_perm:[{b},{b},{b},{b}] row_mask:0xf bank_mask:0xf")
            if n == 1:
                a(f"v_max_f32 v{vM}, v{vS}, v{vS+1}")
            elif n > 1 and n % 2 == 1:
                a(f"v_max3_f32 v{vM}, v{vM}, v{s-1}, v{s}")
        a.c("true maximum of this wave's scores")
        tstamp(4)
        red = ("row_ror:4 row_mask:0xf", "row_ror:8 row_mask:0xf", "row_bcast:15 row_mask:0xa", "row_bcast:31 row_mask:0xc")
        for ctl in red:
            a("s_nop 1")
            a(f"v_max_f32_dpp v{vM}, v{vM}, v{vM} {ctl} bank_mask:0xf")
        a(f"v_mul_f32 v{vM}, v{vC}, v{vM}")
        a("s_nop 0")
        a(f"v_readlane_b32 s{sMc}, v{vM}, 63")
        a("s_nop 1")
        for n in range(T):
            a(f"v_fma_f32 v{vS+n}, v{vS+n}, v{vC}, -s{sMc}")
        for n in range(T):
            a(f"v_exp_f32 v{vS+n}, v{vS+n}")
        a(f"v_mov_b32 v{vM}, s{sMc}")
        a(f"v_add_f32 v{vL}, v{vS}, v{vS+1}")
        for n in range(2, T):
            a(f"v_add_f32 v{vL}, v{vL}, v{vS+n}")
        for n in range(T):
            a(f"v_cvt_pk_bf16_f32 v{vS+n}, v{vS+n}, v{vS+n}")
        for ctl in red:
            a(f"v_add_f32_dpp v{vL}, v{vL}, v{vL} {ctl} bank_mask:0xf")
            a("s_nop 1")
        a(f"s_lshl_b32 s3, s{sW}, 3")
        a(f"v_mov_b32 v{vT0}, s3")
        a(f"s_brev_b64 exec, 1")
        a(f"ds_write_b64 v{vT0}, v[{vM}:{vL}] offset:{NW*512}")
        a(f"s_mov_b64 exec, -1")
        for i in range(T):
            n = T + i
            a.c(f"V tile {i}")
            for u in range(4):
                for j in range(4):
                    a(f"v_and_b32_dpp v{vA+4*u+j}, v{vS+i}, v{vMask+j} row_newbcast:{4*u} row_mask:0xf bank_mask:0xf")
            for u in range(4):
                wait_tile(n, u)
                if u == 0:
                    a("s_nop 0")
                r = slot(4 * n + u)
                cin = "0" if (i == 0 and u == 0) else f"v[{vO}:{vO+3}]"
                a(f"v_mfma_f32_16x16x32_bf16 v[{vO}:{vO+3}], v[{vA+4*u}:{vA+4*u+3}], v[{r}:{r+3}], {cin}")
                issue_upto(4 * n + u + 1 + R)
            side_work(n)

    body(o["R"], "a")
    if o["R2"]:
        a("s_branch L_join")
        a.label("L_body1")
        body(o["R2"], "b")
        a.label("L_join")
    a.vm = []
    a("s_nop 7")
    tstamp(5)
    a(f"ds_write_b128 v{vLA}, v[{vO}:{vO+3}]")
    a("s_waitcnt lgkmcnt(0)")
    a("s_barrier")
    tstamp(6)
    a("s_branch L_fin" if (tl or amp) else "s_endpgm")

    a.label("L_finisher")
    if o["prio"]:
        a(f"s_setprio {o['prio']}")
    a.c("hand-off addresses and constants")
    a(f"s_lshl_b32 s{sHB}, s{sHead}, 13")
    a(f"s_lshl_b32 s{sSlot}, s{sSplit}, 9")
    a(f"s_add_u32 s{sSlot}, s{sSlot}, s{sHB}")
    a(f"s_lshl_b32 s{sDbg}, s{sHead}, 2")
    a(f"s_mov_b32 s{sRole}, s{sSplit}")
    a(f"s_getreg_b32 s{sMine}, hwreg(HW_REG_XCC_ID, 0, 4)")
    a(f"s_or_b32 s{sMine}, s{sMine}, 0x100")
    a(f"s_mov_b32 s{sChk}, 0")
    a(f"s_mov_b32 s{sOwn}, 0x01010101")
    a(f"s_mov_b32 s{sOwn+1}, s{sOwn}")
    a(f"v_lshl_add_u32 v{vQS}, v0, 3, s{sSlot}")
    a(f"v_min_u32 v{vX}, 32, v0")
    a(f"v_lshl_add_u32 v{vX}, v{vX}, 7, s{sHB}")
    a(f"v_lshl_add_u32 v{vQA}, v0, 3, s{sHB}")
    a(f"v_lshl_add_u32 v{vQB}, v0, 4, s{sHB}")
    a(f"s_add_u32 s3, s{sHB}, 4096")
    a(f"v_and_b32 v{vQC}, 7, v0")
    a(f"v_lshl_add_u32 v{vQC}, v{vQC}, 3, s3")
    a(f"s_lshl_b32 s21, s{sSplit}, 3")
    a(f"s_add_u32 s21, s21, s3")
    a(f"v_mov_b32 v{vQD}, s21")
    for k in range(4):
        a(f"v_mov_b32 v{vQ+k}, -1")
    a(f"s_lshl_b32 s{sOut}, s{sHead}, 8")
    a(f"v_and_b32 v{vLA}, {NW-1}, v0")
    a(f"v_lshlrev_b32 v{vLA}, 3, v{vLA}")
    a(f"v_lshlrev_b32 v{vK}, 3, v0")
    a(f"v_lshl_add_u32 v{vV}, v0, 2, s{sOut}")
    a(f"s_cmp_lg_u32 s{sRole}, 0")
    a("s_waitcnt lgkmcnt(0)")
    tstamp(1)
    a("s_cbranch_scc1 L_barA")
    a.c("collector: bring the hand-off lines into its L2, mark every word as empty, then announce the die")
    a(f"global_load_dword v{vX}, v{vX}, s[14:15] sc1")
    a("s_waitcnt vmcnt(0)")
    if not o["noclr"]:
        for k in range(4):
            a(f"global_store_dwordx4 v{vQB}, v[{vQ}:{vQ+3}], s[14:15] offset:{k*1024}")
        a(f"global_store_dwordx2 v{vQC}, v[{vQ}:{vQ+1}], s[14:15]")
    a(f"v_mov_b32 v{vT0}, s{sDbg}")
    a(f"v_mov_b32 v{vT1}, s{sMine}")
    a("s_mov_b64 exec, 1")
    a("s_waitcnt vmcnt(0)")
    if o["noflg"] == 0:
        a(f"global_store_dword v{vT0}, v{vT1}, s[12:13] sc1")
    elif o["noflg"] == 2:
        a(f"s_mov_b32 s3, s{sMine}")
        a(f"s_atomic_or s3, s[12:13], s{sDbg}")
    elif o["noflg"] == 3:
        a(f"global_store_dword v{vT0}, v{vT1}, s[12:13]")
    a("s_mov_b64 exec, -1")
    a.label("L_barA")
    a("s_barrier")
    a(f"s_load_dword s{sChk}, s[12:13], s{sDbg}")
    a(f"ds_read_b64 v[{vM}:{vL}], v{vLA} offset:{NW*512}")
    a("s_waitcnt vmcnt(0) lgkmcnt(0)")
    a.c("workgroup maximum, per-wave factors and workgroup sum")
    a(f"v_max_f32_dpp v{vT0}, v{vM}, v{vM} row_ror:1 row_mask:0xf bank_mask:0xf")
    a("s_nop 1")
    a(f"v_max_f32_dpp v{vT0}, v{vT0}, v{vT0} row_ror:2 row_mask:0xf bank_mask:0xf")
    a(f"v_sub_f32 v{vC}, v{vM}, v{vT0}")
    a(f"v_exp_f32 v{vC}, v{vC}")
    a(f"v_min_u32 v{vM}, -2, v{vT0}")
    a(f"v_mul_f32 v{vL}, v{vL}, v{vC}")
    a("s_nop 1")
    a(f"v_add_f32_dpp v{vL}, v{vL}, v{vL} row_ror:1 row_mask:0xf bank_mask:0xf")
    a("s_nop 1")
    a(f"v_add_f32_dpp v{vL}, v{vL}, v{vL} row_ror:2 row_mask:0xf bank_mask:0xf")
    if o["noflg"] == 1:
        a(f"s_mov_b32 s{sChk}, s{sMine}")
    if o["forceslow"] == 1:
        a(f"s_mov_b32 s{sChk}, 0")
    elif o["forceslow"] == 2:
        a(f"s_bitcmp1_b32 s{sSplit}, 0")
        a(f"s_cselect_b32 s{sChk}, 0, s{sChk}")
    a(f"s_mov_b32 s{sCap}, {o['cap']}")
    a(f"s_mov_b32 s{sDone}, 0")
    a(f"v_min_u32 v{vL}, -2, v{vL}")
    a.c("role: 0 collect, 1 hand over through the shared L2, 2 hand over through memory")
    a(f"s_cmp_eq_u32 s{sChk}, s{sMine}")
    a(f"s_cselect_b32 s{sChk}, 1, 2")
    a(f"s_cmp_eq_u32 s{sRole}, 0")
    a(f"s_cselect_b32 s{sRole}, 0, s{sChk}")
    a(f"s_cmp_lg_u32 s{sRole}, 1")
    a("s_cbranch_scc1 L_notfast")
    a("s_mov_b64 exec, 1")
    a(f"global_store_dwordx2 v{vQD}, v[{vM}:{vL}], s[14:15]")
    a("s_mov_b64 exec, -1")
    a("s_branch L_barB")
    a.label("L_notfast")
    if o["pre"]:
        a(f"s_cmp_lg_u32 s{sRole}, 0")
        a("s_cbranch_scc1 L_barB")
        a.c("collector: try to get all (m, l) now, so that only the sums are left for the end")
        a(f"s_mov_b32 s3, {o['pre']}")
        a.label("L_mlpoll")
        a(f"global_load_dwordx2 v[{vQM}:{vQL}], v{vQC}, s[14:15] sc1")
        a("s_waitcnt vmcnt(0)")
        a(f"v_cndmask_b32 v{vQM}, v{vQM}, v{vM}, s[{sOwn}:{sOwn+1}]")
        a(f"v_cndmask_b32 v{vQL}, v{vQL}, v{vL}, s[{sOwn}:{sOwn+1}]")
        a(f"v_max_u32 v{vT0}, v{vQM}, v{vQL}")
        a(f"v_cmp_eq_u32 vcc, -1, v{vT0}")
        a("s_cbranch_vccz L_mlready")
        a("s_sub_u32 s3, s3, 1")
        a("s_cmp_lg_u32 s3, 0")
        a("s_cbranch_scc1 L_mlpoll")
        a("s_branch L_barB")
        a.label("L_mlready")
        a(f"v_max_f32_dpp v{vT0}, v{vQM}, v{vQM} row_ror:1 row_mask:0xf bank_mask:0xf")
        for k in (2, 4):
            a("s_nop 1")
            a(f"v_max_f32_dpp v{vT0}, v{vT0}, v{vT0} row_ror:{k} row_mask:0xf bank_mask:0xf")
        a(f"v_sub_f32 v{vG}, v{vQM}, v{vT0}")
        a(f"v_exp_f32 v{vG}, v{vG}")
        a("s_nop 0")
        a(f"v_mul_f32 v{vT0}, v{vQL}, v{vG}")
        for k in (1, 2, 4):
            a("s_nop 1")
            a(f"v_add_f32_dpp v{vT0}, v{vT0}, v{vT0} row_ror:{k} row_mask:0xf bank_mask:0xf")
        a(f"v_rcp_f32 v{vT0}, v{vT0}")
        a(f"s_mov_b32 s{sRole}, -1")
        a(f"v_mul_f32 v{vG}, v{vG}, v{vT0}")
        a("s_barrier")
        tstamp(6)
        for w in range(NW):
            a(f"ds_read_b64 v[{vRing+2*w}:{vRing+2*w+1}], v{vK} offset:{w*512}")

        def oissue(base):
            for w in range(1, S):
                a(f"global_load_dwordx2 v[{base+2*w}:{base+2*w+1}], v{vQA}, s[14:15] offset:{w * 512} sc1")

        def ocheck(base, extra, lab):
            for h in range(2):
                a(f"v_mul_f32_dpp v{vO+2+h}, v{vG}, v{vO+h} row_newbcast:0 row_mask:0xf bank_mask:0xf")
            for w in range(1, S):
                a(f"s_waitcnt vmcnt({S-1-w+extra})")
                if w == 1:
                    a(f"v_max_u32 v{vT0}, v{base+2}, v{base+3}")
                else:
                    a(f"v_max3_u32 v{vT0}, v{vT0}, v{base+2*w}, v{base+2*w+1}")
                if w == S - 1:
                    a(f"v_cmp_eq_u32 vcc, -1, v{vT0}")
                for h in range(2):
                    a(f"v_fmac_f32_dpp v{vO+2+h}, v{vG}, v{base+2*w+h} row_newbcast:{w} row_mask:0xf bank_mask:0xf")
            a(f"v_cvt_pk_bf16_f32 v{vT1}, v{vO+2}, v{vO+3}")
            a(f"s_cbranch_vccz {lab}")

        def ofinal(base):
            tstamp(8)
            a(f"global_store_dword v{vV}, v{vT1}, s[10:11]")
            a("s_branch L_stored" if (tl or amp) else "s_endpgm")
        oissue(vQ)
        for w in range(NW):
            a(f"s_waitcnt lgkmcnt({0 if tl else NW - 1 - w})")
            op = "v_mul_f32_dpp" if w == 0 else "v_fmac_f32_dpp"
            for h in range(2):
                a(f"{op} v{vO+h}, v{vC}, v{vRing+2*w+h} row_newbcast:{w} row_mask:0xf bank_mask:0xf")
        tstamp(7)
        if not o["pipe"]:
            a.label("L_opoll")
            ocheck(vQ, 0, "L_oready")
            oissue(vQ)
            a(f"s_sub_u32 s{sCap}, s{sCap}, 1")
            a(f"s_cmp_lg_u32 s{sCap}, 0")
            a("s_cbranch_scc1 L_opoll")
            a("s_branch L_fin")
            a.label("L_oready")
            ofinal(vQ)
        else:
            vQ2 = vRing + 16
            a.label("L_opoll")
            oissue(vQ2)
            ocheck(vQ, 7, "L_oready")
            oissue(vQ)
            ocheck(vQ2, 7, "L_oready2")
            a(f"s_sub_u32 s{sCap}, s{sCap}, 1")
            a(f"s_cmp_lg_u32 s{sCap}, 0")
            a("s_cbranch_scc1 L_opoll")
            a("s_branch L_fin")
            a.label("L_oready")
            a.label("L_oready2")
            ofinal(vQ)
    a.label("L_barB")
    a(f"s_cmp_eq_u32 s{sRole}, 0")
    a("s_barrier")
    tstamp(6)
    for w in range(NW):
        a(f"ds_read_b64 v[{vRing+2*w}:{vRing+2*w+1}], v{vK} offset:{w*512}")
    if o["spec"]:
        a("s_cbranch_scc0 L_nospec")
        poll_issue()
        a.label("L_nospec")
    for w in range(NW):
        a(f"s_waitcnt lgkmcnt({0 if tl else NW - 1 - w})")
        op = "v_mul_f32_dpp" if w == 0 else "v_fmac_f32_dpp"
        for h in range(2):
            a(f"{op} v{vO+h}, v{vC}, v{vRing+2*w+h} row_newbcast:{w} row_mask:0xf bank_mask:0xf")
    a(f"s_cmp_lg_u32 s{sRole}, 1")
    a(f"v_min_u32 v{vQ}, -2, v{vO}")
    a(f"v_min_u32 v{vQ+1}, -2, v{vO+1}")
    a("s_cbranch_scc1 L_other")
    a.c("the collector runs on this die and has marked the slot: a plain store meets it in the shared L2")
    a(f"global_store_dwordx2 v{vQS}, v[{vQ}:{vQ+1}], s[14:15]")
    tstamp(7)
    if tl:
        a(f"s_mov_b32 s{sCap}, 0")
    a("s_branch L_fin" if (tl or amp) else "s_endpgm")
    a.label("L_other")
    a(f"s_cmp_lg_u32 s{sRole}, 0")
    a("s_cbranch_scc1 L_slowput")
    tstamp(7)
    if o["spec"]:
        a("s_branch L_check")

    def combine(n, vP, m, l, waitfn):
        lg = int(math.log2(n))
        waitfn("ml")
        a(f"v_max_f32_dpp v{vT0}, v{m}, v{m} row_ror:1 row_mask:0xf bank_mask:0xf")
        for k in range(1, lg):
            a("s_nop 1")
            a(f"v_max_f32_dpp v{vT0}, v{vT0}, v{vT0} row_ror:{1<<k} row_mask:0xf bank_mask:0xf")
        a(f"v_sub_f32 v{vT1}, v{m}, v{vT0}")
        a(f"v_exp_f32 v{vT1}, v{vT1}")
        a(f"v_mov_b32 v{vM}, v{vT0}")
        a(f"v_mul_f32 v{vL}, v{l}, v{vT1}")
        waitfn("o")
        for w in range(n):
            op = "v_mul_f32_dpp" if w == 0 else "v_fmac_f32_dpp"
            for h in range(2):
                a(f"{op} v{vO+h}, v{vT1}, v{vP+2*w+h} row_newbcast:{w} row_mask:0xf bank_mask:0xf")
            if w < lg:
                a(f"v_add_f32_dpp v{vL}, v{vL}, v{vL} row_ror:{1<<w} row_mask:0xf bank_mask:0xf")

    a.label("L_poll")
    poll_issue()
    a.label("L_check")
    a("s_waitcnt vmcnt(7)")
    a(f"v_cndmask_b32 v{vQM}, v{vQM}, v{vM}, s[{sOwn}:{sOwn+1}]")
    a(f"v_cndmask_b32 v{vQL}, v{vQL}, v{vL}, s[{sOwn}:{sOwn+1}]")
    a(f"v_max_u32 v{vT0}, v{vQM}, v{vQL}")
    for w in range(1, S):
        a(f"s_waitcnt vmcnt({S-1-w})")
        a(f"v_max3_u32 v{vT0}, v{vT0}, v{vQ+2*w}, v{vQ+2*w+1}")
    a(f"v_cmp_eq_u32 vcc, -1, v{vT0}")
    a("s_cbranch_vccz L_ready")
    a(f"s_sub_u32 s{sCap}, s{sCap}, 1")
    a(f"s_and_b32 s3, s{sCap}, 7")
    a(f"s_cselect_b32 s3, s{sDone}, 1")
    a(f"s_cmp_eq_u32 s3, 0")
    a("s_cbranch_scc1 L_poll")
    a("s_branch L_slowpoll")
    a.label("L_ready")
    tstamp(8)
    a(f"v_max_f32_dpp v{vT0}, v{vQM}, v{vQM} row_ror:1 row_mask:0xf bank_mask:0xf")
    for k in (2, 4):
        a("s_nop 1")
        a(f"v_max_f32_dpp v{vT0}, v{vT0}, v{vT0} row_ror:{k} row_mask:0xf bank_mask:0xf")
    a(f"v_sub_f32 v{vG}, v{vQM}, v{vT0}")
    a(f"v_exp_f32 v{vG}, v{vG}")
    a("s_nop 0")
    a(f"v_mul_f32 v{vT0}, v{vQL}, v{vG}")
    for k in (1, 2, 4):
        a("s_nop 1")
        a(f"v_add_f32_dpp v{vT0}, v{vT0}, v{vT0} row_ror:{k} row_mask:0xf bank_mask:0xf")
    a(f"v_rcp_f32 v{vT0}, v{vT0}")
    a("s_nop 0")
    a(f"v_mul_f32 v{vG}, v{vG}, v{vT0}")
    a("s_nop 1")
    for w in range(S):
        op = "v_mul_f32_dpp" if w == 0 else "v_fmac_f32_dpp"
        for h in range(2):
            a(f"{op} v{vO+h}, v{vG}, v{vQ+2*w+h} row_newbcast:{w} row_mask:0xf bank_mask:0xf")
    a(f"v_cvt_pk_bf16_f32 v{vO}, v{vO}, v{vO+1}")
    a(f"global_store_dword v{vV}, v{vO}, s[10:11]")
    a.label("L_stored")
    if tl:
        a("s_waitcnt vmcnt(0)")
        tstamp(9)
    if amp:
        a("s_waitcnt vmcnt(0)")
        a(f"v_mov_b32 v{vT0}, 128")
        a(f"v_mov_b32 v{vT1}, 0x10000")
        a("s_mov_b64 exec, 1")
        a(f"global_atomic_add v{vT0}, v{vT1}, s[12:13]")
    a("s_branch L_fin" if (tl or amp) else "s_endpgm")
    a.label("L_slowput")
    a.c("collector on another die, or not announced yet: write through to the second slot set, then flag this split as done")
    a(f"v_add_u32 v{vQS}, {SLOW}, v{vQS}")
    a(f"s_lshl_b32 s3, s{sSplit}, 8")
    a(f"s_add_u32 s3, s3, s{sHB}")
    a(f"s_add_u32 s3, s3, {SLOW + 4096}")
    a(f"v_mov_b32 v{vQD}, s3")
    a(f"global_store_dwordx2 v{vQS}, v[{vQ}:{vQ+1}], s[14:15] sc1")
    a("s_mov_b64 exec, 1")
    a(f"global_store_dwordx2 v{vQD}, v[{vM}:{vL}], s[14:15] sc1")
    a(f"s_lshl_b32 s3, 1, s{sSplit}")
    a(f"v_mov_b32 v{vT0}, s{sDbg}")
    a(f"v_mov_b32 v{vT1}, s3")
    a("s_waitcnt vmcnt(0)")
    a(f"global_atomic_or v{vT0}, v{vT1}, s[12:13] offset:128")
    if tl:
        a(f"s_mov_b32 s{sCap}, 0")
        a(f"s_mov_b32 s71, 100")
    a("s_branch L_fin" if (tl or amp) else "s_endpgm")
    a.label("L_slowpoll")
    a.c("collector: look for splits that used the second slot set")
    a(f"s_cmp_eq_u32 s{sCap}, 0")
    a("s_cbranch_scc1 L_fin")
    a(f"v_mov_b32 v{vT0}, s{sDbg}")
    a(f"global_load_dword v{vT1}, v{vT0}, s[12:13] offset:128 sc1")
    a(f"v_and_b32 v{vT0}, 7, v0")
    a("s_waitcnt vmcnt(0)")
    a(f"v_readfirstlane_b32 s{sDone}, v{vT1}")
    a(f"v_lshrrev_b32 v{vT1}, v{vT0}, v{vT1}")
    a(f"v_and_b32 v{vT1}, 1, v{vT1}")
    a(f"v_cmp_eq_u32 vcc, 1, v{vT1}")
    a(f"s_add_u32 s3, s{sHB}, {SLOW + 4096}")
    a(f"v_lshl_add_u32 v{vT0}, v{vT0}, 8, s3")
    a(f"s_and_b32 s{sDone}, s{sDone}, 0xff")
    a(f"v_cndmask_b32 v{vT1}, v{vQC}, v{vT0}, vcc")
    a(f"global_load_dwordx2 v[{vQM}:{vQL}], v{vT1}, s[14:15] sc1")
    for w in range(1, S):
        a(f"s_bitcmp1_b32 s{sDone}, {w}")
        a(f"s_cselect_b32 s3, {SLOW}, 0")
        a(f"v_add_u32 v{vT1}, s3, v{vQA}")
        a(f"global_load_dwordx2 v[{vQ+2*w}:{vQ+2*w+1}], v{vT1}, s[14:15] offset:{w * 512} sc1")
    a("s_branch L_check")
    a.label("L_fin")
    if tl:
        a("s_mov_b64 exec, -1")
        a("s_getreg_b32 s46, hwreg(HW_REG_XCC_ID)")
        a("s_getreg_b32 s47, hwreg(HW_REG_HW_ID)")
        a("s_waitcnt lgkmcnt(0)")
        a(f"v_mov_b32 v{vT1}, 0")
        for i in range(10):
            a(f"v_writelane_b32 v{vT1}, s{48+2*i}, {i}")
        a(f"v_writelane_b32 v{vT1}, s{sCap}, 11")
        a(f"v_writelane_b32 v{vT1}, s71, 12")
        a(f"v_writelane_b32 v{vT1}, s46, 14")
        a(f"v_writelane_b32 v{vT1}, s47, 15")
        a(f"s_mul_i32 s46, s2, 5")
        a(f"s_add_u32 s46, s46, s{sW}")
        a(f"s_lshl_b32 s46, s46, 6")
        a(f"s_add_u32 s46, s46, 0x100000")
        a(f"v_lshlrev_b32 v{vT0}, 2, v0")
        a(f"v_add_u32 v{vT0}, s46, v{vT0}")
        a("s_mov_b64 exec, 0xffff")
        a(f"global_store_dword v{vT0}, v{vT1}, s[14:15]")
    if amp:
        a.c("diagnostic only: workgroup 0 waits for all heads, then holds for amp x elapsed")
        a(f"s_xor_b32 s44, s{sW}, {NW}")
        a(f"s_or_b32 s44, s44, s2")
        a("s_cmp_lg_u32 s44, 0")
        a("s_cbranch_scc1 L_end")
        a("s_mov_b64 exec, 1")
        a(f"v_mov_b32 v{vT0}, 128")
        a("s_mov_b32 s44, 200000")
        a.label("L_apoll")
        a(f"global_load_dword v{vT1}, v{vT0}, s[12:13] sc1")
        a("s_waitcnt vmcnt(0)")
        a(f"v_readfirstlane_b32 s45, v{vT1}")
        a("s_lshr_b32 s45, s45, 16")
        a("s_sub_u32 s44, s44, 1")
        a("s_cmp_eq_u32 s44, 0")
        a("s_cbranch_scc1 L_end")
        a("s_cmp_lt_u32 s45, 32")
        a("s_cbranch_scc1 L_apoll")
        a("s_memrealtime s[42:43]")
        a("s_waitcnt lgkmcnt(0)")
        a("s_sub_u32 s44, s42, s40")
        a("s_min_u32 s44, s44, 20000")
        if amp > 0:
            a(f"s_mul_i32 s44, s44, {amp}")
        else:
            a("s_getreg_b32 s44, hwreg(HW_REG_XCC_ID, 0, 4)")
            a("s_mul_i32 s44, s44, 10000")
        a("s_add_u32 s40, s42, s44")
        a.label("L_spin")
        a("s_memrealtime s[42:43]")
        a("s_waitcnt lgkmcnt(0)")
        a("s_sub_u32 s42, s42, s40")
        a("s_cmp_lt_i32 s42, 0")
        a("s_cbranch_scc1 L_spin")
    a.label("L_end")
    a("s_endpgm")
    if tl:
        i = next(k for k, ln in enumerate(a.lines) if "s_memrealtime s[48:49]" in ln)
        a.lines.insert(i, "    s_mov_b32 s71, 0")

    lds = NW * 512 + NW * 8
    out = HEADER
    if o["noclr"]:
        out += "; hostclear\n"
    out += f"; @launch grid=({NWG},1,1) block=({NW*64+64},1,1) lds={lds}\n"
    out += '.amdgcn_target "amdgcn-amd-amdhsa--gfx950"\n.text\n'
    out += f".globl {NAME}\n.p2align 8\n.type {NAME},@function\n{NAME}:\n"
    out += "\n".join(a.lines) + "\n"
    acc = (nv + 3) // 4 * 4
    out += f""".section .rodata,"a"
.p2align 6
.amdhsa_kernel {NAME}
  .amdhsa_next_free_vgpr {nv}
  .amdhsa_next_free_sgpr {96 if kpat else (72 if tl else 48)}
  .amdhsa_accum_offset {acc}
  .amdhsa_group_segment_fixed_size 0
  .amdhsa_kernarg_size 48
  .amdhsa_user_sgpr_count 2
  .amdhsa_user_sgpr_kernarg_segment_ptr 1
  .amdhsa_system_sgpr_workgroup_id_x 1
  .amdhsa_float_denorm_mode_32 3
.end_amdhsa_kernel
"""
    return out


if __name__ == "__main__":
    p = argparse.ArgumentParser()
    p.add_argument("-o", required=True)
    for k, d in DEFAULTS.items():
        p.add_argument("--" + k, type=type(d), default=d)
    args = vars(p.parse_args())
    fn = args.pop("o")
    open(fn, "w").write(gen(**args))
```

```python
import argparse
import math
from gen1 import HEADER, NAME, Asm, f2u

G1 = "j0^w0^t3 w1 j2^t0 j2 t1 j0 t2 j4 t3 j3 x1 x2 x0 j1"
H1F = "j2^w0^t3 w1 j2^t0 j2 t1^t3 j3 t2 j4^j2 t3 j1 x0 x1 x2 j0"
H1 = "j4^w0^t3 w1 j4^t0 j4 t1^t3 j3 t2 j2^j4 t3 j0 x0 x2 x1 j1"
DEFAULTS = dict(R=2, R2=0, pol="nt", pat=H1, kvmode=0, tl=0, amp=0, pf=1, barA=27, prio=3, noclr=0, noflg=3, pre=8, pipe=1, ua=10, ub=11, spread=2, mode=0, mode2=0,
                chkmode=0, spec=1, forceslow=0, qpos=1, fine=1, kpat=0, cap=0x1000000, psel=0, iodfix=1, xrot=0, pst=0, fastpro=0, halves=1)

NW, S, T = 4, 8, 16
NWG = 256
NAMES = ["x0", "x1", "x2", "j0", "j1", "j2", "j3", "j4", "w0", "w1", "t0", "t1", "t2", "t3"]


def rank(ms):
    ms = list(ms)
    r = 0
    for bit in range(14):
        pv = next((m for m in ms if m >> bit & 1), None)
        if pv is None:
            continue
        ms.remove(pv)
        ms = [m ^ pv if m >> bit & 1 else m for m in ms]
        r += 1
    return r


def columns(pat, ua=10, ub=11):
    rows = []
    for tm in pat.replace(",", " ").split()[:14]:
        m = 0
        for n in tm.split("^"):
            m ^= 1 << NAMES.index(n)
        rows.append(m)
    assert rank(rows) == 14 and not any(m >> 8 for m in rows[9:])
    sp = []
    for bit in range(8):
        if rank(rows[9:] + sp + [1 << bit]) == 5 + len(sp) + 1:
            sp.append(1 << bit)
    rows += sp
    bits = [b - 10 for b in range(10, 26) if b not in (ua, ub)] + [16, 17, 18]
    return [sum(((rows[pos] >> i) & 1) << bits[pos] for pos in range(17)) for i in range(14)]


def gen(**kw):
    o = dict(DEFAULTS)
    o.update(kw)
    tl, amp, kvmode, kpat = o["tl"], o["amp"], o["kvmode"], o["kpat"]
    pol = (" " + o["pol"]) if o["pol"] else ""
    ua, ub = o["ua"], o["ub"]
    assert ua < ub < 21 and kvmode == 0
    col = columns(o["pat"], ua, ub)
    SLOW = 0x40000
    Rmax = max(o["R"], o["R2"])
    a = Asm()
    vK, vV, vT0, vT1, vC, vM, vL = 1, 2, 3, 4, 5, 6, 7
    vD, vO, vMask, vA = 8, 12, 16, 20
    vS = 36
    vQ = 52
    vQM, vQL = 68, 69
    vQA, vQB, vQC, vQS = 70, 71, 72, 73
    vLA, vTS, vX, vQD, vG = 74, 75, 76, 77, 78
    vRing = 80
    nv = vRing + 16 * (Rmax + (1 if 1 in (o['mode'], o['mode2']) else 0))
    assert nv <= 256
    sW, sHead, sSplit, sBase, sOut = 16, 17, 18, 19, 20
    sMc = 22
    sHB, sSlot, sDbg = 24, 25, 26
    sRole = 28
    sMine, sDone, sCap, sChk = 30, 31, 32, 33
    sOwn = 34

    def tstamp(i):
        if tl:
            a(f"s_memrealtime s[{48+2*i}:{49+2*i}]")

    def tmask(i):
        m = 0
        for b in range(4):
            if i >> b & 1:
                m ^= col[10 + b]
        return m << 10

    kstep, vstep = (1024, 256) if kvmode == 0 else (256, 1024)

    if o["fastpro"]:
        assert not kpat and (ua, ub) == (10, 11)
        a("s_load_dwordx8 s[4:11], s[0:1], 0")
        a("s_load_dwordx4 s[12:15], s[0:1], 32")
        if amp:
            a("s_memrealtime s[40:41]")
        if tl:
            for i in range(1, 10):
                a(f"s_mov_b32 s{48+2*i}, 0")
            a(f"s_mov_b32 s{sCap}, 0")
        tstamp(0)
        a(f"v_lshrrev_b32 v{vT0}, 6, v0")
        a(f"s_cmpk_ge_u32 s2, {NWG}")
        a(f"v_readfirstlane_b32 s{sW}, v{vT0}")
        a("s_cbranch_scc1 L_end")
        a.c("workgroup id bits -> head (address bits 21..25) and split; the ids of one head are 8 apart")
        a(f"s_bfe_u32 s3, s2, 0x10004")
        a(f"s_and_b32 s{sHead}, s2, 15")
        a(f"s_lshl1_add_u32 s{sHead}, s{sHead}, s3")
        a(f"s_lshr_b32 s{sSplit}, s2, 5")
        a(f"v_and_b32 v0, 63, v0")
        a(f"s_cmp_eq_u32 s{sW}, {NW}")
        a("s_cbranch_scc1 L_finisher")
        a.c("first tile of this wave: split, wave and die bits are xor-ed into address bits 12..20 so that")
        a.c("the tiles in flight spread evenly over memory stacks and banks (speed only)")
        a("s_getreg_b32 s3, hwreg(HW_REG_XCC_ID, 2, 1)")
        a("s_bfe_u32 s21, s2, 0x10001")
        a("s_xor_b32 s3, s3, s21")
        a(f"s_mul_i32 s3, s3, {col[13]}")
        a(f"s_lshl2_add_u32 s{sBase}, s{sW}, 0" if False else f"s_lshl_b32 s{sBase}, s{sW}, 2")
        a(f"s_xor_b32 s{sBase}, s{sBase}, s3")
        for b in (5, 6, 7):
            a(f"s_bitcmp1_b32 s2, {b}")
            a(f"s_cselect_b32 s3, {col[b] & 0xffff}, 0")
            a(f"s_xor_b32 s{sBase}, s{sBase}, s3")
        a(f"s_lshl_b32 s3, s{sHead}, 11")
        a(f"s_or_b32 s{sBase}, s{sBase}, s3")
        a(f"s_lshl_b32 s{sBase}, s{sBase}, 10")
        rows = o["pat"].split()
        assert rows[9:14] == ["j1", "x0", "x1", "x2", "j0"] and col[8] == 4 and col[9] == 8
        assert all((col[b] & 0x7ff) == 0 for b in range(5))
    else:
        a(f"s_cmpk_ge_u32 s2, {NWG}")
        a("s_cbranch_scc1 L_end")
        a("s_load_dwordx8 s[4:11], s[0:1], 0")
        a("s_load_dwordx4 s[12:15], s[0:1], 32")
        if kpat:
            a("s_load_dwordx16 s[76:91], s[0:1], 48")
        if amp:
            a("s_memrealtime s[40:41]")
        if tl:
            for i in range(1, 10):
                a(f"s_mov_b32 s{48+2*i}, 0")
            a(f"s_mov_b32 s{sCap}, 0")
        tstamp(0)
        a(f"v_lshrrev_b32 v{vT0}, 6, v0")
        if o["pf"]:
            a.c("pull the kernel's own code into L2 while the kernel arguments are on their way")
            a("s_getpc_b64 s[22:23]")
            a(f"v_lshlrev_b32 v{vT1}, 7, v0")
            a(f"v_min_u32 v{vT1}, L_end-.-64, v{vT1}")
            a.vmem(f"global_load_dword v{vC}, v{vT1}, s[22:23]", "pf")
        else:
            a("s_nop 0")
        a(f"v_readfirstlane_b32 s{sW}, v{vT0}")
        a(f"v_and_b32 v0, 63, v0")
        a.c("(workgroup, wave) -> first tile, head and split: an xor-linear map of the id bits")
        a(f"s_lshl_b32 s21, s{sW}, 8")
        if o["xrot"]:
            a(f"s_add_u32 s3, s2, {o['xrot']}")
            a("s_and_b32 s3, s3, 7")
            a("s_and_b32 s23, s2, 0xf8")
            a("s_or_b32 s23, s23, s3")
            a(f"s_or_b32 s21, s21, s23")
        else:
            a(f"s_or_b32 s21, s21, s2")
        if kpat:
            a("s_waitcnt lgkmcnt(0)")
        for b in range(10):
            src = f"s{76+b}" if kpat else str(col[b])
            a(f"s_bitcmp1_b32 s21, {b}")
            if b == 0:
                a(f"s_cselect_b32 s{sBase}, {src}, 0")
            else:
                a(f"s_cselect_b32 s3, {src}, 0")
                a(f"s_xor_b32 s{sBase}, s{sBase}, s3")
        if o["iodfix"]:
            a.c("order of this wave's own tiles follows the die it really runs on (speed only)")
            a("s_getreg_b32 s3, hwreg(HW_REG_XCC_ID, 0, 4)")
            a("s_xor_b32 s3, s3, s21")
            a("s_bitcmp1_b32 s3, 2")
            a(f"s_cselect_b32 s3, {col[13]}, 0")
            a(f"s_xor_b32 s{sBase}, s{sBase}, s3")
        if kpat:
            for b in range(4):
                a(f"s_and_b32 s{86+b}, s{86+b}, {0x1ffc00 & ~((1 << ua) | (1 << ub))}")
        a(f"s_bfe_u32 s{sSplit}, s{sBase}, 0x30010")
        a(f"s_bfe_u32 s{sHead}, s{sBase}, 0x5000b")
        a(f"s_and_b32 s{sBase}, s{sBase}, {0xffff & ~((1 << (ua - 10)) | (1 << (ub - 10)))}")
        a(f"s_lshl_b32 s{sBase}, s{sBase}, 10")
        a(f"s_cmp_eq_u32 s{sW}, {NW}")
        a("s_cbranch_scc1 L_finisher")
    a.c("lane patterns: lane = (g, a, b) for K and q, (g, c) for V")
    a(f"v_and_b32 v{vT1}, 3, v0")
    a(f"v_lshlrev_b32 v{vT1}, 4, v{vT1}")
    a(f"v_and_b32 v{vM}, 48, v0")
    a(f"v_lshl_add_u32 v{vT1}, v{vM}, 2, v{vT1}")
    a(f"v_and_b32 v{vL}, 12, v0")
    a(f"v_lshlrev_b32 v{vL}, {6 if kvmode == 0 else 8}, v{vL}")
    a(f"v_add3_u32 v{vK}, v{vL}, v{vT1}, s{sBase}")
    a(f"s_lshl_b32 s{sOut}, s{sHead}, 8")
    a(f"v_add_u32 v{vT1}, s{sOut}, v{vT1}")
    if o["R2"]:
        if o["psel"] == 0:
            a("s_bitcmp1_b32 s2, 0")
        else:
            a("s_getreg_b32 s3, hwreg(HW_REG_XCC_ID, 0, 4)")
            a("s_bitcmp1_b32 s3, 0")
    if o["pst"]:
        tstamp(2)
    a("s_waitcnt lgkmcnt(0)")
    tstamp(1)
    if o["R2"]:
        a("s_cbranch_scc1 L_body1")
    vm0 = list(a.vm)

    def poll_issue():
        a(f"global_load_dwordx2 v[{vQM}:{vQL}], v{vQC}, s[14:15] sc1")
        for w in range(1, S):
            a(f"global_load_dwordx2 v[{vQ+2*w}:{vQ+2*w+1}], v{vQA}, s[14:15] offset:{w * 512} sc1")

    def body(R, sfx, mode):
        a.vm = list(vm0)

        def slot(n):
            return vRing + 16 * (n % (R + (1 if mode == 1 else 0)))

        his = sorted({(((t & 1) << ua) + ((t >> 1) << ub)) & ~0xfff for t in range(4)} - {0})
        kb = {hi: 24 + 2 * i for i, hi in enumerate(his)}
        made = set()

        def issue_tile(n):
            isK = n < T
            i = n if isK else n - T
            va, base, step = (vK, "s[6:7]", kstep) if isK else (vV, "s[8:9]", vstep)
            if i > 0:
                if kpat:
                    a(f"v_xor_b32 v{va}, s{86 + (i ^ (i - 1)).bit_length() - 1}, v{va}")
                else:
                    a(f"v_xor_b32 v{va}, {tmask(i) ^ tmask(i - 1)}, v{va}")
            r = slot(n)
            for t in range(4):
                if isK:
                    d = ((t & 1) << ua) + ((t >> 1) << ub)
                    hi = d & ~0xfff
                    bs = "s[6:7]" if not hi else f"s[{kb[hi]}:{kb[hi]+1}]"
                    if hi and n == 0 and hi not in made:
                        a(f"s_add_u32 s{kb[hi]}, s6, {hi}")
                        a(f"s_addc_u32 s{kb[hi]+1}, s7, 0")
                        made.add(hi)
                    off = f" offset:{d & 0xfff}" if d & 0xfff else ""
                else:
                    bs = base
                    off = f" offset:{t*256}" if t else ""
                a.vmem(f"global_load_dwordx4 v[{r+4*t}:{r+4*t+3}], v{va}, {bs}{off}{pol}", ("t", n, t))
            return 4 + (1 if i > 0 else 0)

        def side_work(n):
            if n == (o["barA"] or 2 * T - R - 1):
                a.c("every load of this wave is under way and its (m, l) is in LDS")
                a("s_waitcnt lgkmcnt(0)")
                a("s_barrier")
                return 2
            return 0

        for n in range(R):
            issue_tile(n)
            if n + 1 == o["qpos"] or (n == 0 and o["qpos"] == 0):
                a.vmem(f"global_load_dwordx4 v[{vD}:{vD+3}], v{vT1}, s[4:5]", "q")
        if not o["pst"]:
            tstamp(2)
        if kvmode == 0:
            a(f"v_and_b32 v{vL}, 15, v0")
            a(f"v_lshlrev_b32 v{vL}, 4, v{vL}")
            if (ua, ub) == (10, 11):
                a(f"v_lshl_add_u32 v{vV}, v{vM}, 6, v{vL}")
            else:
                a(f"v_and_b32 v{vV}, 16, v0")
                a(f"v_lshl_add_u32 v{vL}, v{vV}, {ua - 4}, v{vL}")
                a(f"v_and_b32 v{vV}, 32, v0")
                a(f"v_lshl_add_u32 v{vV}, v{vV}, {ub - 5}, v{vL}")
            a(f"v_add_u32 v{vV}, s{sBase}, v{vV}")
        else:
            a(f"v_lshl_add_u32 v{vV}, v0, 4, s{sBase}")
        a.c("LDS address of this wave's partial: w*512 + c*32 + (g&1)*16")
        a(f"v_and_b32 v{vT0}, 15, v0")
        a(f"v_lshlrev_b32 v{vT0}, 5, v{vT0}")
        a(f"v_and_b32 v{vLA}, 16, v0")
        a(f"s_lshl_b32 s3, s{sW}, 9")
        a(f"v_add3_u32 v{vLA}, v{vT0}, v{vLA}, s3")
        a.c("half-word masks that place p on the diagonal of the P operand")
        a(f"v_and_b32 v{vT0}, 1, v0")
        a(f"v_lshlrev_b32 v{vT0}, 4, v{vT0}")
        a(f"s_mov_b32 s3, 0xffff")
        a(f"v_lshlrev_b32 v{vT0}, v{vT0}, s3")
        a(f"s_mov_b32 vcc_lo, 0x03030303")
        a(f"s_mov_b32 vcc_hi, vcc_lo")
        for i in range(4):
            a(f"v_cndmask_b32 v{vMask+i}, 0, v{vT0}, vcc")
            if i < 3:
                a(f"s_lshl_b64 vcc, vcc, 2")
        a(f"s_mov_b32 vcc_lo, 0x000f000f")
        a(f"s_mov_b32 vcc_hi, vcc_lo")
        a.wait_tag("q")
        cval = math.log2(math.e) / math.sqrt(128.0)
        a(f"v_mov_b32 v{vC}, 0x{f2u(cval):08x}")
        a.c("q operand t is q in rows 4t..4t+3 and zero elsewhere")
        for t in range(4):
            for i in range(4):
                a(f"v_cndmask_b32 v{vA+4*t+i}, 0, v{vD+i}, vcc")
            if t < 3:
                a(f"s_lshl_b64 vcc, vcc, 4")

        def wait_tile(n, t=3):
            if any(x == ("t", n, t) for x in a.vm):
                a.wait_tag(("t", n, t))
                return 1
            return 0

        for n in range(T):
            a.c(f"K tile {n}")
            w = wait_tile(n)
            if n == 0:
                a("s_nop 0" if w else "s_nop 1")
                tstamp(3)
            r = slot(n)
            if mode == 1:
                issue_tile(n + R)
            for t in range(4):
                cin = "0" if t == 0 else f"v[{vD}:{vD+3}]"
                a(f"v_mfma_f32_16x16x32_bf16 v[{vD}:{vD+3}], v[{vA+4*t}:{vA+4*t+3}], v[{r+4*t}:{r+4*t+3}], {cin}")
            st = issue_tile(n + R) if mode == 0 else 0
            st += side_work(n)
            if st < 8:
                a(f"s_nop {8 - st - 1}")
            s = vS + n
            a(f"v_mov_b32_dpp v{s}, v{vD} quad_perm:[0,0,0,0] row_mask:0xf bank_mask:0xf")
            for b in range(1, 4):
                a(f"v_add_f32_dpp v{s}, v{vD+b}, v{s} quad_perm:[{b},{b},{b},{b}] row_mask:0xf bank_mask:0xf")
            if mode == 2:
                issue_tile(n + R)
            if n == 1:
                a(f"v_max_f32 v{vM}, v{vS}, v{vS+1}")
            elif n > 1 and n % 2 == 1:
                a(f"v_max3_f32 v{vM}, v{vM}, v{s-1}, v{s}")
        a.c("true maximum of this wave's scores")
        tstamp(4)
        red = ("row_ror:4 row_mask:0xf", "row_ror:8 row_mask:0xf", "row_bcast:15 row_mask:0xa", "row_bcast:31 row_mask:0xc")
        for ctl in red:
            a("s_nop 1")
            a(f"v_max_f32_dpp v{vM}, v{vM}, v{vM} {ctl} bank_mask:0xf")
        a(f"v_mul_f32 v{vM}, v{vC}, v{vM}")
        a("s_nop 0")
        a(f"v_readlane_b32 s{sMc}, v{vM}, 63")
        a("s_nop 1")
        def probs(lo, hi):
            for n in range(lo, hi):
                a(f"v_fma_f32 v{vS+n}, v{vS+n}, v{vC}, -s{sMc}")
            for n in range(lo, hi):
                a(f"v_exp_f32 v{vS+n}, v{vS+n}")
            if lo == 0:
                a(f"v_mov_b32 v{vM}, s{sMc}")
                a(f"v_mov_b32 v{vL}, v{vS}")
            else:
                a("s_nop 0")
            for n in range(max(lo, 1), hi):
                if o["halves"] and n == T // 2:
                    a(f"v_mov_b32 v{vT1}, v{vS+n}")
                elif o["halves"] and n > T // 2:
                    a(f"v_add_f32 v{vT1}, v{vT1}, v{vS+n}")
                else:
                    a(f"v_add_f32 v{vL}, v{vL}, v{vS+n}")
            if o["halves"] and hi == T:
                a(f"v_add_f32 v{vL}, v{vL}, v{vT1}")
            for n in range(lo, hi):
                a(f"v_cvt_pk_bf16_f32 v{vS+n}, v{vS+n}, v{vS+n}")

        def publish_ml():
            for ctl in red:
                a(f"v_add_f32_dpp v{vL}, v{vL}, v{vL} {ctl} bank_mask:0xf")
                a("s_nop 1")
            a(f"s_lshl_b32 s3, s{sW}, 3")
            a(f"v_mov_b32 v{vT0}, s3")
            a(f"s_brev_b64 exec, 1")
            a(f"ds_write_b64 v{vT0}, v[{vM}:{vL}] offset:{NW*512}")
            a(f"s_mov_b64 exec, -1")
        sp = o["spread"]
        if not sp:
            probs(0, T)
            publish_ml()
        else:
            probs(0, 1)
            a("s_nop 1")
        for i in range(T):
            n = T + i
            a.c(f"V tile {i}")
            for u in range(4):
                for j in range(4):
                    a(f"v_and_b32_dpp v{vA+4*u+j}, v{vS+i}, v{vMask+j} row_newbcast:{4*u} row_mask:0xf bank_mask:0xf")
            if mode == 2 and i > 0 and n - 1 + R < 2 * T:
                issue_tile(n - 1 + R)
            fine = o["fine"] and i == T - 1
            if not fine:
                wait_tile(n)
                a("s_nop 0")
            if mode == 1 and n + R < 2 * T:
                issue_tile(n + R)
            r = slot(n)
            for u in range(4):
                if fine:
                    wait_tile(n, u)
                    if u == 0:
                        a("s_nop 0")
                acc = vD if (o["halves"] and i < T // 2) else vO
                first = u == 0 and (i == 0 or (o["halves"] and i == T // 2))
                cin = "0" if first else f"v[{acc}:{acc+3}]"
                a(f"v_mfma_f32_16x16x32_bf16 v[{acc}:{acc+3}], v[{vA+4*u}:{vA+4*u+3}], v[{r+4*u}:{r+4*u+3}], {cin}")
            if mode == 0 and n + R < 2 * T:
                issue_tile(n + R)
            if sp:
                lo, hi = 1 + i * sp, min(T, 1 + (i + 1) * sp)
                if lo < T:
                    probs(lo, hi)
                    a("s_nop 1")
                    if hi == T:
                        publish_ml()
            side_work(n)

    body(o["R"], "a", o["mode"])
    if o["R2"]:
        a("s_branch L_join")
        a.label("L_body1")
        body(o["R2"], "b", o["mode2"])
        a.label("L_join")
    a.vm = []
    a("s_nop 7")
    if o["halves"]:
        a.c("the two halves of the keys are summed apart, so their order does not change the result")
        a(f"v_pk_add_f32 v[{vO}:{vO+1}], v[{vO}:{vO+1}], v[{vD}:{vD+1}]")
        a(f"v_pk_add_f32 v[{vO+2}:{vO+3}], v[{vO+2}:{vO+3}], v[{vD+2}:{vD+3}]")
    tstamp(5)
    a(f"ds_write_b128 v{vLA}, v[{vO}:{vO+3}]")
    a("s_waitcnt lgkmcnt(0)")
    a("s_barrier")
    tstamp(6)
    a("s_branch L_fin" if (tl or amp) else "s_endpgm")

    a.label("L_finisher")
    if o["prio"]:
        a(f"s_setprio {o['prio']}")
    if o["fastpro"] and o["pf"]:
        a.c("pull the kernel's own code into L2 while the kernel arguments are on their way")
        a("s_getpc_b64 s[22:23]")
        a.label("L_pc")
        a(f"s_sub_u32 s22, s22, L_pc-{NAME}")
        a("s_subb_u32 s23, s23, 0")
        a(f"v_lshlrev_b32 v{vT1}, 7, v0")
        a(f"v_min_u32 v{vT0}, L_end-{NAME}, v{vT1}")
        a(f"global_load_dword v{vC}, v{vT0}, s[22:23]")
        a(f"v_add_u32 v{vT1}, 8192, v{vT1}")
        a(f"v_min_u32 v{vT1}, L_end-{NAME}, v{vT1}")
        a(f"global_load_dword v{vG}, v{vT1}, s[22:23]")
    a.c("hand-off addresses and constants")
    a(f"s_lshl_b32 s{sHB}, s{sHead}, 13")
    a(f"s_lshl_b32 s{sSlot}, s{sSplit}, 9")
    a(f"s_add_u32 s{sSlot}, s{sSlot}, s{sHB}")
    a(f"s_lshl_b32 s{sDbg}, s{sHead}, 2")
    a(f"s_mov_b32 s{sRole}, s{sSplit}")
    a(f"s_getreg_b32 s{sMine}, hwreg(HW_REG_XCC_ID, 0, 4)")
    a(f"s_or_b32 s{sMine}, s{sMine}, 0x100")
    a(f"s_mov_b32 s{sChk}, 0")
    a(f"s_mov_b32 s{sOwn}, 0x01010101")
    a(f"s_mov_b32 s{sOwn+1}, s{sOwn}")
    a(f"v_lshl_add_u32 v{vQS}, v0, 3, s{sSlot}")
    a(f"v_min_u32 v{vX}, 32, v0")
    a(f"v_lshl_add_u32 v{vX}, v{vX}, 7, s{sHB}")
    a(f"v_lshl_add_u32 v{vQA}, v0, 3, s{sHB}")
    a(f"v_lshl_add_u32 v{vQB}, v0, 4, s{sHB}")
    a(f"s_add_u32 s3, s{sHB}, 4096")
    a(f"v_and_b32 v{vQC}, 7, v0")
    a(f"v_lshl_add_u32 v{vQC}, v{vQC}, 3, s3")
    a(f"s_lshl_b32 s21, s{sSplit}, 3")
    a(f"s_add_u32 s21, s21, s3")
    a(f"v_mov_b32 v{vQD}, s21")
    for k in range(4):
        a(f"v_mov_b32 v{vQ+k}, -1")
    a(f"s_lshl_b32 s{sOut}, s{sHead}, 8")
    a(f"v_and_b32 v{vLA}, {NW-1}, v0")
    a(f"v_lshlrev_b32 v{vLA}, 3, v{vLA}")
    a(f"v_lshlrev_b32 v{vK}, 3, v0")
    a(f"v_lshl_add_u32 v{vV}, v0, 2, s{sOut}")
    a(f"s_cmp_lg_u32 s{sRole}, 0")
    a("s_waitcnt lgkmcnt(0)")
    tstamp(1)
    a("s_cbranch_scc1 L_barA")
    a.c("collector: bring the hand-off lines into its L2, mark every word as empty, then announce the die")
    a(f"global_load_dword v{vX}, v{vX}, s[14:15] sc1")
    a("s_waitcnt vmcnt(0)")
    if not o["noclr"]:
        for k in range(4):
            a(f"global_store_dwordx4 v{vQB}, v[{vQ}:{vQ+3}], s[14:15] offset:{k*1024}")
        a(f"global_store_dwordx2 v{vQC}, v[{vQ}:{vQ+1}], s[14:15]")
    a(f"v_mov_b32 v{vT0}, s{sDbg}")
    a(f"v_mov_b32 v{vT1}, s{sMine}")
    a("s_mov_b64 exec, 1")
    a("s_waitcnt vmcnt(0)")
    if o["noflg"] == 0:
        a(f"global_store_dword v{vT0}, v{vT1}, s[12:13] sc1")
    elif o["noflg"] == 2:
        a(f"s_mov_b32 s3, s{sMine}")
        a(f"s_atomic_or s3, s[12:13], s{sDbg}")
    elif o["noflg"] == 3:
        a(f"global_store_dword v{vT0}, v{vT1}, s[12:13]")
    a("s_mov_b64 exec, -1")
    a.label("L_barA")
    a("s_barrier")
    a(f"s_load_dword s{sChk}, s[12:13], s{sDbg}")
    a(f"ds_read_b64 v[{vM}:{vL}], v{vLA} offset:{NW*512}")
    a("s_waitcnt vmcnt(0) lgkmcnt(0)")
    a.c("workgroup maximum, per-wave factors and workgroup sum")
    a(f"v_max_f32_dpp v{vT0}, v{vM}, v{vM} row_ror:1 row_mask:0xf bank_mask:0xf")
    a("s_nop 1")
    a(f"v_max_f32_dpp v{vT0}, v{vT0}, v{vT0} row_ror:2 row_mask:0xf bank_mask:0xf")
    a(f"v_sub_f32 v{vC}, v{vM}, v{vT0}")
    a(f"v_exp_f32 v{vC}, v{vC}")
    a(f"v_min_u32 v{vM}, -2, v{vT0}")
    a(f"v_mul_f32 v{vL}, v{vL}, v{vC}")
    a("s_nop 1")
    a(f"v_add_f32_dpp v{vL}, v{vL}, v{vL} row_ror:1 row_mask:0xf bank_mask:0xf")
    a("s_nop 1")
    a(f"v_add_f32_dpp v{vL}, v{vL}, v{vL} row_ror:2 row_mask:0xf bank_mask:0xf")
    if o["noflg"] == 1:
        a(f"s_mov_b32 s{sChk}, s{sMine}")
    if o["forceslow"] == 1:
        a(f"s_mov_b32 s{sChk}, 0")
    elif o["forceslow"] == 2:
        a(f"s_bitcmp1_b32 s{sSplit}, 0")
        a(f"s_cselect_b32 s{sChk}, 0, s{sChk}")
    a(f"s_mov_b32 s{sCap}, {o['cap']}")
    a(f"s_mov_b32 s{sDone}, 0")
    a(f"v_min_u32 v{vL}, -2, v{vL}")
    a.c("role: 0 collect, 1 hand over through the shared L2, 2 hand over through memory")
    a(f"s_cmp_eq_u32 s{sChk}, s{sMine}")
    a(f"s_cselect_b32 s{sChk}, 1, 2")
    a(f"s_cmp_eq_u32 s{sRole}, 0")
    a(f"s_cselect_b32 s{sRole}, 0, s{sChk}")
    a(f"s_cmp_lg_u32 s{sRole}, 1")
    a("s_cbranch_scc1 L_notfast")
    a("s_mov_b64 exec, 1")
    a(f"global_store_dwordx2 v{vQD}, v[{vM}:{vL}], s[14:15]")
    a("s_mov_b64 exec, -1")
    a("s_branch L_barB")
    a.label("L_notfast")
    if o["pre"]:
        a(f"s_cmp_lg_u32 s{sRole}, 0")
        a("s_cbranch_scc1 L_barB")
        a.c("collector: try to get all (m, l) now, so that only the sums are left for the end")
        a(f"s_mov_b32 s3, {o['pre']}")
        a.label("L_mlpoll")
        a(f"global_load_dwordx2 v[{vQM}:{vQL}], v{vQC}, s[14:15] sc1")
        a("s_waitcnt vmcnt(0)")
        a(f"v_cndmask_b32 v{vQM}, v{vQM}, v{vM}, s[{sOwn}:{sOwn+1}]")
        a(f"v_cndmask_b32 v{vQL}, v{vQL}, v{vL}, s[{sOwn}:{sOwn+1}]")
        a(f"v_max_u32 v{vT0}, v{vQM}, v{vQL}")
        a(f"v_cmp_eq_u32 vcc, -1, v{vT0}")
        a("s_cbranch_vccz L_mlready")
        a("s_sub_u32 s3, s3, 1")
        a("s_cmp_lg_u32 s3, 0")
        a("s_cbranch_scc1 L_mlpoll")
        a("s_branch L_barB")
        a.label("L_mlready")
        a(f"v_max_f32_dpp v{vT0}, v{vQM}, v{vQM} row_ror:1 row_mask:0xf bank_mask:0xf")
        for k in (2, 4):
            a("s_nop 1")
            a(f"v_max_f32_dpp v{vT0}, v{vT0}, v{vT0} row_ror:{k} row_mask:0xf bank_mask:0xf")
        a(f"v_sub_f32 v{vG}, v{vQM}, v{vT0}")
        a(f"v_exp_f32 v{vG}, v{vG}")
        a("s_nop 0")
        a(f"v_mul_f32 v{vT0}, v{vQL}, v{vG}")
        for k in (1, 2, 4):
            a("s_nop 1")
            a(f"v_add_f32_dpp v{vT0}, v{vT0}, v{vT0} row_ror:{k} row_mask:0xf bank_mask:0xf")
        a(f"v_rcp_f32 v{vT0}, v{vT0}")
        a(f"s_mov_b32 s{sRole}, -1")
        a(f"v_mul_f32 v{vG}, v{vG}, v{vT0}")
        a("s_barrier")
        tstamp(6)
        for w in range(NW):
            a(f"ds_read_b64 v[{vRing+2*w}:{vRing+2*w+1}], v{vK} offset:{w*512}")

        def oissue(base):
            for w in range(1, S):
                a(f"global_load_dwordx2 v[{base+2*w}:{base+2*w+1}], v{vQA}, s[14:15] offset:{w * 512} sc1")

        def ocheck(base, extra, lab):
            for h in range(2):
                a(f"v_mul_f32_dpp v{vO+2+h}, v{vG}, v{vO+h} row_newbcast:0 row_mask:0xf bank_mask:0xf")
            for w in range(1, S):
                a(f"s_waitcnt vmcnt({S-1-w+extra})")
                if w == 1:
                    a(f"v_max_u32 v{vT0}, v{base+2}, v{base+3}")
                else:
                    a(f"v_max3_u32 v{vT0}, v{vT0}, v{base+2*w}, v{base+2*w+1}")
                if w == S - 1:
                    a(f"v_cmp_eq_u32 vcc, -1, v{vT0}")
                for h in range(2):
                    a(f"v_fmac_f32_dpp v{vO+2+h}, v{vG}, v{base+2*w+h} row_newbcast:{w} row_mask:0xf bank_mask:0xf")
            a(f"v_cvt_pk_bf16_f32 v{vT1}, v{vO+2}, v{vO+3}")
            a(f"s_cbranch_vccz {lab}")

        def ofinal(base):
            tstamp(8)
            a(f"global_store_dword v{vV}, v{vT1}, s[10:11]")
            a("s_branch L_stored" if (tl or amp) else "s_endpgm")
        oissue(vQ)
        for w in range(NW):
            a(f"s_waitcnt lgkmcnt({0 if tl else NW - 1 - w})")
            op = "v_mul_f32_dpp" if w == 0 else "v_fmac_f32_dpp"
            for h in range(2):
                a(f"{op} v{vO+h}, v{vC}, v{vRing+2*w+h} row_newbcast:{w} row_mask:0xf bank_mask:0xf")
        tstamp(7)
        if not o["pipe"]:
            a.label("L_opoll")
            ocheck(vQ, 0, "L_oready")
            oissue(vQ)
            a(f"s_sub_u32 s{sCap}, s{sCap}, 1")
            a(f"s_cmp_lg_u32 s{sCap}, 0")
            a("s_cbranch_scc1 L_opoll")
            a("s_branch L_fin")
            a.label("L_oready")
            ofinal(vQ)
        else:
            vQ2 = vRing + 16
            a.label("L_opoll")
            oissue(vQ2)
            ocheck(vQ, 7, "L_oready")
            oissue(vQ)
            ocheck(vQ2, 7, "L_oready2")
            a(f"s_sub_u32 s{sCap}, s{sCap}, 1")
            a(f"s_cmp_lg_u32 s{sCap}, 0")
            a("s_cbranch_scc1 L_opoll")
            a("s_branch L_fin")
            a.label("L_oready")
            a.label("L_oready2")
            ofinal(vQ)
    a.label("L_barB")
    a(f"s_cmp_eq_u32 s{sRole}, 0")
    a("s_barrier")
    tstamp(6)
    for w in range(NW):
        a(f"ds_read_b64 v[{vRing+2*w}:{vRing+2*w+1}], v{vK} offset:{w*512}")
    if o["spec"]:
        a("s_cbranch_scc0 L_nospec")
        poll_issue()
        a.label("L_nospec")
    for w in range(NW):
        a(f"s_waitcnt lgkmcnt({0 if tl else NW - 1 - w})")
        op = "v_mul_f32_dpp" if w == 0 else "v_fmac_f32_dpp"
        for h in range(2):
            a(f"{op} v{vO+h}, v{vC}, v{vRing+2*w+h} row_newbcast:{w} row_mask:0xf bank_mask:0xf")
    a(f"s_cmp_lg_u32 s{sRole}, 1")
    a(f"v_min_u32 v{vQ}, -2, v{vO}")
    a(f"v_min_u32 v{vQ+1}, -2, v{vO+1}")
    a("s_cbranch_scc1 L_other")
    a.c("the collector runs on this die and has marked the slot: a plain store meets it in the shared L2")
    a(f"global_store_dwordx2 v{vQS}, v[{vQ}:{vQ+1}], s[14:15]")
    tstamp(7)
    if tl:
        a(f"s_mov_b32 s{sCap}, 0")
    a("s_branch L_fin" if (tl or amp) else "s_endpgm")
    a.label("L_other")
    a(f"s_cmp_lg_u32 s{sRole}, 0")
    a("s_cbranch_scc1 L_slowput")
    tstamp(7)
    if o["spec"]:
        a("s_branch L_check")

    def combine(n, vP, m, l, waitfn):
        lg = int(math.log2(n))
        waitfn("ml")
        a(f"v_max_f32_dpp v{vT0}, v{m}, v{m} row_ror:1 row_mask:0xf bank_mask:0xf")
        for k in range(1, lg):
            a("s_nop 1")
            a(f"v_max_f32_dpp v{vT0}, v{vT0}, v{vT0} row_ror:{1<<k} row_mask:0xf bank_mask:0xf")
        a(f"v_sub_f32 v{vT1}, v{m}, v{vT0}")
        a(f"v_exp_f32 v{vT1}, v{vT1}")
        a(f"v_mov_b32 v{vM}, v{vT0}")
        a(f"v_mul_f32 v{vL}, v{l}, v{vT1}")
        waitfn("o")
        for w in range(n):
            op = "v_mul_f32_dpp" if w == 0 else "v_fmac_f32_dpp"
            for h in range(2):
                a(f"{op} v{vO+h}, v{vT1}, v{vP+2*w+h} row_newbcast:{w} row_mask:0xf bank_mask:0xf")
            if w < lg:
                a(f"v_add_f32_dpp v{vL}, v{vL}, v{vL} row_ror:{1<<w} row_mask:0xf bank_mask:0xf")

    a.label("L_poll")
    poll_issue()
    a.label("L_check")
    a("s_waitcnt vmcnt(7)")
    a(f"v_cndmask_b32 v{vQM}, v{vQM}, v{vM}, s[{sOwn}:{sOwn+1}]")
    a(f"v_cndmask_b32 v{vQL}, v{vQL}, v{vL}, s[{sOwn}:{sOwn+1}]")
    a(f"v_max_u32 v{vT0}, v{vQM}, v{vQL}")
    for w in range(1, S):
        a(f"s_waitcnt vmcnt({S-1-w})")
        a(f"v_max3_u32 v{vT0}, v{vT0}, v{vQ+2*w}, v{vQ+2*w+1}")
    a(f"v_cmp_eq_u32 vcc, -1, v{vT0}")
    a("s_cbranch_vccz L_ready")
    a(f"s_sub_u32 s{sCap}, s{sCap}, 1")
    a(f"s_and_b32 s3, s{sCap}, 7")
    a(f"s_cselect_b32 s3, s{sDone}, 1")
    a(f"s_cmp_eq_u32 s3, 0")
    a("s_cbranch_scc1 L_poll")
    a("s_branch L_slowpoll")
    a.label("L_ready")
    tstamp(8)
    a(f"v_max_f32_dpp v{vT0}, v{vQM}, v{vQM} row_ror:1 row_mask:0xf bank_mask:0xf")
    for k in (2, 4):
        a("s_nop 1")
        a(f"v_max_f32_dpp v{vT0}, v{vT0}, v{vT0} row_ror:{k} row_mask:0xf bank_mask:0xf")
    a(f"v_sub_f32 v{vG}, v{vQM}, v{vT0}")
    a(f"v_exp_f32 v{vG}, v{vG}")
    a("s_nop 0")
    a(f"v_mul_f32 v{vT0}, v{vQL}, v{vG}")
    for k in (1, 2, 4):
        a("s_nop 1")
        a(f"v_add_f32_dpp v{vT0}, v{vT0}, v{vT0} row_ror:{k} row_mask:0xf bank_mask:0xf")
    a(f"v_rcp_f32 v{vT0}, v{vT0}")
    a("s_nop 0")
    a(f"v_mul_f32 v{vG}, v{vG}, v{vT0}")
    a("s_nop 1")
    for w in range(S):
        op = "v_mul_f32_dpp" if w == 0 else "v_fmac_f32_dpp"
        for h in range(2):
            a(f"{op} v{vO+h}, v{vG}, v{vQ+2*w+h} row_newbcast:{w} row_mask:0xf bank_mask:0xf")
    a(f"v_cvt_pk_bf16_f32 v{vO}, v{vO}, v{vO+1}")
    a(f"global_store_dword v{vV}, v{vO}, s[10:11]")
    a.label("L_stored")
    if tl:
        a("s_waitcnt vmcnt(0)")
        tstamp(9)
    if amp:
        a("s_waitcnt vmcnt(0)")
        a(f"v_mov_b32 v{vT0}, 128")
        a(f"v_mov_b32 v{vT1}, 0x10000")
        a("s_mov_b64 exec, 1")
        a(f"global_atomic_add v{vT0}, v{vT1}, s[12:13]")
    a("s_branch L_fin" if (tl or amp) else "s_endpgm")
    a.label("L_slowput")
    a.c("collector on another die, or not announced yet: write through to the second slot set, then flag this split as done")
    a(f"v_add_u32 v{vQS}, {SLOW}, v{vQS}")
    a(f"s_lshl_b32 s3, s{sSplit}, 8")
    a(f"s_add_u32 s3, s3, s{sHB}")
    a(f"s_add_u32 s3, s3, {SLOW + 4096}")
    a(f"v_mov_b32 v{vQD}, s3")
    a(f"global_store_dwordx2 v{vQS}, v[{vQ}:{vQ+1}], s[14:15] sc1")
    a("s_mov_b64 exec, 1")
    a(f"global_store_dwordx2 v{vQD}, v[{vM}:{vL}], s[14:15] sc1")
    a(f"s_lshl_b32 s3, 1, s{sSplit}")
    a(f"v_mov_b32 v{vT0}, s{sDbg}")
    a(f"v_mov_b32 v{vT1}, s3")
    a("s_waitcnt vmcnt(0)")
    a(f"global_atomic_or v{vT0}, v{vT1}, s[12:13] offset:128")
    if tl:
        a(f"s_mov_b32 s{sCap}, 0")
        a(f"s_mov_b32 s71, 100")
    a("s_branch L_fin" if (tl or amp) else "s_endpgm")
    a.label("L_slowpoll")
    a.c("collector: look for splits that used the second slot set")
    a(f"s_cmp_eq_u32 s{sCap}, 0")
    a("s_cbranch_scc1 L_fin")
    a(f"v_mov_b32 v{vT0}, s{sDbg}")
    a(f"global_load_dword v{vT1}, v{vT0}, s[12:13] offset:128 sc1")
    a(f"v_and_b32 v{vT0}, 7, v0")
    a("s_waitcnt vmcnt(0)")
    a(f"v_readfirstlane_b32 s{sDone}, v{vT1}")
    a(f"v_lshrrev_b32 v{vT1}, v{vT0}, v{vT1}")
    a(f"v_and_b32 v{vT1}, 1, v{vT1}")
    a(f"v_cmp_eq_u32 vcc, 1, v{vT1}")
    a(f"s_add_u32 s3, s{sHB}, {SLOW + 4096}")
    a(f"v_lshl_add_u32 v{vT0}, v{vT0}, 8, s3")
    a(f"s_and_b32 s{sDone}, s{sDone}, 0xff")
    a(f"v_cndmask_b32 v{vT1}, v{vQC}, v{vT0}, vcc")
    a(f"global_load_dwordx2 v[{vQM}:{vQL}], v{vT1}, s[14:15] sc1")
    for w in range(1, S):
        a(f"s_bitcmp1_b32 s{sDone}, {w}")
        a(f"s_cselect_b32 s3, {SLOW}, 0")
        a(f"v_add_u32 v{vT1}, s3, v{vQA}")
        a(f"global_load_dwordx2 v[{vQ+2*w}:{vQ+2*w+1}], v{vT1}, s[14:15] offset:{w * 512} sc1")
    a("s_branch L_check")
    a.label("L_fin")
    if tl:
        a("s_mov_b64 exec, -1")
        a("s_getreg_b32 s46, hwreg(HW_REG_XCC_ID)")
        a("s_getreg_b32 s47, hwreg(HW_REG_HW_ID)")
        a("s_waitcnt lgkmcnt(0)")
        a(f"v_mov_b32 v{vT1}, 0")
        for i in range(10):
            a(f"v_writelane_b32 v{vT1}, s{48+2*i}, {i}")
        a(f"v_writelane_b32 v{vT1}, s{sCap}, 11")
        a(f"v_writelane_b32 v{vT1}, s71, 12")
        a(f"v_writelane_b32 v{vT1}, s46, 14")
        a(f"v_writelane_b32 v{vT1}, s47, 15")
        a(f"s_mul_i32 s46, s2, 5")
        a(f"s_add_u32 s46, s46, s{sW}")
        a(f"s_lshl_b32 s46, s46, 6")
        a(f"s_add_u32 s46, s46, 0x100000")
        a(f"v_lshlrev_b32 v{vT0}, 2, v0")
        a(f"v_add_u32 v{vT0}, s46, v{vT0}")
        a("s_mov_b64 exec, 0xffff")
        a(f"global_store_dword v{vT0}, v{vT1}, s[14:15]")
    if amp:
        a.c("diagnostic only: workgroup 0 waits for all heads, then holds for amp x elapsed")
        a(f"s_xor_b32 s44, s{sW}, {NW}")
        a(f"s_or_b32 s44, s44, s2")
        a("s_cmp_lg_u32 s44, 0")
        a("s_cbranch_scc1 L_end")
        a("s_mov_b64 exec, 1")
        a(f"v_mov_b32 v{vT0}, 128")
        a("s_mov_b32 s44, 200000")
        a.label("L_apoll")
        a(f"global_load_dword v{vT1}, v{vT0}, s[12:13] sc1")
        a("s_waitcnt vmcnt(0)")
        a(f"v_readfirstlane_b32 s45, v{vT1}")
        a("s_lshr_b32 s45, s45, 16")
        a("s_sub_u32 s44, s44, 1")
        a("s_cmp_eq_u32 s44, 0")
        a("s_cbranch_scc1 L_end")
        a("s_cmp_lt_u32 s45, 32")
        a("s_cbranch_scc1 L_apoll")
        a("s_memrealtime s[42:43]")
        a("s_waitcnt lgkmcnt(0)")
        a("s_sub_u32 s44, s42, s40")
        a("s_min_u32 s44, s44, 20000")
        if amp > 0:
            a(f"s_mul_i32 s44, s44, {amp}")
        else:
            a("s_getreg_b32 s44, hwreg(HW_REG_XCC_ID, 0, 4)")
            a("s_mul_i32 s44, s44, 10000")
        a("s_add_u32 s40, s42, s44")
        a.label("L_spin")
        a("s_memrealtime s[42:43]")
        a("s_waitcnt lgkmcnt(0)")
        a("s_sub_u32 s42, s42, s40")
        a("s_cmp_lt_i32 s42, 0")
        a("s_cbranch_scc1 L_spin")
    a.label("L_end")
    a("s_endpgm")
    if tl:
        i = next(k for k, ln in enumerate(a.lines) if "s_memrealtime s[48:49]" in ln)
        a.lines.insert(i, "    s_mov_b32 s71, 0")

    lds = NW * 512 + NW * 8
    out = HEADER
    if o["noclr"]:
        out += "; hostclear\n"
    out += f"; @launch grid=({NWG},1,1) block=({NW*64+64},1,1) lds={lds}\n"
    out += '.amdgcn_target "amdgcn-amd-amdhsa--gfx950"\n.text\n'
    out += f".globl {NAME}\n.p2align 8\n.type {NAME},@function\n{NAME}:\n"
    out += "\n".join(a.lines) + "\n"
    acc = (nv + 3) // 4 * 4
    out += f""".section .rodata,"a"
.p2align 6
.amdhsa_kernel {NAME}
  .amdhsa_next_free_vgpr {nv}
  .amdhsa_next_free_sgpr {96 if kpat else (72 if tl else 48)}
  .amdhsa_accum_offset {acc}
  .amdhsa_group_segment_fixed_size 0
  .amdhsa_kernarg_size 48
  .amdhsa_user_sgpr_count 2
  .amdhsa_user_sgpr_kernarg_segment_ptr 1
  .amdhsa_system_sgpr_workgroup_id_x 1
  .amdhsa_float_denorm_mode_32 3
.end_amdhsa_kernel
"""
    return out


if __name__ == "__main__":
    p = argparse.ArgumentParser()
    p.add_argument("-o", required=True)
    for k, d in DEFAULTS.items():
        p.add_argument("--" + k, type=type(d), default=d)
    args = vars(p.parse_args())
    fn = args.pop("o")
    open(fn, "w").write(gen(**args))
```

```python
import argparse
import math
from gen1 import HEADER, NAME, Asm, f2u

G1 = "j0^w0^t3 w1 j2^t0 j2 t1 j0 t2 j4 t3 j3 x1 x2 x0 j1"
H1F = "j2^w0^t3 w1 j2^t0 j2 t1^t3 j3 t2 j4^j2 t3 j1 x0 x1 x2 j0"
H1 = "j4^w0^t3 w1 j4^t0 j4 t1^t3 j3 t2 j2^j4 t3 j0 x0 x2 x1 j1"
DEFAULTS = dict(R=2, R2=0, pol="nt", pat=H1, kvmode=0, tl=0, amp=0, pf=1, barA=27, prio=3, noclr=0, noflg=3, pre=8, pipe=1, ua=10, ub=11, spread=2, mode=0, mode2=0,
                chkmode=0, spec=1, forceslow=0, qpos=1, fine=1, kpat=0, cap=0x1000000, psel=0, iodfix=1, xrot=0, pst=0, fastpro=0, halves=1, sched='', wprio='')

DOC = """;
; stores, then writes 0x100 | die id to d_debug[head]. A split that reads its own die id there shares the
"""

NW, S, T = 4, 8, 16
NWG = 256
NAMES = ["x0", "x1", "x2", "j0", "j1", "j2", "j3", "j4", "w0", "w1", "t0", "t1", "t2", "t3"]


def rank(ms):
    ms = list(ms)
    r = 0
    for bit in range(14):
        pv = next((m for m in ms if m >> bit & 1), None)
        if pv is None:
            continue
        ms.remove(pv)
        ms = [m ^ pv if m >> bit & 1 else m for m in ms]
        r += 1
    return r


def columns(pat, ua=10, ub=11):
    rows = []
    for tm in pat.replace(",", " ").split()[:14]:
        m = 0
        for n in tm.split("^"):
            m ^= 1 << NAMES.index(n)
        rows.append(m)
    assert rank(rows) == 14 and not any(m >> 8 for m in rows[9:])
    sp = []
    for bit in range(8):
        if rank(rows[9:] + sp + [1 << bit]) == 5 + len(sp) + 1:
            sp.append(1 << bit)
    rows += sp
    bits = [b - 10 for b in range(10, 26) if b not in (ua, ub)] + [16, 17, 18]
    return [sum(((rows[pos] >> i) & 1) << bits[pos] for pos in range(17)) for i in range(14)]


def gen(**kw):
    o = dict(DEFAULTS)
    o.update(kw)
    tl, amp, kvmode, kpat = o["tl"], o["amp"], o["kvmode"], o["kpat"]
    pol = (" " + o["pol"]) if o["pol"] else ""
    ua, ub = o["ua"], o["ub"]
    assert ua < ub < 21 and kvmode == 0
    col = columns(o["pat"], ua, ub)
    SLOW = 0x40000
    Rmax = max(o["R"], o["R2"])
    a = Asm()
    vK, vV, vT0, vT1, vC, vM, vL = 1, 2, 3, 4, 5, 6, 7
    vD, vO, vMask, vA = 8, 12, 16, 20
    vS = 36
    vQ = 52
    vQM, vQL = 68, 69
    vQA, vQB, vQC, vQS = 70, 71, 72, 73
    vLA, vTS, vX, vQD, vG = 74, 75, 76, 77, 78
    vRing = 80
    sched = dict((int(x.split(":")[0]), int(x.split(":")[1])) for x in o["sched"].split(",") if x)
    NSLOT = max([Rmax + (1 if 1 in (o['mode'], o['mode2']) else 0)] + list(sched.values()))
    nv = vRing + 16 * NSLOT

    def window(n, R):
        w = R
        for k in sorted(sched):
            if n >= k:
                w = sched[k]
        return w
    assert nv <= 256
    sW, sHead, sSplit, sBase, sOut = 16, 17, 18, 19, 20
    sMc = 22
    sHB, sSlot, sDbg = 24, 25, 26
    sRole = 28
    sMine, sDone, sCap, sChk = 30, 31, 32, 33
    sOwn = 34

    def tstamp(i):
        if tl:
            a(f"s_memrealtime s[{48+2*i}:{49+2*i}]")

    def tmask(i):
        m = 0
        for b in range(4):
            if i >> b & 1:
                m ^= col[10 + b]
        return m << 10

    kstep, vstep = (1024, 256) if kvmode == 0 else (256, 1024)

    if o["fastpro"]:
        assert not kpat and (ua, ub) == (10, 11)
        a("s_load_dwordx8 s[4:11], s[0:1], 0")
        a("s_load_dwordx4 s[12:15], s[0:1], 32")
        if amp:
            a("s_memrealtime s[40:41]")
        if tl:
            for i in range(1, 10):
                a(f"s_mov_b32 s{48+2*i}, 0")
            a(f"s_mov_b32 s{sCap}, 0")
        tstamp(0)
        a(f"v_lshrrev_b32 v{vT0}, 6, v0")
        a(f"s_cmpk_ge_u32 s2, {NWG}")
        a(f"v_readfirstlane_b32 s{sW}, v{vT0}")
        a("s_cbranch_scc1 L_end")
        a.c("workgroup id bits -> head (address bits 21..25) and split; the ids of one head are 8 apart")
        a(f"s_bfe_u32 s3, s2, 0x10004")
        a(f"s_and_b32 s{sHead}, s2, 15")
        a(f"s_lshl1_add_u32 s{sHead}, s{sHead}, s3")
        a(f"s_lshr_b32 s{sSplit}, s2, 5")
        a(f"v_and_b32 v0, 63, v0")
        a(f"s_cmp_eq_u32 s{sW}, {NW}")
        a("s_cbranch_scc1 L_finisher")
        a.c("first tile of this wave: split, wave and die bits are xor-ed into address bits 12..20 so that")
        a.c("the tiles in flight spread evenly over memory stacks and banks (speed only)")
        a("s_getreg_b32 s3, hwreg(HW_REG_XCC_ID, 2, 1)")
        a("s_bfe_u32 s21, s2, 0x10001")
        a("s_xor_b32 s3, s3, s21")
        a(f"s_mul_i32 s3, s3, {col[13]}")
        a(f"s_lshl2_add_u32 s{sBase}, s{sW}, 0" if False else f"s_lshl_b32 s{sBase}, s{sW}, 2")
        a(f"s_xor_b32 s{sBase}, s{sBase}, s3")
        for b in (5, 6, 7):
            a(f"s_bitcmp1_b32 s2, {b}")
            a(f"s_cselect_b32 s3, {col[b] & 0xffff}, 0")
            a(f"s_xor_b32 s{sBase}, s{sBase}, s3")
        a(f"s_lshl_b32 s3, s{sHead}, 11")
        a(f"s_or_b32 s{sBase}, s{sBase}, s3")
        a(f"s_lshl_b32 s{sBase}, s{sBase}, 10")
        rows = o["pat"].split()
        assert rows[9:14] == ["j1", "x0", "x1", "x2", "j0"] and col[8] == 4 and col[9] == 8
        assert all((col[b] & 0x7ff) == 0 for b in range(5))
    else:
        a(f"s_cmpk_ge_u32 s2, {NWG}")
        a("s_cbranch_scc1 L_end")
        a("s_load_dwordx8 s[4:11], s[0:1], 0")
        a("s_load_dwordx4 s[12:15], s[0:1], 32")
        if kpat:
            a("s_load_dwordx16 s[76:91], s[0:1], 48")
        if amp:
            a("s_memrealtime s[40:41]")
        if tl:
            for i in range(1, 10):
                a(f"s_mov_b32 s{48+2*i}, 0")
            a(f"s_mov_b32 s{sCap}, 0")
        tstamp(0)
        a(f"v_lshrrev_b32 v{vT0}, 6, v0")
        if o["pf"]:
            a.c("pull the kernel's own code into L2 while the kernel arguments are on their way")
            a("s_getpc_b64 s[22:23]")
            a(f"v_lshlrev_b32 v{vT1}, 7, v0")
            a(f"v_min_u32 v{vT1}, L_end-.-64, v{vT1}")
            a.vmem(f"global_load_dword v{vC}, v{vT1}, s[22:23]", "pf")
        else:
            a("s_nop 0")
        a(f"v_readfirstlane_b32 s{sW}, v{vT0}")
        a(f"v_and_b32 v0, 63, v0")
        a.c("(workgroup, wave) -> first tile, head and split: an xor-linear map of the id bits")
        a(f"s_lshl_b32 s21, s{sW}, 8")
        if o["xrot"]:
            a(f"s_add_u32 s3, s2, {o['xrot']}")
            a("s_and_b32 s3, s3, 7")
            a("s_and_b32 s23, s2, 0xf8")
            a("s_or_b32 s23, s23, s3")
            a(f"s_or_b32 s21, s21, s23")
        else:
            a(f"s_or_b32 s21, s21, s2")
        if kpat:
            a("s_waitcnt lgkmcnt(0)")
        for b in range(10):
            src = f"s{76+b}" if kpat else str(col[b])
            a(f"s_bitcmp1_b32 s21, {b}")
            if b == 0:
                a(f"s_cselect_b32 s{sBase}, {src}, 0")
            else:
                a(f"s_cselect_b32 s3, {src}, 0")
                a(f"s_xor_b32 s{sBase}, s{sBase}, s3")
        if o["iodfix"]:
            a.c("order of this wave's own tiles follows the die it really runs on (speed only)")
            a("s_getreg_b32 s3, hwreg(HW_REG_XCC_ID, 0, 4)")
            a("s_xor_b32 s3, s3, s21")
            a("s_bitcmp1_b32 s3, 2")
            a(f"s_cselect_b32 s3, {col[13]}, 0")
            a(f"s_xor_b32 s{sBase}, s{sBase}, s3")
        if kpat:
            for b in range(4):
                a(f"s_and_b32 s{86+b}, s{86+b}, {0x1ffc00 & ~((1 << ua) | (1 << ub))}")
        a(f"s_bfe_u32 s{sSplit}, s{sBase}, 0x30010")
        a(f"s_bfe_u32 s{sHead}, s{sBase}, 0x5000b")
        a(f"s_and_b32 s{sBase}, s{sBase}, {0xffff & ~((1 << (ua - 10)) | (1 << (ub - 10)))}")
        a(f"s_lshl_b32 s{sBase}, s{sBase}, 10")
        a(f"s_cmp_eq_u32 s{sW}, {NW}")
        a("s_cbranch_scc1 L_finisher")
    a.c("lane patterns: lane = (g, a, b) for K and q, (g, c) for V")
    a(f"v_and_b32 v{vT1}, 3, v0")
    a(f"v_lshlrev_b32 v{vT1}, 4, v{vT1}")
    a(f"v_and_b32 v{vM}, 48, v0")
    a(f"v_lshl_add_u32 v{vT1}, v{vM}, 2, v{vT1}")
    a(f"v_and_b32 v{vL}, 12, v0")
    a(f"v_lshlrev_b32 v{vL}, {6 if kvmode == 0 else 8}, v{vL}")
    a(f"v_add3_u32 v{vK}, v{vL}, v{vT1}, s{sBase}")
    a(f"s_lshl_b32 s{sOut}, s{sHead}, 8")
    a(f"v_add_u32 v{vT1}, s{sOut}, v{vT1}")
    if o["R2"]:
        if o["psel"] == 0:
            a("s_bitcmp1_b32 s2, 0")
        else:
            a("s_getreg_b32 s3, hwreg(HW_REG_XCC_ID, 0, 4)")
            a("s_bitcmp1_b32 s3, 0")
    if o["pst"]:
        tstamp(2)
    a("s_waitcnt lgkmcnt(0)")
    tstamp(1)
    if o["R2"]:
        a("s_cbranch_scc1 L_body1")
    vm0 = list(a.vm)

    def poll_issue():
        a(f"global_load_dwordx2 v[{vQM}:{vQL}], v{vQC}, s[14:15] sc1")
        for w in range(1, S):
            a(f"global_load_dwordx2 v[{vQ+2*w}:{vQ+2*w+1}], v{vQA}, s[14:15] offset:{w * 512} sc1")

    def body(R, sfx, mode):
        a.vm = list(vm0)

        def slot(n):
            return vRing + 16 * (n % (NSLOT if sched else R + (1 if mode == 1 else 0)))

        nxt = [0]

        def refill(n):
            st = 0
            while nxt[0] < min(2 * T, n + 1 + window(n, R)):
                st += issue_tile(nxt[0])
                nxt[0] += 1
            return st

        his = sorted({(((t & 1) << ua) + ((t >> 1) << ub)) & ~0xfff for t in range(4)} - {0})
        kb = {hi: 24 + 2 * i for i, hi in enumerate(his)}
        made = set()

        def issue_tile(n):
            isK = n < T
            i = n if isK else n - T
            va, base, step = (vK, "s[6:7]", kstep) if isK else (vV, "s[8:9]", vstep)
            if i > 0:
                if kpat:
                    a(f"v_xor_b32 v{va}, s{86 + (i ^ (i - 1)).bit_length() - 1}, v{va}")
                else:
                    a(f"v_xor_b32 v{va}, {tmask(i) ^ tmask(i - 1)}, v{va}")
            r = slot(n)
            for t in range(4):
                if isK:
                    d = ((t & 1) << ua) + ((t >> 1) << ub)
                    hi = d & ~0xfff
                    bs = "s[6:7]" if not hi else f"s[{kb[hi]}:{kb[hi]+1}]"
                    if hi and n == 0 and hi not in made:
                        a(f"s_add_u32 s{kb[hi]}, s6, {hi}")
                        a(f"s_addc_u32 s{kb[hi]+1}, s7, 0")
                        made.add(hi)
                    off = f" offset:{d & 0xfff}" if d & 0xfff else ""
                else:
                    bs = base
                    off = f" offset:{t*256}" if t else ""
                a.vmem(f"global_load_dwordx4 v[{r+4*t}:{r+4*t+3}], v{va}, {bs}{off}{pol}", ("t", n, t))
            return 4 + (1 if i > 0 else 0)

        def cond_issue(n, site):
            lab = f"L_skip{site}{n}{sfx}"
            a(f"s_bitcmp{'0' if site == 'A' else '1'}_b32 s37, 0")
            a(f"s_cbranch_scc1 {lab}")
            keep = list(a.vm)
            issue_tile(n)
            if site == "A":
                a.vm = keep
            a.label(lab)
            return 2

        def side_work(n):
            if n == (o["barA"] or 2 * T - R - 1):
                a.c("barrier A: the (m, l) of all four waves are in LDS, the finishing wave may use them")
                a("s_waitcnt lgkmcnt(0)")
                a("s_barrier")
                return 2
            return 0

        for n in range(window(-1, R)):
            issue_tile(n)
            nxt[0] = n + 1
            if n + 1 == o["qpos"] or (n == 0 and o["qpos"] == 0):
                a.vmem(f"global_load_dwordx4 v[{vD}:{vD+3}], v{vT1}, s[4:5]", "q")
        if not o["pst"]:
            tstamp(2)
        if mode == 3:
            a("s_getreg_b32 s37, hwreg(HW_REG_XCC_ID, 0, 1)")
            if o["psel"] == 2:
                a("s_xor_b32 s37, s37, 1")
        if o["wprio"]:
            for w, pr in enumerate(o["wprio"]):
                if pr != "0":
                    a(f"s_cmp_lg_u32 s{sW}, {w}")
                    a(f"s_cbranch_scc1 L_pr{w}{sfx}")
                    a(f"s_setprio {pr}")
                    a.label(f"L_pr{w}{sfx}")
        if kvmode == 0:
            a(f"v_and_b32 v{vL}, 15, v0")
            a(f"v_lshlrev_b32 v{vL}, 4, v{vL}")
            if (ua, ub) == (10, 11):
                a(f"v_lshl_add_u32 v{vV}, v{vM}, 6, v{vL}")
            else:
                a(f"v_and_b32 v{vV}, 16, v0")
                a(f"v_lshl_add_u32 v{vL}, v{vV}, {ua - 4}, v{vL}")
                a(f"v_and_b32 v{vV}, 32, v0")
                a(f"v_lshl_add_u32 v{vV}, v{vV}, {ub - 5}, v{vL}")
            a(f"v_add_u32 v{vV}, s{sBase}, v{vV}")
        else:
            a(f"v_lshl_add_u32 v{vV}, v0, 4, s{sBase}")
        a.c("LDS address of this wave's partial: w*512 + c*32 + (g&1)*16")
        a(f"v_and_b32 v{vT0}, 15, v0")
        a(f"v_lshlrev_b32 v{vT0}, 5, v{vT0}")
        a(f"v_and_b32 v{vLA}, 16, v0")
        a(f"s_lshl_b32 s3, s{sW}, 9")
        a(f"v_add3_u32 v{vLA}, v{vT0}, v{vLA}, s3")
        a.c("half-word masks that place p on the diagonal of the P operand")
        a(f"v_and_b32 v{vT0}, 1, v0")
        a(f"v_lshlrev_b32 v{vT0}, 4, v{vT0}")
        a(f"s_mov_b32 s3, 0xffff")
        a(f"v_lshlrev_b32 v{vT0}, v{vT0}, s3")
        a(f"s_mov_b32 vcc_lo, 0x03030303")
        a(f"s_mov_b32 vcc_hi, vcc_lo")
        for i in range(4):
            a(f"v_cndmask_b32 v{vMask+i}, 0, v{vT0}, vcc")
            if i < 3:
                a(f"s_lshl_b64 vcc, vcc, 2")
        a(f"s_mov_b32 vcc_lo, 0x000f000f")
        a(f"s_mov_b32 vcc_hi, vcc_lo")
        a.wait_tag("q")
        cval = math.log2(math.e) / math.sqrt(128.0)
        a(f"v_mov_b32 v{vC}, 0x{f2u(cval):08x}")
        a.c("q operand t is q in rows 4t..4t+3 and zero elsewhere")
        for t in range(4):
            for i in range(4):
                a(f"v_cndmask_b32 v{vA+4*t+i}, 0, v{vD+i}, vcc")
            if t < 3:
                a(f"s_lshl_b64 vcc, vcc, 4")

        def wait_tile(n, t=3):
            if any(x == ("t", n, t) for x in a.vm):
                a.wait_tag(("t", n, t))
                return 1
            return 0

        for n in range(T):
            a.c(f"K tile {n}")
            w = wait_tile(n)
            if n == 0:
                a("s_nop 0" if w else "s_nop 1")
                tstamp(3)
            r = slot(n)
            if mode == 1:
                issue_tile(n + R)
            for t in range(4):
                cin = "0" if t == 0 else f"v[{vD}:{vD+3}]"
                a(f"v_mfma_f32_16x16x32_bf16 v[{vD}:{vD+3}], v[{vA+4*t}:{vA+4*t+3}], v[{r+4*t}:{r+4*t+3}], {cin}")
            st = refill(n) if mode == 0 else 0
            if mode == 3:
                st = cond_issue(n + R, "A")
            st += side_work(n)
            if st < 8:
                a(f"s_nop {8 - st - 1}")
            s = vS + n
            a(f"v_mov_b32_dpp v{s}, v{vD} quad_perm:[0,0,0,0] row_mask:0xf bank_mask:0xf")
            a(f"v_mov_b32_dpp v{vT0}, v{vD+1} quad_perm:[1,1,1,1] row_mask:0xf bank_mask:0xf")
            a("s_nop 0")
            a(f"v_add_f32_dpp v{s}, v{vD+2}, v{s} quad_perm:[2,2,2,2] row_mask:0xf bank_mask:0xf")
            a(f"v_add_f32_dpp v{vT0}, v{vD+3}, v{vT0} quad_perm:[3,3,3,3] row_mask:0xf bank_mask:0xf")
            a(f"v_add_f32 v{s}, v{s}, v{vT0}")
            if mode == 2:
                issue_tile(n + R)
            if mode == 3:
                cond_issue(n + R, "B")
            if n == 1:
                a(f"v_max_f32 v{vM}, v{vS}, v{vS+1}")
            elif n > 1 and n % 2 == 1:
                a(f"v_max3_f32 v{vM}, v{vM}, v{s-1}, v{s}")
        a.c("true maximum of this wave's scores")
        tstamp(4)
        red = ("row_ror:4 row_mask:0xf", "row_ror:8 row_mask:0xf", "row_bcast:15 row_mask:0xa", "row_bcast:31 row_mask:0xc")
        for ctl in red:
            a("s_nop 1")
            a(f"v_max_f32_dpp v{vM}, v{vM}, v{vM} {ctl} bank_mask:0xf")
        a(f"v_mul_f32 v{vM}, v{vC}, v{vM}")
        a("s_nop 0")
        a(f"v_readlane_b32 s{sMc}, v{vM}, 63")
        a("s_nop 1")
        def probs(lo, hi):
            for n in range(lo, hi):
                a(f"v_fma_f32 v{vS+n}, v{vS+n}, v{vC}, -s{sMc}")
            for n in range(lo, hi):
                a(f"v_exp_f32 v{vS+n}, v{vS+n}")
            if lo == 0:
                a(f"v_mov_b32 v{vM}, s{sMc}")
                a(f"v_mov_b32 v{vL}, v{vS}")
            else:
                a("s_nop 0")
            for n in range(max(lo, 1), hi):
                if o["halves"] and n == T // 2:
                    a(f"v_mov_b32 v{vT1}, v{vS+n}")
                elif o["halves"] and n > T // 2:
                    a(f"v_add_f32 v{vT1}, v{vT1}, v{vS+n}")
                else:
                    a(f"v_add_f32 v{vL}, v{vL}, v{vS+n}")
            if o["halves"] and hi == T:
                a(f"v_add_f32 v{vL}, v{vL}, v{vT1}")
            for n in range(lo, hi):
                a(f"v_cvt_pk_bf16_f32 v{vS+n}, v{vS+n}, v{vS+n}")

        def publish_ml():
            for ctl in red:
                a(f"v_add_f32_dpp v{vL}, v{vL}, v{vL} {ctl} bank_mask:0xf")
                a("s_nop 1")
            a(f"s_lshl_b32 s3, s{sW}, 3")
            a(f"v_mov_b32 v{vT0}, s3")
            a(f"s_brev_b64 exec, 1")
            a(f"ds_write_b64 v{vT0}, v[{vM}:{vL}] offset:{NW*512}")
            a(f"s_mov_b64 exec, -1")
        sp = o["spread"]
        if not sp:
            probs(0, T)
            publish_ml()
        else:
            probs(0, 1)
            a("s_nop 1")
        for i in range(T):
            n = T + i
            a.c(f"V tile {i}")
            for u in range(4):
                for j in range(4):
                    a(f"v_and_b32_dpp v{vA+4*u+j}, v{vS+i}, v{vMask+j} row_newbcast:{4*u} row_mask:0xf bank_mask:0xf")
            if mode == 2 and i > 0 and n - 1 + R < 2 * T:
                issue_tile(n - 1 + R)
            if mode == 3 and i > 0 and n - 1 + R < 2 * T:
                cond_issue(n - 1 + R, "B")
            fine = o["fine"] and i == T - 1
            if not fine:
                wait_tile(n)
                a("s_nop 0")
            if mode == 1 and n + R < 2 * T:
                issue_tile(n + R)
            r = slot(n)
            for u in range(4):
                if fine:
                    wait_tile(n, u)
                    if u == 0:
                        a("s_nop 0")
                acc = vD if (o["halves"] and i < T // 2) else vO
                first = u == 0 and (i == 0 or (o["halves"] and i == T // 2))
                cin = "0" if first else f"v[{acc}:{acc+3}]"
                a(f"v_mfma_f32_16x16x32_bf16 v[{acc}:{acc+3}], v[{vA+4*u}:{vA+4*u+3}], v[{r+4*u}:{r+4*u+3}], {cin}")
            if mode == 0:
                refill(n)
            if mode == 3 and n + R < 2 * T:
                cond_issue(n + R, "A")
            if sp:
                lo, hi = 1 + i * sp, min(T, 1 + (i + 1) * sp)
                if lo < T:
                    probs(lo, hi)
                    a("s_nop 1")
                    if hi == T:
                        publish_ml()
            side_work(n)

    body(o["R"], "a", o["mode"])
    if o["R2"]:
        a("s_branch L_join")
        a.label("L_body1")
        body(o["R2"], "b", o["mode2"])
        a.label("L_join")
    a.vm = []
    a("s_nop 7")
    if o["halves"]:
        a.c("the two halves of the keys are summed apart, so their order does not change the result")
        a(f"v_pk_add_f32 v[{vO}:{vO+1}], v[{vO}:{vO+1}], v[{vD}:{vD+1}]")
        a(f"v_pk_add_f32 v[{vO+2}:{vO+3}], v[{vO+2}:{vO+3}], v[{vD+2}:{vD+3}]")
    tstamp(5)
    a(f"ds_write_b128 v{vLA}, v[{vO}:{vO+3}]")
    a("s_waitcnt lgkmcnt(0)")
    a.c("barrier B: the partial outputs of all four waves are in LDS")
    a("s_barrier")
    tstamp(6)
    a("s_branch L_fin" if (tl or amp) else "s_endpgm")

    a.label("L_finisher")
    if o["prio"]:
        a(f"s_setprio {o['prio']}")
    if o["fastpro"] and o["pf"]:
        a.c("pull the kernel's own code into L2 while the kernel arguments are on their way")
        a("s_getpc_b64 s[22:23]")
        a.label("L_pc")
        a(f"s_sub_u32 s22, s22, L_pc-{NAME}")
        a("s_subb_u32 s23, s23, 0")
        a(f"v_lshlrev_b32 v{vT1}, 7, v0")
        a(f"v_min_u32 v{vT0}, L_end-{NAME}, v{vT1}")
        a(f"global_load_dword v{vC}, v{vT0}, s[22:23]")
        a(f"v_add_u32 v{vT1}, 8192, v{vT1}")
        a(f"v_min_u32 v{vT1}, L_end-{NAME}, v{vT1}")
        a(f"global_load_dword v{vG}, v{vT1}, s[22:23]")
    a.c("hand-off addresses and constants")
    a(f"s_lshl_b32 s{sHB}, s{sHead}, 13")
    a(f"s_lshl_b32 s{sSlot}, s{sSplit}, 9")
    a(f"s_add_u32 s{sSlot}, s{sSlot}, s{sHB}")
    a(f"s_lshl_b32 s{sDbg}, s{sHead}, 2")
    a(f"s_mov_b32 s{sRole}, s{sSplit}")
    a(f"s_getreg_b32 s{sMine}, hwreg(HW_REG_XCC_ID, 0, 4)")
    a(f"s_or_b32 s{sMine}, s{sMine}, 0x100")
    a(f"s_mov_b32 s{sChk}, 0")
    a(f"s_mov_b32 s{sOwn}, 0x01010101")
    a(f"s_mov_b32 s{sOwn+1}, s{sOwn}")
    a(f"v_lshl_add_u32 v{vQS}, v0, 3, s{sSlot}")
    a(f"v_min_u32 v{vX}, 32, v0")
    a(f"v_lshl_add_u32 v{vX}, v{vX}, 7, s{sHB}")
    a(f"v_lshl_add_u32 v{vQA}, v0, 3, s{sHB}")
    a(f"v_lshl_add_u32 v{vQB}, v0, 4, s{sHB}")
    a(f"s_add_u32 s3, s{sHB}, 4096")
    a(f"v_and_b32 v{vQC}, 7, v0")
    a(f"v_lshl_add_u32 v{vQC}, v{vQC}, 3, s3")
    a(f"s_lshl_b32 s21, s{sSplit}, 3")
    a(f"s_add_u32 s21, s21, s3")
    a(f"v_mov_b32 v{vQD}, s21")
    for k in range(4):
        a(f"v_mov_b32 v{vQ+k}, -1")
    a(f"s_lshl_b32 s{sOut}, s{sHead}, 8")
    a(f"v_and_b32 v{vLA}, {NW-1}, v0")
    a(f"v_lshlrev_b32 v{vLA}, 3, v{vLA}")
    a(f"v_lshlrev_b32 v{vK}, 3, v0")
    a(f"v_lshl_add_u32 v{vV}, v0, 2, s{sOut}")
    a(f"s_cmp_lg_u32 s{sRole}, 0")
    a("s_waitcnt lgkmcnt(0)")
    tstamp(1)
    a("s_cbranch_scc1 L_barA")
    a.c("collector: bring the hand-off lines into its L2, mark every word as empty, then announce the die")
    a(f"global_load_dword v{vX}, v{vX}, s[14:15] sc1")
    a("s_waitcnt vmcnt(0)")
    if not o["noclr"]:
        for k in range(4):
            a(f"global_store_dwordx4 v{vQB}, v[{vQ}:{vQ+3}], s[14:15] offset:{k*1024}")
        a(f"global_store_dwordx2 v{vQC}, v[{vQ}:{vQ+1}], s[14:15]")
    a(f"v_mov_b32 v{vT0}, s{sDbg}")
    a(f"v_mov_b32 v{vT1}, s{sMine}")
    a("s_mov_b64 exec, 1")
    a("s_waitcnt vmcnt(0)")
    if o["noflg"] == 0:
        a(f"global_store_dword v{vT0}, v{vT1}, s[12:13] sc1")
    elif o["noflg"] == 2:
        a(f"s_mov_b32 s3, s{sMine}")
        a(f"s_atomic_or s3, s[12:13], s{sDbg}")
    elif o["noflg"] == 3:
        a(f"global_store_dword v{vT0}, v{vT1}, s[12:13]")
    a("s_mov_b64 exec, -1")
    a.label("L_barA")
    a("s_barrier")
    a(f"s_load_dword s{sChk}, s[12:13], s{sDbg}")
    a(f"ds_read_b64 v[{vM}:{vL}], v{vLA} offset:{NW*512}")
    a("s_waitcnt vmcnt(0) lgkmcnt(0)")
    a.c("workgroup maximum, per-wave factors and workgroup sum")
    a(f"v_max_f32_dpp v{vT0}, v{vM}, v{vM} row_ror:1 row_mask:0xf bank_mask:0xf")
    a("s_nop 1")
    a(f"v_max_f32_dpp v{vT0}, v{vT0}, v{vT0} row_ror:2 row_mask:0xf bank_mask:0xf")
    a(f"v_sub_f32 v{vC}, v{vM}, v{vT0}")
    a(f"v_exp_f32 v{vC}, v{vC}")
    a(f"v_min_u32 v{vM}, -2, v{vT0}")
    a(f"v_mul_f32 v{vL}, v{vL}, v{vC}")
    a("s_nop 1")
    a(f"v_add_f32_dpp v{vL}, v{vL}, v{vL} row_ror:1 row_mask:0xf bank_mask:0xf")
    a("s_nop 1")
    a(f"v_add_f32_dpp v{vL}, v{vL}, v{vL} row_ror:2 row_mask:0xf bank_mask:0xf")
    if o["noflg"] == 1:
        a(f"s_mov_b32 s{sChk}, s{sMine}")
    if o["forceslow"] == 1:
        a(f"s_mov_b32 s{sChk}, 0")
    elif o["forceslow"] == 2:
        a(f"s_bitcmp1_b32 s{sSplit}, 0")
        a(f"s_cselect_b32 s{sChk}, 0, s{sChk}")
    a(f"s_mov_b32 s{sCap}, {o['cap']}")
    a(f"s_mov_b32 s{sDone}, 0")
    a(f"v_min_u32 v{vL}, -2, v{vL}")
    a.c("role: 0 collect, 1 hand over through the shared L2, 2 hand over through memory")
    a(f"s_cmp_eq_u32 s{sChk}, s{sMine}")
    a(f"s_cselect_b32 s{sChk}, 1, 2")
    a(f"s_cmp_eq_u32 s{sRole}, 0")
    a(f"s_cselect_b32 s{sRole}, 0, s{sChk}")
    a(f"s_cmp_lg_u32 s{sRole}, 1")
    a("s_cbranch_scc1 L_notfast")
    a("s_mov_b64 exec, 1")
    a(f"global_store_dwordx2 v{vQD}, v[{vM}:{vL}], s[14:15]")
    a("s_mov_b64 exec, -1")
    a("s_branch L_barB")
    a.label("L_notfast")
    if o["pre"]:
        a(f"s_cmp_lg_u32 s{sRole}, 0")
        a("s_cbranch_scc1 L_barB")
        a.c("collector: try to get all (m, l) now, so that only the sums are left for the end")
        a(f"s_mov_b32 s3, {o['pre']}")
        a.label("L_mlpoll")
        a(f"global_load_dwordx2 v[{vQM}:{vQL}], v{vQC}, s[14:15] sc1")
        a("s_waitcnt vmcnt(0)")
        a(f"v_cndmask_b32 v{vQM}, v{vQM}, v{vM}, s[{sOwn}:{sOwn+1}]")
        a(f"v_cndmask_b32 v{vQL}, v{vQL}, v{vL}, s[{sOwn}:{sOwn+1}]")
        a(f"v_max_u32 v{vT0}, v{vQM}, v{vQL}")
        a(f"v_cmp_eq_u32 vcc, -1, v{vT0}")
        a("s_cbranch_vccz L_mlready")
        a("s_sub_u32 s3, s3, 1")
        a("s_cmp_lg_u32 s3, 0")
        a("s_cbranch_scc1 L_mlpoll")
        a("s_branch L_barB")
        a.label("L_mlready")
        a(f"v_max_f32_dpp v{vT0}, v{vQM}, v{vQM} row_ror:1 row_mask:0xf bank_mask:0xf")
        for k in (2, 4):
            a("s_nop 1")
            a(f"v_max_f32_dpp v{vT0}, v{vT0}, v{vT0} row_ror:{k} row_mask:0xf bank_mask:0xf")
        a(f"v_sub_f32 v{vG}, v{vQM}, v{vT0}")
        a(f"v_exp_f32 v{vG}, v{vG}")
        a("s_nop 0")
        a(f"v_mul_f32 v{vT0}, v{vQL}, v{vG}")
        for k in (1, 2, 4):
            a("s_nop 1")
            a(f"v_add_f32_dpp v{vT0}, v{vT0}, v{vT0} row_ror:{k} row_mask:0xf bank_mask:0xf")
        a(f"v_rcp_f32 v{vT0}, v{vT0}")
        a(f"s_mov_b32 s{sRole}, -1")
        a(f"v_mul_f32 v{vG}, v{vG}, v{vT0}")
        a("s_barrier")
        tstamp(6)
        for w in range(NW):
            a(f"ds_read_b64 v[{vRing+2*w}:{vRing+2*w+1}], v{vK} offset:{w*512}")

        def oissue(base):
            for w in range(1, S):
                a(f"global_load_dwordx2 v[{base+2*w}:{base+2*w+1}], v{vQA}, s[14:15] offset:{w * 512} sc1")

        def ocheck(base, extra, lab):
            for h in range(2):
                a(f"v_mul_f32_dpp v{vO+2+h}, v{vG}, v{vO+h} row_newbcast:0 row_mask:0xf bank_mask:0xf")
            for w in range(1, S):
                a(f"s_waitcnt vmcnt({S-1-w+extra})")
                if w == 1:
                    a(f"v_max_u32 v{vT0}, v{base+2}, v{base+3}")
                else:
                    a(f"v_max3_u32 v{vT0}, v{vT0}, v{base+2*w}, v{base+2*w+1}")
                if w == S - 1:
                    a(f"v_cmp_eq_u32 vcc, -1, v{vT0}")
                for h in range(2):
                    a(f"v_fmac_f32_dpp v{vO+2+h}, v{vG}, v{base+2*w+h} row_newbcast:{w} row_mask:0xf bank_mask:0xf")
            a(f"v_cvt_pk_bf16_f32 v{vT1}, v{vO+2}, v{vO+3}")
            a(f"s_cbranch_vccz {lab}")

        def ofinal(base):
            tstamp(8)
            a(f"global_store_dword v{vV}, v{vT1}, s[10:11]")
            a("s_branch L_stored" if (tl or amp) else "s_endpgm")
        oissue(vQ)
        for w in range(NW):
            a(f"s_waitcnt lgkmcnt({0 if tl else NW - 1 - w})")
            op = "v_mul_f32_dpp" if w == 0 else "v_fmac_f32_dpp"
            for h in range(2):
                a(f"{op} v{vO+h}, v{vC}, v{vRing+2*w+h} row_newbcast:{w} row_mask:0xf bank_mask:0xf")
        tstamp(7)
        if not o["pipe"]:
            a.label("L_opoll")
            ocheck(vQ, 0, "L_oready")
            oissue(vQ)
            a(f"s_sub_u32 s{sCap}, s{sCap}, 1")
            a(f"s_cmp_lg_u32 s{sCap}, 0")
            a("s_cbranch_scc1 L_opoll")
            a("s_branch L_fin")
            a.label("L_oready")
            ofinal(vQ)
        else:
            vQ2 = vRing + 16
            a.label("L_opoll")
            oissue(vQ2)
            ocheck(vQ, 7, "L_oready")
            oissue(vQ)
            ocheck(vQ2, 7, "L_oready2")
            a(f"s_sub_u32 s{sCap}, s{sCap}, 1")
            a(f"s_cmp_lg_u32 s{sCap}, 0")
            a("s_cbranch_scc1 L_opoll")
            a("s_branch L_fin")
            a.label("L_oready")
            a.label("L_oready2")
            ofinal(vQ)
    a.label("L_barB")
    a(f"s_cmp_eq_u32 s{sRole}, 0")
    a("s_barrier")
    tstamp(6)
    for w in range(NW):
        a(f"ds_read_b64 v[{vRing+2*w}:{vRing+2*w+1}], v{vK} offset:{w*512}")
    if o["spec"]:
        a("s_cbranch_scc0 L_nospec")
        poll_issue()
        a.label("L_nospec")
    for w in range(NW):
        a(f"s_waitcnt lgkmcnt({0 if tl else NW - 1 - w})")
        op = "v_mul_f32_dpp" if w == 0 else "v_fmac_f32_dpp"
        for h in range(2):
            a(f"{op} v{vO+h}, v{vC}, v{vRing+2*w+h} row_newbcast:{w} row_mask:0xf bank_mask:0xf")
    a(f"s_cmp_lg_u32 s{sRole}, 1")
    a(f"v_min_u32 v{vQ}, -2, v{vO}")
    a(f"v_min_u32 v{vQ+1}, -2, v{vO+1}")
    a("s_cbranch_scc1 L_other")
    a.c("the collector runs on this die and has marked the slot: a plain store meets it in the shared L2")
    a(f"global_store_dwordx2 v{vQS}, v[{vQ}:{vQ+1}], s[14:15]")
    tstamp(7)
    if tl:
        a(f"s_mov_b32 s{sCap}, 0")
    a("s_branch L_fin" if (tl or amp) else "s_endpgm")
    a.label("L_other")
    a(f"s_cmp_lg_u32 s{sRole}, 0")
    a("s_cbranch_scc1 L_slowput")
    tstamp(7)
    if o["spec"]:
        a("s_branch L_check")

    def combine(n, vP, m, l, waitfn):
        lg = int(math.log2(n))
        waitfn("ml")
        a(f"v_max_f32_dpp v{vT0}, v{m}, v{m} row_ror:1 row_mask:0xf bank_mask:0xf")
        for k in range(1, lg):
            a("s_nop 1")
            a(f"v_max_f32_dpp v{vT0}, v{vT0}, v{vT0} row_ror:{1<<k} row_mask:0xf bank_mask:0xf")
        a(f"v_sub_f32 v{vT1}, v{m}, v{vT0}")
        a(f"v_exp_f32 v{vT1}, v{vT1}")
        a(f"v_mov_b32 v{vM}, v{vT0}")
        a(f"v_mul_f32 v{vL}, v{l}, v{vT1}")
        waitfn("o")
        for w in range(n):
            op = "v_mul_f32_dpp" if w == 0 else "v_fmac_f32_dpp"
            for h in range(2):
                a(f"{op} v{vO+h}, v{vT1}, v{vP+2*w+h} row_newbcast:{w} row_mask:0xf bank_mask:0xf")
            if w < lg:
                a(f"v_add_f32_dpp v{vL}, v{vL}, v{vL} row_ror:{1<<w} row_mask:0xf bank_mask:0xf")

    a.label("L_poll")
    poll_issue()
    a.label("L_check")
    a("s_waitcnt vmcnt(7)")
    a(f"v_cndmask_b32 v{vQM}, v{vQM}, v{vM}, s[{sOwn}:{sOwn+1}]")
    a(f"v_cndmask_b32 v{vQL}, v{vQL}, v{vL}, s[{sOwn}:{sOwn+1}]")
    a(f"v_max_u32 v{vT0}, v{vQM}, v{vQL}")
    for w in range(1, S):
        a(f"s_waitcnt vmcnt({S-1-w})")
        a(f"v_max3_u32 v{vT0}, v{vT0}, v{vQ+2*w}, v{vQ+2*w+1}")
    a(f"v_cmp_eq_u32 vcc, -1, v{vT0}")
    a("s_cbranch_vccz L_ready")
    a(f"s_sub_u32 s{sCap}, s{sCap}, 1")
    a(f"s_and_b32 s3, s{sCap}, 7")
    a(f"s_cselect_b32 s3, s{sDone}, 1")
    a(f"s_cmp_eq_u32 s3, 0")
    a("s_cbranch_scc1 L_poll")
    a("s_branch L_slowpoll")
    a.label("L_ready")
    tstamp(8)
    a(f"v_max_f32_dpp v{vT0}, v{vQM}, v{vQM} row_ror:1 row_mask:0xf bank_mask:0xf")
    for k in (2, 4):
        a("s_nop 1")
        a(f"v_max_f32_dpp v{vT0}, v{vT0}, v{vT0} row_ror:{k} row_mask:0xf bank_mask:0xf")
    a(f"v_sub_f32 v{vG}, v{vQM}, v{vT0}")
    a(f"v_exp_f32 v{vG}, v{vG}")
    a("s_nop 0")
    a(f"v_mul_f32 v{vT0}, v{vQL}, v{vG}")
    for k in (1, 2, 4):
        a("s_nop 1")
        a(f"v_add_f32_dpp v{vT0}, v{vT0}, v{vT0} row_ror:{k} row_mask:0xf bank_mask:0xf")
    a(f"v_rcp_f32 v{vT0}, v{vT0}")
    a("s_nop 0")
    a(f"v_mul_f32 v{vG}, v{vG}, v{vT0}")
    a("s_nop 1")
    for w in range(S):
        op = "v_mul_f32_dpp" if w == 0 else "v_fmac_f32_dpp"
        for h in range(2):
            a(f"{op} v{vO+h}, v{vG}, v{vQ+2*w+h} row_newbcast:{w} row_mask:0xf bank_mask:0xf")
        a("s_nop 0")
    a(f"v_cvt_pk_bf16_f32 v{vO}, v{vO}, v{vO+1}")
    a(f"global_store_dword v{vV}, v{vO}, s[10:11]")
    a.label("L_stored")
    if tl:
        a("s_waitcnt vmcnt(0)")
        tstamp(9)
    if amp:
        a("s_waitcnt vmcnt(0)")
        a(f"v_mov_b32 v{vT0}, 128")
        a(f"v_mov_b32 v{vT1}, 0x10000")
        a("s_mov_b64 exec, 1")
        a(f"global_atomic_add v{vT0}, v{vT1}, s[12:13]")
    a("s_branch L_fin" if (tl or amp) else "s_endpgm")
    a.label("L_slowput")
    a.c("collector on another die, or not announced yet: write through to the second slot set, then flag this split as done")
    a(f"v_add_u32 v{vQS}, {SLOW}, v{vQS}")
    a(f"s_lshl_b32 s3, s{sSplit}, 8")
    a(f"s_add_u32 s3, s3, s{sHB}")
    a(f"s_add_u32 s3, s3, {SLOW + 4096}")
    a(f"v_mov_b32 v{vQD}, s3")
    a(f"global_store_dwordx2 v{vQS}, v[{vQ}:{vQ+1}], s[14:15] sc1")
    a("s_mov_b64 exec, 1")
    a(f"global_store_dwordx2 v{vQD}, v[{vM}:{vL}], s[14:15] sc1")
    a(f"s_lshl_b32 s3, 1, s{sSplit}")
    a(f"v_mov_b32 v{vT0}, s{sDbg}")
    a(f"v_mov_b32 v{vT1}, s3")
    a("s_waitcnt vmcnt(0)")
    a(f"global_atomic_or v{vT0}, v{vT1}, s[12:13] offset:128")
    if tl:
        a(f"s_mov_b32 s{sCap}, 0")
        a(f"s_mov_b32 s71, 100")
    a("s_branch L_fin" if (tl or amp) else "s_endpgm")
    a.label("L_slowpoll")
    a.c("collector: look for splits that used the second slot set")
    a(f"s_cmp_eq_u32 s{sCap}, 0")
    a("s_cbranch_scc1 L_fin")
    a(f"v_mov_b32 v{vT0}, s{sDbg}")
    a(f"global_load_dword v{vT1}, v{vT0}, s[12:13] offset:128 sc1")
    a(f"v_and_b32 v{vT0}, 7, v0")
    a("s_waitcnt vmcnt(0)")
    a(f"v_readfirstlane_b32 s{sDone}, v{vT1}")
    a(f"v_lshrrev_b32 v{vT1}, v{vT0}, v{vT1}")
    a(f"v_and_b32 v{vT1}, 1, v{vT1}")
    a(f"v_cmp_eq_u32 vcc, 1, v{vT1}")
    a(f"s_add_u32 s3, s{sHB}, {SLOW + 4096}")
    a(f"v_lshl_add_u32 v{vT0}, v{vT0}, 8, s3")
    a(f"s_and_b32 s{sDone}, s{sDone}, 0xff")
    a(f"v_cndmask_b32 v{vT1}, v{vQC}, v{vT0}, vcc")
    a(f"global_load_dwordx2 v[{vQM}:{vQL}], v{vT1}, s[14:15] sc1")
    for w in range(1, S):
        a(f"s_bitcmp1_b32 s{sDone}, {w}")
        a(f"s_cselect_b32 s3, {SLOW}, 0")
        a(f"v_add_u32 v{vT1}, s3, v{vQA}")
        a(f"global_load_dwordx2 v[{vQ+2*w}:{vQ+2*w+1}], v{vT1}, s[14:15] offset:{w * 512} sc1")
    a("s_branch L_check")
    a.label("L_fin")
    if tl:
        a("s_mov_b64 exec, -1")
        a("s_getreg_b32 s46, hwreg(HW_REG_XCC_ID)")
        a("s_getreg_b32 s47, hwreg(HW_REG_HW_ID)")
        a("s_waitcnt lgkmcnt(0)")
        a(f"v_mov_b32 v{vT1}, 0")
        for i in range(10):
            a(f"v_writelane_b32 v{vT1}, s{48+2*i}, {i}")
        a(f"v_writelane_b32 v{vT1}, s{sCap}, 11")
        a(f"v_writelane_b32 v{vT1}, s71, 12")
        a(f"v_writelane_b32 v{vT1}, s46, 14")
        a(f"v_writelane_b32 v{vT1}, s47, 15")
        a(f"s_mul_i32 s46, s2, 5")
        a(f"s_add_u32 s46, s46, s{sW}")
        a(f"s_lshl_b32 s46, s46, 6")
        a(f"s_add_u32 s46, s46, 0x100000")
        a(f"v_lshlrev_b32 v{vT0}, 2, v0")
        a(f"v_add_u32 v{vT0}, s46, v{vT0}")
        a("s_mov_b64 exec, 0xffff")
        a(f"global_store_dword v{vT0}, v{vT1}, s[14:15]")
    if amp:
        a.c("diagnostic only: workgroup 0 waits for all heads, then holds for amp x elapsed")
        a(f"s_xor_b32 s44, s{sW}, {NW}")
        a(f"s_or_b32 s44, s44, s2")
        a("s_cmp_lg_u32 s44, 0")
        a("s_cbranch_scc1 L_end")
        a("s_mov_b64 exec, 1")
        a(f"v_mov_b32 v{vT0}, 128")
        a("s_mov_b32 s44, 200000")
        a.label("L_apoll")
        a(f"global_load_dword v{vT1}, v{vT0}, s[12:13] sc1")
        a("s_waitcnt vmcnt(0)")
        a(f"v_readfirstlane_b32 s45, v{vT1}")
        a("s_lshr_b32 s45, s45, 16")
        a("s_sub_u32 s44, s44, 1")
        a("s_cmp_eq_u32 s44, 0")
        a("s_cbranch_scc1 L_end")
        a("s_cmp_lt_u32 s45, 32")
        a("s_cbranch_scc1 L_apoll")
        a("s_memrealtime s[42:43]")
        a("s_waitcnt lgkmcnt(0)")
        a("s_sub_u32 s44, s42, s40")
        a("s_min_u32 s44, s44, 20000")
        if amp > 0:
            a(f"s_mul_i32 s44, s44, {amp}")
        else:
            a("s_getreg_b32 s44, hwreg(HW_REG_XCC_ID, 0, 4)")
            a("s_mul_i32 s44, s44, 10000")
        a("s_add_u32 s40, s42, s44")
        a.label("L_spin")
        a("s_memrealtime s[42:43]")
        a("s_waitcnt lgkmcnt(0)")
        a("s_sub_u32 s42, s42, s40")
        a("s_cmp_lt_i32 s42, 0")
        a("s_cbranch_scc1 L_spin")
    a.label("L_end")
    a("s_endpgm")
    if tl:
        i = next(k for k, ln in enumerate(a.lines) if "s_memrealtime s[48:49]" in ln)
        a.lines.insert(i, "    s_mov_b32 s71, 0")

    lds = NW * 512 + NW * 8
    out = HEADER
    if o["noclr"]:
        out += "; hostclear\n"
    out += f"; @launch grid=({NWG},1,1) block=({NW*64+64},1,1) lds={lds}\n"
    out += DOC
    out += '.amdgcn_target "amdgcn-amd-amdhsa--gfx950"\n.text\n'
    out += f".globl {NAME}\n.p2align 8\n.type {NAME},@function\n{NAME}:\n"
    out += "\n".join(a.lines) + "\n"
    acc = (nv + 3) // 4 * 4
    out += f""".section .rodata,"a"
.p2align 6
.amdhsa_kernel {NAME}
  .amdhsa_next_free_vgpr {nv}
  .amdhsa_next_free_sgpr {96 if kpat else (72 if tl else 48)}
  .amdhsa_accum_offset {acc}
  .amdhsa_group_segment_fixed_size 0
  .amdhsa_kernarg_size 48
  .amdhsa_user_sgpr_count 2
  .amdhsa_user_sgpr_kernarg_segment_ptr 1
  .amdhsa_system_sgpr_workgroup_id_x 1
  .amdhsa_float_denorm_mode_32 3
.end_amdhsa_kernel
"""
    return out


if __name__ == "__main__":
    p = argparse.ArgumentParser()
    p.add_argument("-o", required=True)
    for k, d in DEFAULTS.items():
        p.add_argument("--" + k, type=type(d), default=d)
    args = vars(p.parse_args())
    fn = args.pop("o")
    open(fn, "w").write(gen(**args))
```

```python
import argparse
import math
from gen1 import HEADER, NAME, Asm, f2u

G1 = "j0^w0^t3 w1 j2^t0 j2 t1 j0 t2 j4 t3 j3 x1 x2 x0 j1"
DEFAULTS = dict(R=4, R2=0, pol="nt", pat=G1, kvmode=0, tl=0, amp=0, pf=1, wld=1, clr=6, flg=12, chk=22,
                chkmode=0, spec=1, forceslow=0, qpos=1, fine=1, kpat=0, cap=0x1000000, psel=0, iodfix=0, xrot=0, pst=0, tpad=0, kpad=0, wgx=4)

NW, S, T = 4, 8, 16
NWG = 256
NAMES = ["x0", "x1", "x2", "j0", "j1", "j2", "j3", "j4", "w0", "w1", "t0", "t1", "t2", "t3"]


def rank(ms):
    ms = list(ms)
    r = 0
    for bit in range(14):
        pv = next((m for m in ms if m >> bit & 1), None)
        if pv is None:
            continue
        ms.remove(pv)
        ms = [m ^ pv if m >> bit & 1 else m for m in ms]
        r += 1
    return r


def columns(pat):
    rows = []
    for tm in pat.replace(",", " ").split()[:14]:
        m = 0
        for n in tm.split("^"):
            m ^= 1 << NAMES.index(n)
        rows.append(m)
    assert rank(rows) == 14 and not any(m >> 8 for m in rows[9:])
    sp = []
    for bit in range(8):
        if rank(rows[9:] + sp + [1 << bit]) == 5 + len(sp) + 1:
            sp.append(1 << bit)
    rows += sp
    return [sum(((rows[pos] >> i) & 1) << pos for pos in range(17)) for i in range(14)]


def gen(**kw):
    o = dict(DEFAULTS)
    o.update(kw)
    tl, amp, kvmode, kpat = o["tl"], o["amp"], o["kvmode"], o["kpat"]
    pol = (" " + o["pol"]) if o["pol"] else ""
    col = columns(o["pat"])
    assert o["flg"] >= o["clr"] + max(o["R"], o["R2"]) + 1 and o["chk"] > o["flg"]
    SLOW = 0x40000
    Rmax = max(o["R"], o["R2"])
    a = Asm()
    vK, vV, vT0, vT1, vC, vM, vL = 1, 2, 3, 4, 5, 6, 7
    vD, vO, vMask, vA = 8, 12, 16, 20
    vS = 36
    vQ = 52
    vQM, vQL = 68, 69
    vQA, vQB, vQC, vQS = 70, 71, 72, 73
    vLA, vTS, vX, vQD = 74, 75, 76, 77
    vRing = 80
    nv = vRing + 16 * Rmax
    assert nv <= 256
    sW, sHead, sSplit, sBase, sOut = 16, 17, 18, 19, 20
    sMc = 22
    sHB, sSlot, sDbg = 24, 25, 26
    sRole = 28
    sMine, sDone, sCap, sChk = 30, 31, 32, 33
    sOwn = 34

    def tstamp(i):
        if tl:
            a(f"s_memrealtime s[{48+2*i}:{49+2*i}]")

    def tmask(i):
        m = 0
        for b in range(4):
            if i >> b & 1:
                m ^= col[10 + b]
        return m << 12

    kstep, vstep = (1024, 256) if kvmode == 0 else (256, 1024)

    a(f"s_cmpk_ge_u32 s2, {NWG}")
    a("s_cbranch_scc1 L_end")
    a("s_load_dwordx8 s[4:11], s[0:1], 0")
    a("s_load_dwordx4 s[12:15], s[0:1], 32")
    if kpat:
        a("s_load_dwordx16 s[76:91], s[0:1], 48")
    if amp:
        a("s_memrealtime s[40:41]")
    if tl:
        for i in range(1, 10):
            a(f"s_mov_b32 s{48+2*i}, 0")
        a(f"s_mov_b32 s{sCap}, 0")
    tstamp(0)
    a(f"v_lshrrev_b32 v{vT0}, 6, v0")
    if o["pf"]:
        a.c("pull the kernel's own code into L2 while the kernel arguments are on their way")
        a("s_getpc_b64 s[22:23]")
        a(f"v_lshlrev_b32 v{vT1}, 7, v0")
        a(f"v_min_u32 v{vT1}, L_end-.-64, v{vT1}")
        a.vmem(f"global_load_dword v{vC}, v{vT1}, s[22:23]", "pf")
    else:
        a("s_nop 0")
    a(f"v_readfirstlane_b32 s{sW}, v{vT0}")
    a(f"v_and_b32 v0, 63, v0")
    a.c("(workgroup, wave) -> first tile, head and split: an xor-linear map of the id bits")
    a(f"s_lshl_b32 s21, s{sW}, 8")
    if o["xrot"]:
        a(f"s_add_u32 s3, s2, {o['xrot']}")
        a("s_and_b32 s3, s3, 7")
        a("s_and_b32 s23, s2, 0xf8")
        a("s_or_b32 s23, s23, s3")
        a(f"s_or_b32 s21, s21, s23")
    else:
        a(f"s_or_b32 s21, s21, s2")
    if kpat:
        a("s_waitcnt lgkmcnt(0)")
    for b in range(10):
        src = f"s{76+b}" if kpat else str(col[b])
        a(f"s_bitcmp1_b32 s21, {b}")
        if b == 0:
            a(f"s_cselect_b32 s{sBase}, {src}, 0")
        else:
            a(f"s_cselect_b32 s3, {src}, 0")
            a(f"s_xor_b32 s{sBase}, s{sBase}, s3")
    if o["iodfix"]:
        a.c("order of this wave's own tiles follows the die it really runs on (speed only)")
        a("s_getreg_b32 s3, hwreg(HW_REG_XCC_ID, 0, 4)")
        a("s_xor_b32 s3, s3, s21")
        a("s_bitcmp1_b32 s3, 2")
        a(f"s_cselect_b32 s3, {col[13]}, 0")
        a(f"s_xor_b32 s{sBase}, s{sBase}, s3")
    if kpat:
        for b in range(4):
            a(f"s_and_b32 s{86+b}, s{86+b}, 0x1ff000")
    a(f"s_bfe_u32 s{sSplit}, s{sBase}, 0x3000e")
    a(f"s_bfe_u32 s{sHead}, s{sBase}, 0x50009")
    a(f"s_and_b32 s{sBase}, s{sBase}, 0x3fff")
    a(f"s_lshl_b32 s{sBase}, s{sBase}, 12")
    a.c("lane patterns: lane = (g, a, b) for K and q, (g, c) for V")
    a(f"v_and_b32 v{vT1}, 3, v0")
    a(f"v_lshlrev_b32 v{vT1}, 4, v{vT1}")
    a(f"v_and_b32 v{vM}, 48, v0")
    a(f"v_lshl_add_u32 v{vT1}, v{vM}, 2, v{vT1}")
    a(f"v_and_b32 v{vL}, 12, v0")
    a(f"v_lshlrev_b32 v{vL}, {6 if kvmode == 0 else 8}, v{vL}")
    a(f"v_add3_u32 v{vK}, v{vL}, v{vT1}, s{sBase}")
    a(f"s_lshl_b32 s{sOut}, s{sHead}, 8")
    a(f"v_add_u32 v{vT1}, s{sOut}, v{vT1}")
    if o["R2"]:
        if o["psel"] == 0:
            a("s_bitcmp1_b32 s2, 0")
        else:
            a("s_getreg_b32 s3, hwreg(HW_REG_XCC_ID, 0, 4)")
            a("s_bitcmp1_b32 s3, 0")
    if o["pst"]:
        tstamp(2)
    a("s_waitcnt lgkmcnt(0)")
    tstamp(1)
    if o["R2"]:
        a("s_cbranch_scc1 L_body1")
    vm0 = list(a.vm)

    def poll_issue():
        a(f"global_load_dwordx2 v[{vQM}:{vQL}], v{vQC}, s[14:15] sc1")
        for w in range(1, S):
            a(f"global_load_dwordx2 v[{vQ+2*w}:{vQ+2*w+1}], v{vQA}, s[14:15] offset:{w * 512} sc1")

    def body(R, sfx):
        a.vm = list(vm0)

        def slot(n):
            return vRing + 16 * (n % R)

        def issue_tile(n):
            isK = n < T
            i = n if isK else n - T
            va, base, step = (vK, "s[6:7]", kstep) if isK else (vV, "s[8:9]", vstep)
            if i > 0:
                if kpat:
                    a(f"v_xor_b32 v{va}, s{86 + (i ^ (i - 1)).bit_length() - 1}, v{va}")
                else:
                    a(f"v_xor_b32 v{va}, {tmask(i) ^ tmask(i - 1)}, v{va}")
            r = slot(n)
            for t in range(4):
                off = f" offset:{t*step}" if t else ""
                a.vmem(f"global_load_dwordx4 v[{r+4*t}:{r+4*t+3}], v{va}, {base}{off}{pol}", ("t", n, t))
            return 4 + (1 if i > 0 else 0)

        def side_work(n):
            st = 0
            if n == o["wld"]:
                a(f"s_cmp_lg_u32 s{sRole}, 0")
                a(f"s_cbranch_scc1 L_nowld{sfx}")
                a.c("collector: bring the hand-off lines into its L2 (values unused)")
                a(f"global_load_dword v{vX}, v{vX}, s[14:15] sc1")
                a.label(f"L_nowld{sfx}")
                st += 2
            if n == o["clr"]:
                a(f"s_cmp_lg_u32 s{sRole}, 0")
                a(f"s_cbranch_scc1 L_noclr{sfx}")
                a.c("collector: mark all hand-off words of this head as empty")
                for k in range(4):
                    a(f"global_store_dwordx4 v{vQB}, v[{vQ}:{vQ+3}], s[14:15] offset:{k*1024}")
                a(f"global_store_dwordx2 v{vQC}, v[{vQ}:{vQ+1}], s[14:15]")
                a.label(f"L_noclr{sfx}")
                st += 2
            if n == o["flg"]:
                a(f"s_cmp_lg_u32 s{sRole}, 0")
                a(f"s_cbranch_scc1 L_noflg{sfx}")
                a.c("collector: the marks are in place; tell the other seven which die collects")
                a(f"v_mov_b32 v{vQ}, s{sDbg}")
                a(f"v_mov_b32 v{vQ+1}, s{sMine}")
                a("s_mov_b64 exec, 1")
                a(f"global_store_dword v{vQ}, v{vQ+1}, s[12:13]")
                a("s_mov_b64 exec, -1")
                a.label(f"L_noflg{sfx}")
                st += 2
            if n == o["chk"]:
                a(f"s_cmp_lg_u32 s{sW}, 0")
                a(f"s_cbranch_scc1 L_nochk{sfx}")
                a(f"s_load_dword s{sChk}, s[12:13], s{sDbg}" + (" glc" if o["chkmode"] else ""))
                a.label(f"L_nochk{sfx}")
                st += 2
            return st

        for n in range(R):
            issue_tile(n)
            if n + 1 == o["qpos"] or (n == 0 and o["qpos"] == 0):
                a.vmem(f"global_load_dwordx4 v[{vD}:{vD+3}], v{vT1}, s[4:5]", "q")
        if not o["pst"]:
            tstamp(2)
        if kvmode == 0:
            a(f"v_and_b32 v{vL}, 15, v0")
            a(f"v_lshlrev_b32 v{vL}, 4, v{vL}")
            a(f"v_lshl_add_u32 v{vV}, v{vM}, 6, v{vL}")
            a(f"v_add_u32 v{vV}, s{sBase}, v{vV}")
        else:
            a(f"v_lshl_add_u32 v{vV}, v0, 4, s{sBase}")
        a.c("hand-off addresses and constants")
        a(f"s_lshl_b32 s{sHB}, s{sHead}, 13")
        a(f"s_lshl_b32 s{sSlot}, s{sSplit}, 9")
        a(f"s_add_u32 s{sSlot}, s{sSlot}, s{sHB}")
        a(f"s_lshl_b32 s{sDbg}, s{sHead}, 2")
        a(f"s_or_b32 s{sRole}, s{sSplit}, s{sW}")
        a(f"s_getreg_b32 s{sMine}, hwreg(HW_REG_XCC_ID, 0, 4)")
        a(f"s_or_b32 s{sMine}, s{sMine}, 0x100")
        a(f"s_mov_b32 s{sChk}, 0")
        a(f"s_mov_b32 s{sOwn}, 0x01010101")
        a(f"s_mov_b32 s{sOwn+1}, s{sOwn}")
        a(f"v_lshl_add_u32 v{vQS}, v0, 3, s{sSlot}")
        a(f"v_min_u32 v{vX}, 32, v0")
        a(f"v_lshl_add_u32 v{vX}, v{vX}, 7, s{sHB}")
        a(f"v_lshl_add_u32 v{vQA}, v0, 3, s{sHB}")
        a(f"v_lshl_add_u32 v{vQB}, v0, 4, s{sHB}")
        a(f"s_add_u32 s3, s{sHB}, 4096")
        a(f"v_and_b32 v{vQC}, 7, v0")
        a(f"v_lshl_add_u32 v{vQC}, v{vQC}, 3, s3")
        a(f"s_lshl_b32 s21, s{sSplit}, 3")
        a(f"s_add_u32 s21, s21, s3")
        a(f"v_mov_b32 v{vQD}, s21")
        for k in range(4):
            a(f"v_mov_b32 v{vQ+k}, -1")
        a.c("LDS address of this wave's partial: w*512 + c*32 + (g&1)*16")
        a(f"v_and_b32 v{vT0}, 15, v0")
        a(f"v_lshlrev_b32 v{vT0}, 5, v{vT0}")
        a(f"v_and_b32 v{vLA}, 16, v0")
        a(f"s_lshl_b32 s3, s{sW}, 9")
        a(f"v_add3_u32 v{vLA}, v{vT0}, v{vLA}, s3")
        a.c("half-word masks that place p on the diagonal of the P operand")
        a(f"v_and_b32 v{vT0}, 1, v0")
        a(f"v_lshlrev_b32 v{vT0}, 4, v{vT0}")
        a(f"s_mov_b32 s3, 0xffff")
        a(f"v_lshlrev_b32 v{vT0}, v{vT0}, s3")
        a(f"s_mov_b32 vcc_lo, 0x03030303")
        a(f"s_mov_b32 vcc_hi, vcc_lo")
        for i in range(4):
            a(f"v_cndmask_b32 v{vMask+i}, 0, v{vT0}, vcc")
            if i < 3:
                a(f"s_lshl_b64 vcc, vcc, 2")
        a(f"s_mov_b32 vcc_lo, 0x000f000f")
        a(f"s_mov_b32 vcc_hi, vcc_lo")
        a.wait_tag("q")
        cval = math.log2(math.e) / math.sqrt(128.0)
        a(f"v_mov_b32 v{vC}, 0x{f2u(cval):08x}")
        a.c("q operand t is q in rows 4t..4t+3 and zero elsewhere")
        for t in range(4):
            for i in range(4):
                a(f"v_cndmask_b32 v{vA+4*t+i}, 0, v{vD+i}, vcc")
            if t < 3:
                a(f"s_lshl_b64 vcc, vcc, 4")

        def wait_tile(n, t=3):
            if any(x == ("t", n, t) for x in a.vm):
                a.wait_tag(("t", n, t))
                return 1
            return 0

        for n in range(T):
            a.c(f"K tile {n}")
            w = wait_tile(n)
            if n == 0:
                a("s_nop 0" if w else "s_nop 1")
                tstamp(3)
            r = slot(n)
            for t in range(4):
                cin = "0" if t == 0 else f"v[{vD}:{vD+3}]"
                a(f"v_mfma_f32_16x16x32_bf16 v[{vD}:{vD+3}], v[{vA+4*t}:{vA+4*t+3}], v[{r+4*t}:{r+4*t+3}], {cin}")
            st = issue_tile(n + R)
            st += side_work(n)
            if st < 8:
                a(f"s_nop {8 - st - 1}")
            s = vS + n
            a(f"v_mov_b32_dpp v{s}, v{vD} quad_perm:[0,0,0,0] row_mask:0xf bank_mask:0xf")
            for b in range(1, 4):
                a(f"v_add_f32_dpp v{s}, v{vD+b}, v{s} quad_perm:[{b},{b},{b},{b}] row_mask:0xf bank_mask:0xf")
            if n == 1:
                a(f"v_max_f32 v{vM}, v{vS}, v{vS+1}")
            elif n > 1 and n % 2 == 1:
                a(f"v_max3_f32 v{vM}, v{vM}, v{s-1}, v{s}")
        a.c("true maximum of this wave's scores")
        tstamp(4)
        red = ("row_ror:4 row_mask:0xf", "row_ror:8 row_mask:0xf", "row_bcast:15 row_mask:0xa", "row_bcast:31 row_mask:0xc")
        for ctl in red:
            a("s_nop 1")
            a(f"v_max_f32_dpp v{vM}, v{vM}, v{vM} {ctl} bank_mask:0xf")
        a(f"v_mul_f32 v{vM}, v{vC}, v{vM}")
        a("s_nop 0")
        a(f"v_readlane_b32 s{sMc}, v{vM}, 63")
        a("s_nop 1")
        for n in range(T):
            a(f"v_fma_f32 v{vS+n}, v{vS+n}, v{vC}, -s{sMc}")
        for n in range(T):
            a(f"v_exp_f32 v{vS+n}, v{vS+n}")
        a(f"v_mov_b32 v{vM}, s{sMc}")
        a(f"v_add_f32 v{vL}, v{vS}, v{vS+1}")
        for n in range(2, T):
            a(f"v_add_f32 v{vL}, v{vL}, v{vS+n}")
        for n in range(T):
            a(f"v_cvt_pk_bf16_f32 v{vS+n}, v{vS+n}, v{vS+n}")
        for ctl in red:
            a(f"v_add_f32_dpp v{vL}, v{vL}, v{vL} {ctl} bank_mask:0xf")
            a("s_nop 1")
        a(f"s_lshl_b32 s3, s{sW}, 3")
        a(f"v_mov_b32 v{vT0}, s3")
        a(f"s_brev_b64 exec, 1")
        a(f"ds_write_b64 v{vT0}, v[{vM}:{vL}] offset:{NW*512}")
        a(f"s_mov_b64 exec, -1")
        for i in range(T):
            n = T + i
            a.c(f"V tile {i}")
            for u in range(4):
                for j in range(4):
                    a(f"v_and_b32_dpp v{vA+4*u+j}, v{vS+i}, v{vMask+j} row_newbcast:{4*u} row_mask:0xf bank_mask:0xf")
            fine = o["fine"] and i == T - 1
            if not fine:
                wait_tile(n)
                a("s_nop 0")
            r = slot(n)
            for u in range(4):
                if fine:
                    wait_tile(n, u)
                    if u == 0:
                        a("s_nop 0")
                cin = "0" if (i == 0 and u == 0) else f"v[{vO}:{vO+3}]"
                a(f"v_mfma_f32_16x16x32_bf16 v[{vO}:{vO+3}], v[{vA+4*u}:{vA+4*u+3}], v[{r+4*u}:{r+4*u+3}], {cin}")
            if n + R < 2 * T:
                issue_tile(n + R)
            side_work(n)

    body(o["R"], "a")
    if o["R2"]:
        a("s_branch L_join")
        a.label("L_body1")
        body(o["R2"], "b")
        a.label("L_join")
    a.vm = []
    if o["spec"]:
        a(f"s_cmp_lg_u32 s{sRole}, 0")
        a("s_cbranch_scc1 L_nospec")
        poll_issue()
        a.label("L_nospec")
        a("s_nop 5")
    else:
        a("s_nop 7")
    tstamp(5)
    a(f"ds_write_b128 v{vLA}, v[{vO}:{vO+3}]")
    a(f"v_and_b32 v{vT0}, {NW-1}, v0")
    a(f"v_lshlrev_b32 v{vT0}, 3, v{vT0}")
    a(f"v_lshlrev_b32 v{vK}, 3, v0")
    a(f"s_cmp_lg_u32 s{sW}, 0")
    a("s_waitcnt lgkmcnt(0)")
    a("s_barrier")
    tstamp(6)
    a("s_cbranch_scc1 L_fin")

    def combine(n, vP, m, l, waitfn):
        lg = int(math.log2(n))
        waitfn("ml")
        a(f"v_max_f32_dpp v{vT0}, v{m}, v{m} row_ror:1 row_mask:0xf bank_mask:0xf")
        for k in range(1, lg):
            a("s_nop 1")
            a(f"v_max_f32_dpp v{vT0}, v{vT0}, v{vT0} row_ror:{1<<k} row_mask:0xf bank_mask:0xf")
        a(f"v_sub_f32 v{vT1}, v{m}, v{vT0}")
        a(f"v_exp_f32 v{vT1}, v{vT1}")
        a(f"v_mov_b32 v{vM}, v{vT0}")
        a(f"v_mul_f32 v{vL}, v{l}, v{vT1}")
        waitfn("o")
        for w in range(n):
            op = "v_mul_f32_dpp" if w == 0 else "v_fmac_f32_dpp"
            for h in range(2):
                a(f"{op} v{vO+h}, v{vT1}, v{vP+2*w+h} row_newbcast:{w} row_mask:0xf bank_mask:0xf")
            if w < lg:
                a(f"v_add_f32_dpp v{vL}, v{vL}, v{vL} row_ror:{1<<w} row_mask:0xf bank_mask:0xf")

    a.c("wave 0 merges the four waves' partials")
    a(f"ds_read_b64 v[{vM}:{vL}], v{vT0} offset:{NW*512}")
    for w in range(NW):
        a(f"ds_read_b64 v[{vRing+2*w}:{vRing+2*w+1}], v{vK} offset:{w*512}")

    def ldswait(which):
        a(f"s_waitcnt lgkmcnt({NW if which == 'ml' and not tl else 0})")
    combine(NW, vRing, vM, vL, ldswait)
    a(f"s_cmp_eq_u32 s{sRole}, 0")
    for r in (vO, vO + 1, vM, vL):
        a(f"v_min_u32 v{r}, -2, v{r}")
    a("s_cbranch_scc1 L_collect")
    if o["forceslow"] == 1:
        a(f"s_mov_b32 s{sChk}, 0")
    elif o["forceslow"] == 2:
        a(f"s_bitcmp1_b32 s{sSplit}, 0")
        a(f"s_cselect_b32 s{sChk}, 0, s{sChk}")
    a(f"s_cmp_lg_u32 s{sChk}, s{sMine}")
    a("s_cbranch_scc1 L_slowput")
    a.c("the collector runs on this die and has marked the slot: plain stores meet it in the shared L2")
    a(f"global_store_dwordx2 v{vQS}, v[{vO}:{vO+1}], s[14:15]")
    a("s_mov_b64 exec, 1")
    a(f"global_store_dwordx2 v{vQD}, v[{vM}:{vL}], s[14:15]")
    tstamp(7)
    a("s_branch L_fin" if (tl or amp) else "s_endpgm")
    a.label("L_collect")
    tstamp(7)
    a(f"s_mov_b32 s{sCap}, {o['cap']}")
    a(f"s_mov_b32 s{sDone}, 0")
    a(f"v_mov_b32 v{vQ}, v{vO}")
    a(f"v_mov_b32 v{vQ+1}, v{vO+1}")
    if o["spec"]:
        a("s_branch L_check")
    a.label("L_poll")
    poll_issue()
    a.label("L_check")
    a("s_waitcnt vmcnt(7)")
    a(f"v_cndmask_b32 v{vQM}, v{vQM}, v{vM}, s[{sOwn}:{sOwn+1}]")
    a(f"v_cndmask_b32 v{vQL}, v{vQL}, v{vL}, s[{sOwn}:{sOwn+1}]")
    a(f"v_max_u32 v{vT0}, v{vQM}, v{vQL}")
    for w in range(1, S):
        a(f"s_waitcnt vmcnt({S-1-w})")
        a(f"v_max3_u32 v{vT0}, v{vT0}, v{vQ+2*w}, v{vQ+2*w+1}")
    a(f"v_cmp_eq_u32 vcc, -1, v{vT0}")
    a("s_cbranch_vccz L_ready")
    a(f"s_sub_u32 s{sCap}, s{sCap}, 1")
    a(f"s_and_b32 s3, s{sCap}, 7")
    a(f"s_cselect_b32 s3, s{sDone}, 1")
    a(f"s_cmp_eq_u32 s3, 0")
    a("s_cbranch_scc1 L_poll")
    a("s_branch L_slowpoll")
    a.label("L_ready")
    tstamp(8)
    combine(S, vQ, vQM, vQL, lambda which: a("s_nop 0") if which == "o" else None)
    a(f"v_rcp_f32 v{vL}, v{vL}")
    a(f"v_lshl_add_u32 v{vT0}, v0, 2, s{sOut}")
    a(f"v_mul_f32 v{vO}, v{vO}, v{vL}")
    a(f"v_mul_f32 v{vO+1}, v{vO+1}, v{vL}")
    a(f"v_cvt_pk_bf16_f32 v{vO}, v{vO}, v{vO+1}")
    a(f"global_store_dword v{vT0}, v{vO}, s[10:11]")
    if tl:
        a("s_waitcnt vmcnt(0)")
        tstamp(9)
    if amp:
        a("s_waitcnt vmcnt(0)")
        a(f"v_mov_b32 v{vT0}, 128")
        a(f"v_mov_b32 v{vT1}, 0x10000")
        a("s_mov_b64 exec, 1")
        a(f"global_atomic_add v{vT0}, v{vT1}, s[12:13]")
    a("s_branch L_fin" if (tl or amp) else "s_endpgm")
    a.label("L_slowput")
    a.c("collector on another die, or not announced yet: write through to the second slot set, then flag this split as done")
    a(f"v_add_u32 v{vQS}, {SLOW}, v{vQS}")
    a(f"s_lshl_b32 s3, s{sSplit}, 8")
    a(f"s_add_u32 s3, s3, s{sHB}")
    a(f"s_add_u32 s3, s3, {SLOW + 4096}")
    a(f"v_mov_b32 v{vQD}, s3")
    a(f"global_store_dwordx2 v{vQS}, v[{vO}:{vO+1}], s[14:15] sc1")
    a("s_mov_b64 exec, 1")
    a(f"global_store_dwordx2 v{vQD}, v[{vM}:{vL}], s[14:15] sc1")
    a(f"s_lshl_b32 s3, 1, s{sSplit}")
    a(f"v_mov_b32 v{vT0}, s{sDbg}")
    a(f"v_mov_b32 v{vT1}, s3")
    a("s_waitcnt vmcnt(0)")
    a(f"global_atomic_or v{vT0}, v{vT1}, s[12:13] offset:128")
    if tl:
        a(f"s_mov_b32 s{sCap}, 0")
        a(f"s_mov_b32 s71, 100")
    a("s_branch L_fin" if (tl or amp) else "s_endpgm")
    a.label("L_slowpoll")
    a.c("collector: look for splits that used the second slot set")
    a(f"s_cmp_eq_u32 s{sCap}, 0")
    a("s_cbranch_scc1 L_fin")
    a(f"v_mov_b32 v{vT0}, s{sDbg}")
    a(f"global_load_dword v{vT1}, v{vT0}, s[12:13] offset:128 sc1")
    a(f"v_and_b32 v{vT0}, 7, v0")
    a("s_waitcnt vmcnt(0)")
    a(f"v_readfirstlane_b32 s{sDone}, v{vT1}")
    a(f"v_lshrrev_b32 v{vT1}, v{vT0}, v{vT1}")
    a(f"v_and_b32 v{vT1}, 1, v{vT1}")
    a(f"v_cmp_eq_u32 vcc, 1, v{vT1}")
    a(f"s_add_u32 s3, s{sHB}, {SLOW + 4096}")
    a(f"v_lshl_add_u32 v{vT0}, v{vT0}, 8, s3")
    a(f"s_and_b32 s{sDone}, s{sDone}, 0xff")
    a(f"v_cndmask_b32 v{vT1}, v{vQC}, v{vT0}, vcc")
    a(f"global_load_dwordx2 v[{vQM}:{vQL}], v{vT1}, s[14:15] sc1")
    for w in range(1, S):
        a(f"s_bitcmp1_b32 s{sDone}, {w}")
        a(f"s_cselect_b32 s3, {SLOW}, 0")
        a(f"v_add_u32 v{vT1}, s3, v{vQA}")
        a(f"global_load_dwordx2 v[{vQ+2*w}:{vQ+2*w+1}], v{vT1}, s[14:15] offset:{w * 512} sc1")
    a("s_branch L_check")
    a.label("L_fin")
    if tl:
        a("s_mov_b64 exec, -1")
        a("s_getreg_b32 s46, hwreg(HW_REG_XCC_ID)")
        a("s_getreg_b32 s47, hwreg(HW_REG_HW_ID)")
        a("s_waitcnt lgkmcnt(0)")
        a(f"v_mov_b32 v{vT1}, 0")
        for i in range(10):
            a(f"v_writelane_b32 v{vT1}, s{48+2*i}, {i}")
        a(f"v_writelane_b32 v{vT1}, s{sCap}, 11")
        a(f"v_writelane_b32 v{vT1}, s71, 12")
        a(f"v_writelane_b32 v{vT1}, s46, 14")
        a(f"v_writelane_b32 v{vT1}, s47, 15")
        a(f"s_lshl_b32 s46, s2, 2")
        a(f"s_add_u32 s46, s46, s{sW}")
        a(f"s_lshl_b32 s46, s46, 6")
        a(f"s_add_u32 s46, s46, 0x100000")
        a(f"v_lshlrev_b32 v{vT0}, 2, v0")
        a(f"v_add_u32 v{vT0}, s46, v{vT0}")
        a("s_mov_b64 exec, 0xffff")
        a(f"global_store_dword v{vT0}, v{vT1}, s[14:15]")
    if amp:
        if amp == -2:
            a(f"s_xor_b32 s44, s2, {o['wgx']}")
            a(f"s_or_b32 s44, s44, s{sW}")
            a("s_cmp_lg_u32 s44, 0")
            a("s_cbranch_scc1 L_not4")
            a("s_mov_b64 exec, 1")
            a(f"v_mov_b32 v{vT0}, 0x300000")
            a(f"v_mov_b32 v{vT1}, s40")
            a(f"global_store_dword v{vT0}, v{vT1}, s[14:15] sc1")
            a.label("L_not4")
        a.c("diagnostic only: workgroup 0 waits for all heads, then holds for amp x elapsed")
        a(f"s_or_b32 s44, s2, s{sW}")
        a("s_cmp_lg_u32 s44, 0")
        a("s_cbranch_scc1 L_end")
        a("s_mov_b64 exec, 1")
        a(f"v_mov_b32 v{vT0}, 128")
        a("s_mov_b32 s44, 200000")
        a.label("L_apoll")
        a(f"global_load_dword v{vT1}, v{vT0}, s[12:13] sc1")
        a("s_waitcnt vmcnt(0)")
        a(f"v_readfirstlane_b32 s45, v{vT1}")
        a("s_lshr_b32 s45, s45, 16")
        a("s_sub_u32 s44, s44, 1")
        a("s_cmp_eq_u32 s44, 0")
        a("s_cbranch_scc1 L_end")
        a("s_cmp_lt_u32 s45, 32")
        a("s_cbranch_scc1 L_apoll")
        a("s_memrealtime s[42:43]")
        a("s_waitcnt lgkmcnt(0)")
        a("s_sub_u32 s44, s42, s40")
        a("s_min_u32 s44, s44, 20000")
        if amp > 0:
            a(f"s_mul_i32 s44, s44, {amp}")
        elif amp == -2:
            a("s_add_u32 s44, s42, 300")
            a.label("L_w3")
            a("s_memrealtime s[42:43]")
            a("s_waitcnt lgkmcnt(0)")
            a("s_sub_u32 s45, s42, s44")
            a("s_cmp_lt_i32 s45, 0")
            a("s_cbranch_scc1 L_w3")
            a(f"v_mov_b32 v{vT0}, 0x300000")
            a(f"global_load_dword v{vT1}, v{vT0}, s[14:15] sc1")
            a("s_waitcnt vmcnt(0)")
            a(f"v_readfirstlane_b32 s44, v{vT1}")
            a("s_sub_u32 s44, s44, s40")
            a("s_add_u32 s44, s44, 100")
            a("s_min_u32 s44, s44, 250")
            a("s_mul_i32 s44, s44, 500")
        else:
            a("s_getreg_b32 s44, hwreg(HW_REG_XCC_ID, 0, 4)")
            a("s_mul_i32 s44, s44, 10000")
        a("s_add_u32 s40, s42, s44")
        a.label("L_spin")
        a("s_memrealtime s[42:43]")
        a("s_waitcnt lgkmcnt(0)")
        a("s_sub_u32 s42, s42, s40")
        a("s_cmp_lt_i32 s42, 0")
        a("s_cbranch_scc1 L_spin")
    a.label("L_end")
    a("s_endpgm")
    if tl:
        i = next(k for k, ln in enumerate(a.lines) if "s_memrealtime s[48:49]" in ln)
        a.lines.insert(i, "    s_mov_b32 s71, 0")

    lds = NW * 512 + NW * 8
    out = HEADER
    out += f"; @launch grid=({NWG},1,1) block=({NW*64},1,1) lds={lds}\n"
    out += '.amdgcn_target "amdgcn-amd-amdhsa--gfx950"\n.text\n'
    if o["tpad"]:
        out += f".fill {o['tpad'] // 4}, 4, 0xbf800000\n"
    out += f".globl {NAME}\n.p2align 8\n.type {NAME},@function\n{NAME}:\n"
    out += "\n".join(a.lines) + "\n"
    acc = (nv + 3) // 4 * 4
    out += '.section .rodata,"a"\n'
    if o["kpad"]:
        out += f".fill {o['kpad'] // 4}, 4, 0\n"
    out += f""".p2align 6
.amdhsa_kernel {NAME}
  .amdhsa_next_free_vgpr {nv}
  .amdhsa_next_free_sgpr {96 if kpat else (72 if tl else 48)}
  .amdhsa_accum_offset {acc}
  .amdhsa_group_segment_fixed_size 0
  .amdhsa_kernarg_size 48
  .amdhsa_user_sgpr_count 2
  .amdhsa_user_sgpr_kernarg_segment_ptr 1
  .amdhsa_system_sgpr_workgroup_id_x 1
  .amdhsa_float_denorm_mode_32 3
.end_amdhsa_kernel
"""
    return out


if __name__ == "__main__":
    p = argparse.ArgumentParser()
    p.add_argument("-o", required=True)
    for k, d in DEFAULTS.items():
        p.add_argument("--" + k, type=type(d), default=d)
    args = vars(p.parse_args())
    fn = args.pop("o")
    open(fn, "w").write(gen(**args))
```

```python
import argparse
import math
from gen1 import HEADER, NAME, Asm, f2u

G1 = "j0^w0^t3 w1 j2^t0 j2 t1 j0 t2 j4 t3 j3 x1 x2 x0 j1"
H1F = "j2^w0^t3 w1 j2^t0 j2 t1^t3 j3 t2 j4^j2 t3 j1 x0 x1 x2 j0"
H1 = "j4^w0^t3 w1 j4^t0 j4 t1^t3 j3 t2 j2^j4 t3 j0 x0 x2 x1 j1"
DEFAULTS = dict(R=2, R2=0, pol="nt", pat=H1, kvmode=0, tl=0, amp=0, pf=1, barA=27, prio=3, noclr=0, noflg=3, pre=8, pipe=1, ua=10, ub=11, spread=2, mode=0, mode2=0,
                chkmode=0, spec=1, forceslow=0, qpos=0, fine=1, kpat=0, cap=0x1000000, psel=0, iodfix=1, xrot=0, pst=0, fastpro=0, halves=1, sched='', wprio='', kx=0, vx=0, twarm=0)

DOC = """;
; stores, then writes 0x100 | die id to d_debug[head]. A split that reads its own die id there shares the
"""

NW, S, T = 4, 8, 16
NWG = 256
NAMES = ["x0", "x1", "x2", "j0", "j1", "j2", "j3", "j4", "w0", "w1", "t0", "t1", "t2", "t3"]


def rank(ms):
    ms = list(ms)
    r = 0
    for bit in range(14):
        pv = next((m for m in ms if m >> bit & 1), None)
        if pv is None:
            continue
        ms.remove(pv)
        ms = [m ^ pv if m >> bit & 1 else m for m in ms]
        r += 1
    return r


def columns(pat, ua=10, ub=11):
    rows = []
    for tm in pat.replace(",", " ").split()[:14]:
        m = 0
        for n in tm.split("^"):
            m ^= 1 << NAMES.index(n)
        rows.append(m)
    assert rank(rows) == 14 and not any(m >> 8 for m in rows[9:])
    sp = []
    for bit in range(8):
        if rank(rows[9:] + sp + [1 << bit]) == 5 + len(sp) + 1:
            sp.append(1 << bit)
    rows += sp
    bits = [b - 10 for b in range(10, 26) if b not in (ua, ub)] + [16, 17, 18]
    return [sum(((rows[pos] >> i) & 1) << bits[pos] for pos in range(17)) for i in range(14)]


def gen(**kw):
    o = dict(DEFAULTS)
    o.update(kw)
    tl, amp, kvmode, kpat = o["tl"], o["amp"], o["kvmode"], o["kpat"]
    pol = (" " + o["pol"]) if o["pol"] else ""
    ua, ub = o["ua"], o["ub"]
    assert ua < ub < 21 and kvmode == 0
    col = columns(o["pat"], ua, ub)
    SLOW = 0x40000
    Rmax = max(o["R"], o["R2"])
    a = Asm()
    vK, vV, vT0, vT1, vC, vM, vL = 1, 2, 3, 4, 5, 6, 7
    vD, vO, vMask, vA = 8, 12, 16, 20
    vS = 36
    vQ = 52
    vQM, vQL = 68, 69
    vQA, vQB, vQC, vQS = 70, 71, 72, 73
    vLA, vTS, vX, vQD, vG = 74, 75, 76, 77, 78
    vRing = 80
    sched = dict((int(x.split(":")[0]), int(x.split(":")[1])) for x in o["sched"].split(",") if x)
    NSLOT = max([Rmax + (1 if 1 in (o['mode'], o['mode2']) else 0)] + list(sched.values()))
    nv = vRing + 16 * NSLOT

    def window(n, R):
        w = R
        for k in sorted(sched):
            if n >= k:
                w = sched[k]
        return w
    assert nv <= 256
    sW, sHead, sSplit, sBase, sOut = 16, 17, 18, 19, 20
    sMc = 22
    sHB, sSlot, sDbg = 24, 25, 26
    sRole = 28
    sMine, sDone, sCap, sChk = 30, 31, 32, 33
    sOwn = 34

    def tstamp(i):
        if tl:
            a(f"s_memrealtime s[{48+2*i}:{49+2*i}]")

    def tmask(i):
        m = 0
        for b in range(4):
            if i >> b & 1:
                m ^= col[10 + b]
        return m << 10

    kstep, vstep = (1024, 256) if kvmode == 0 else (256, 1024)

    if o["fastpro"]:
        assert not kpat and (ua, ub) == (10, 11)
        a("s_load_dwordx8 s[4:11], s[0:1], 0")
        a("s_load_dwordx4 s[12:15], s[0:1], 32")
        if amp:
            a("s_memrealtime s[40:41]")
        if tl:
            for i in range(1, 10):
                a(f"s_mov_b32 s{48+2*i}, 0")
            a(f"s_mov_b32 s{sCap}, 0")
        tstamp(0)
        a(f"v_lshrrev_b32 v{vT0}, 6, v0")
        a(f"s_cmpk_ge_u32 s2, {NWG}")
        a(f"v_readfirstlane_b32 s{sW}, v{vT0}")
        a("s_cbranch_scc1 L_end")
        a.c("workgroup id bits -> head (address bits 21..25) and split; the ids of one head are 8 apart")
        a(f"s_bfe_u32 s3, s2, 0x10004")
        a(f"s_and_b32 s{sHead}, s2, 15")
        a(f"s_lshl1_add_u32 s{sHead}, s{sHead}, s3")
        a(f"s_lshr_b32 s{sSplit}, s2, 5")
        a(f"v_and_b32 v0, 63, v0")
        a(f"s_cmp_eq_u32 s{sW}, {NW}")
        a("s_cbranch_scc1 L_finisher")
        a.c("first tile of this wave: split, wave and die bits are xor-ed into address bits 12..20 so that")
        a.c("the tiles in flight spread evenly over memory stacks and banks (speed only)")
        a("s_getreg_b32 s3, hwreg(HW_REG_XCC_ID, 2, 1)")
        a("s_bfe_u32 s21, s2, 0x10001")
        a("s_xor_b32 s3, s3, s21")
        a(f"s_mul_i32 s3, s3, {col[13]}")
        a(f"s_lshl2_add_u32 s{sBase}, s{sW}, 0" if False else f"s_lshl_b32 s{sBase}, s{sW}, 2")
        a(f"s_xor_b32 s{sBase}, s{sBase}, s3")
        for b in (5, 6, 7):
            a(f"s_bitcmp1_b32 s2, {b}")
            a(f"s_cselect_b32 s3, {col[b] & 0xffff}, 0")
            a(f"s_xor_b32 s{sBase}, s{sBase}, s3")
        a(f"s_lshl_b32 s3, s{sHead}, 11")
        a(f"s_or_b32 s{sBase}, s{sBase}, s3")
        a(f"s_lshl_b32 s{sBase}, s{sBase}, 10")
        rows = o["pat"].split()
        assert rows[9:14] == ["j1", "x0", "x1", "x2", "j0"] and col[8] == 4 and col[9] == 8
        assert all((col[b] & 0x7ff) == 0 for b in range(5))
    else:
        a("s_load_dwordx8 s[4:11], s[0:1], 0")
        a("s_load_dwordx4 s[12:15], s[0:1], 32")
        a(f"s_cmpk_ge_u32 s2, {NWG}")
        a("s_cbranch_scc1 L_end")
        if kpat:
            a("s_load_dwordx16 s[76:91], s[0:1], 48")
        if amp:
            a("s_memrealtime s[40:41]")
        if tl:
            for i in range(1, 10):
                a(f"s_mov_b32 s{48+2*i}, 0")
            a(f"s_mov_b32 s{sCap}, 0")
        tstamp(0)
        a(f"v_lshrrev_b32 v{vT0}, 6, v0")
        if o["pf"]:
            a.c("pull the kernel's own code into L2 while the kernel arguments are on their way")
            a("s_getpc_b64 s[22:23]")
            a(f"v_lshlrev_b32 v{vT1}, 7, v0")
            a(f"v_min_u32 v{vT1}, L_end-.-64, v{vT1}")
            a.vmem(f"global_load_dword v{vC}, v{vT1}, s[22:23]", "pf")
        else:
            a("s_nop 0")
        a(f"v_readfirstlane_b32 s{sW}, v{vT0}")
        a(f"v_and_b32 v0, 63, v0")
        a.c("(workgroup, wave) -> first tile, head and split: an xor-linear map of the id bits")
        a(f"s_lshl_b32 s21, s{sW}, 8")
        if o["xrot"]:
            a(f"s_add_u32 s3, s2, {o['xrot']}")
            a("s_and_b32 s3, s3, 7")
            a("s_and_b32 s23, s2, 0xf8")
            a("s_or_b32 s23, s23, s3")
            a(f"s_or_b32 s21, s21, s23")
        else:
            a(f"s_or_b32 s21, s21, s2")
        if kpat:
            a("s_waitcnt lgkmcnt(0)")
        for b in range(10):
            src = f"s{76+b}" if kpat else str(col[b])
            a(f"s_bitcmp1_b32 s21, {b}")
            if b == 0:
                a(f"s_cselect_b32 s{sBase}, {src}, 0")
            else:
                a(f"s_cselect_b32 s3, {src}, 0")
                a(f"s_xor_b32 s{sBase}, s{sBase}, s3")
        if o["iodfix"]:
            a.c("order of this wave's own tiles follows the die it really runs on (speed only)")
            a("s_getreg_b32 s3, hwreg(HW_REG_XCC_ID, 0, 4)")
            a("s_xor_b32 s3, s3, s21")
            a("s_bitcmp1_b32 s3, 2")
            a(f"s_cselect_b32 s3, {col[13]}, 0")
            a(f"s_xor_b32 s{sBase}, s{sBase}, s3")
        if kpat:
            for b in range(4):
                a(f"s_and_b32 s{86+b}, s{86+b}, {0x1ffc00 & ~((1 << ua) | (1 << ub))}")
        a(f"s_bfe_u32 s{sSplit}, s{sBase}, 0x30010")
        a(f"s_bfe_u32 s{sHead}, s{sBase}, 0x5000b")
        a(f"s_and_b32 s{sBase}, s{sBase}, {0xffff & ~((1 << (ua - 10)) | (1 << (ub - 10)))}")
        a(f"s_lshl_b32 s{sBase}, s{sBase}, 10")
        a(f"s_cmp_eq_u32 s{sW}, {NW}")
        a("s_cbranch_scc1 L_finisher")
    a.c("lane patterns: lane = (g, a, b) for K and q, (g, c) for V")
    a(f"v_and_b32 v{vT1}, 3, v0")
    a(f"v_lshlrev_b32 v{vT1}, 4, v{vT1}")
    a(f"v_and_b32 v{vM}, 48, v0")
    a(f"v_lshl_add_u32 v{vT1}, v{vM}, 2, v{vT1}")
    a(f"v_and_b32 v{vL}, 12, v0")
    a(f"v_lshlrev_b32 v{vL}, {6 if kvmode == 0 else 8}, v{vL}")
    a(f"v_add3_u32 v{vK}, v{vL}, v{vT1}, s{sBase}")
    if o["kx"]:
        a(f"v_xor_b32 v{vK}, {o['kx']}, v{vK}")
    a(f"s_lshl_b32 s{sOut}, s{sHead}, 8")
    a(f"v_add_u32 v{vT1}, s{sOut}, v{vT1}")
    if o["R2"]:
        if o["psel"] == 0:
            a("s_bitcmp1_b32 s2, 0")
        else:
            a("s_getreg_b32 s3, hwreg(HW_REG_XCC_ID, 0, 4)")
            a("s_bitcmp1_b32 s3, 0")
    if o["pst"]:
        tstamp(2)
    a("s_waitcnt lgkmcnt(0)")
    tstamp(1)
    if o["R2"]:
        a("s_cbranch_scc1 L_body1")
    vm0 = list(a.vm)

    def poll_issue():
        a(f"global_load_dwordx2 v[{vQM}:{vQL}], v{vQC}, s[14:15] sc1")
        for w in range(1, S):
            a(f"global_load_dwordx2 v[{vQ+2*w}:{vQ+2*w+1}], v{vQA}, s[14:15] offset:{w * 512} sc1")

    def body(R, sfx, mode):
        a.vm = list(vm0)

        def slot(n):
            return vRing + 16 * (n % (NSLOT if sched else R + (1 if mode == 1 else 0)))

        nxt = [0]

        def refill(n):
            st = 0
            while nxt[0] < min(2 * T, n + 1 + window(n, R)):
                st += issue_tile(nxt[0])
                nxt[0] += 1
            return st

        his = sorted({(((t & 1) << ua) + ((t >> 1) << ub)) & ~0xfff for t in range(4)} - {0})
        kb = {hi: 24 + 2 * i for i, hi in enumerate(his)}
        made = set()

        def issue_tile(n):
            isK = n < T
            i = n if isK else n - T
            va, base, step = (vK, "s[6:7]", kstep) if isK else (vV, "s[8:9]", vstep)
            if i > 0:
                if kpat:
                    a(f"v_xor_b32 v{va}, s{86 + (i ^ (i - 1)).bit_length() - 1}, v{va}")
                else:
                    a(f"v_xor_b32 v{va}, {tmask(i) ^ tmask(i - 1)}, v{va}")
            r = slot(n)
            for t in range(4):
                if isK:
                    d = ((t & 1) << ua) + ((t >> 1) << ub)
                    hi = d & ~0xfff
                    bs = "s[6:7]" if not hi else f"s[{kb[hi]}:{kb[hi]+1}]"
                    if hi and n == 0 and hi not in made:
                        a(f"s_add_u32 s{kb[hi]}, s6, {hi}")
                        a(f"s_addc_u32 s{kb[hi]+1}, s7, 0")
                        made.add(hi)
                    off = f" offset:{d & 0xfff}" if d & 0xfff else ""
                else:
                    bs = base
                    off = f" offset:{t*256}" if t else ""
                a.vmem(f"global_load_dwordx4 v[{r+4*t}:{r+4*t+3}], v{va}, {bs}{off}{pol}", ("t", n, t))
            return 4 + (1 if i > 0 else 0)

        def cond_issue(n, site):
            lab = f"L_skip{site}{n}{sfx}"
            a(f"s_bitcmp{'0' if site == 'A' else '1'}_b32 s37, 0")
            a(f"s_cbranch_scc1 {lab}")
            keep = list(a.vm)
            issue_tile(n)
            if site == "A":
                a.vm = keep
            a.label(lab)
            return 2

        def side_work(n):
            if n == (o["barA"] or 2 * T - R - 1):
                a.c("barrier A: the (m, l) of all four waves are in LDS, the finishing wave may use them")
                a("s_waitcnt lgkmcnt(0)")
                a("s_barrier")
                return 2
            return 0

        if o["qpos"] == 0:
            a.vmem(f"global_load_dwordx4 v[{vD}:{vD+3}], v{vT1}, s[4:5]", "q")
        for n in range(window(-1, R)):
            issue_tile(n)
            nxt[0] = n + 1
            if n + 1 == o["qpos"]:
                a.vmem(f"global_load_dwordx4 v[{vD}:{vD+3}], v{vT1}, s[4:5]", "q")
        if not o["pst"]:
            tstamp(2)
        if mode == 3:
            a("s_getreg_b32 s37, hwreg(HW_REG_XCC_ID, 0, 1)")
            if o["psel"] == 2:
                a("s_xor_b32 s37, s37, 1")
        if o["wprio"]:
            for w, pr in enumerate(o["wprio"]):
                if pr != "0":
                    a(f"s_cmp_lg_u32 s{sW}, {w}")
                    a(f"s_cbranch_scc1 L_pr{w}{sfx}")
                    a(f"s_setprio {pr}")
                    a.label(f"L_pr{w}{sfx}")
        if kvmode == 0:
            a(f"v_and_b32 v{vL}, 15, v0")
            a(f"v_lshlrev_b32 v{vL}, 4, v{vL}")
            if (ua, ub) == (10, 11):
                a(f"v_lshl_add_u32 v{vV}, v{vM}, 6, v{vL}")
            else:
                a(f"v_and_b32 v{vV}, 16, v0")
                a(f"v_lshl_add_u32 v{vL}, v{vV}, {ua - 4}, v{vL}")
                a(f"v_and_b32 v{vV}, 32, v0")
                a(f"v_lshl_add_u32 v{vV}, v{vV}, {ub - 5}, v{vL}")
            a(f"v_add_u32 v{vV}, s{sBase}, v{vV}")
            if o["vx"]:
                a(f"v_xor_b32 v{vV}, {o['vx']}, v{vV}")
        else:
            a(f"v_lshl_add_u32 v{vV}, v0, 4, s{sBase}")
        a.c("LDS address of this wave's partial: w*512 + c*32 + (g&1)*16")
        a(f"v_and_b32 v{vT0}, 15, v0")
        a(f"v_lshlrev_b32 v{vT0}, 5, v{vT0}")
        a(f"v_and_b32 v{vLA}, 16, v0")
        a(f"s_lshl_b32 s3, s{sW}, 9")
        a(f"v_add3_u32 v{vLA}, v{vT0}, v{vLA}, s3")
        a.c("half-word masks that place p on the diagonal of the P operand")
        a(f"v_and_b32 v{vT0}, 1, v0")
        a(f"v_lshlrev_b32 v{vT0}, 4, v{vT0}")
        a(f"s_mov_b32 s3, 0xffff")
        a(f"v_lshlrev_b32 v{vT0}, v{vT0}, s3")
        a(f"s_mov_b32 vcc_lo, 0x03030303")
        a(f"s_mov_b32 vcc_hi, vcc_lo")
        for i in range(4):
            a(f"v_cndmask_b32 v{vMask+i}, 0, v{vT0}, vcc")
            if i < 3:
                a(f"s_lshl_b64 vcc, vcc, 2")
        a(f"s_mov_b32 vcc_lo, 0x000f000f")
        a(f"s_mov_b32 vcc_hi, vcc_lo")
        a.wait_tag("q")
        cval = math.log2(math.e) / math.sqrt(128.0)
        a(f"v_mov_b32 v{vC}, 0x{f2u(cval):08x}")
        a.c("q operand t is q in rows 4t..4t+3 and zero elsewhere")
        for t in range(4):
            for i in range(4):
                a(f"v_cndmask_b32 v{vA+4*t+i}, 0, v{vD+i}, vcc")
            if t < 3:
                a(f"s_lshl_b64 vcc, vcc, 4")

        def wait_tile(n, t=3):
            if any(x == ("t", n, t) for x in a.vm):
                a.wait_tag(("t", n, t))
                return 1
            return 0

        for n in range(T):
            a.c(f"K tile {n}")
            w = wait_tile(n)
            if n == 0:
                a("s_nop 0" if w else "s_nop 1")
                tstamp(3)
            r = slot(n)
            if mode == 1:
                issue_tile(n + R)
            for t in range(4):
                cin = "0" if t == 0 else f"v[{vD}:{vD+3}]"
                a(f"v_mfma_f32_16x16x32_bf16 v[{vD}:{vD+3}], v[{vA+4*t}:{vA+4*t+3}], v[{r+4*t}:{r+4*t+3}], {cin}")
            st = refill(n) if mode == 0 else 0
            if mode == 3:
                st = cond_issue(n + R, "A")
            st += side_work(n)
            if st < 8:
                a(f"s_nop {8 - st - 1}")
            s = vS + n
            a(f"v_mov_b32_dpp v{s}, v{vD} quad_perm:[0,0,0,0] row_mask:0xf bank_mask:0xf")
            a(f"v_mov_b32_dpp v{vT0}, v{vD+1} quad_perm:[1,1,1,1] row_mask:0xf bank_mask:0xf")
            a("s_nop 0")
            a(f"v_add_f32_dpp v{s}, v{vD+2}, v{s} quad_perm:[2,2,2,2] row_mask:0xf bank_mask:0xf")
            a(f"v_add_f32_dpp v{vT0}, v{vD+3}, v{vT0} quad_perm:[3,3,3,3] row_mask:0xf bank_mask:0xf")
            a(f"v_add_f32 v{s}, v{s}, v{vT0}")
            if mode == 2:
                issue_tile(n + R)
            if mode == 3:
                cond_issue(n + R, "B")
            if n == 1:
                a(f"v_max_f32 v{vM}, v{vS}, v{vS+1}")
            elif n > 1 and n % 2 == 1:
                a(f"v_max3_f32 v{vM}, v{vM}, v{s-1}, v{s}")
        a.c("true maximum of this wave's scores")
        tstamp(4)
        red = ("row_ror:4 row_mask:0xf", "row_ror:8 row_mask:0xf", "row_bcast:15 row_mask:0xa", "row_bcast:31 row_mask:0xc")
        for ctl in red:
            a("s_nop 1")
            a(f"v_max_f32_dpp v{vM}, v{vM}, v{vM} {ctl} bank_mask:0xf")
        a(f"v_mul_f32 v{vM}, v{vC}, v{vM}")
        a("s_nop 0")
        a(f"v_readlane_b32 s{sMc}, v{vM}, 63")
        a("s_nop 1")
        def probs(lo, hi):
            for n in range(lo, hi):
                a(f"v_fma_f32 v{vS+n}, v{vS+n}, v{vC}, -s{sMc}")
            for n in range(lo, hi):
                a(f"v_exp_f32 v{vS+n}, v{vS+n}")
            if lo == 0:
                a(f"v_mov_b32 v{vM}, s{sMc}")
                a(f"v_mov_b32 v{vL}, v{vS}")
            else:
                a("s_nop 0")
            for n in range(max(lo, 1), hi):
                if o["halves"] and n == T // 2:
                    a(f"v_mov_b32 v{vT1}, v{vS+n}")
                elif o["halves"] and n > T // 2:
                    a(f"v_add_f32 v{vT1}, v{vT1}, v{vS+n}")
                else:
                    a(f"v_add_f32 v{vL}, v{vL}, v{vS+n}")
            if o["halves"] and hi == T:
                a(f"v_add_f32 v{vL}, v{vL}, v{vT1}")
            for n in range(lo, hi):
                a(f"v_cvt_pk_bf16_f32 v{vS+n}, v{vS+n}, v{vS+n}")

        def publish_ml():
            for ctl in red:
                a(f"v_add_f32_dpp v{vL}, v{vL}, v{vL} {ctl} bank_mask:0xf")
                a("s_nop 1")
            a(f"s_lshl_b32 s3, s{sW}, 3")
            a(f"v_mov_b32 v{vT0}, s3")
            a(f"s_brev_b64 exec, 1")
            a(f"ds_write_b64 v{vT0}, v[{vM}:{vL}] offset:{NW*512}")
            a(f"s_mov_b64 exec, -1")
        sp = o["spread"]
        if not sp:
            probs(0, T)
            publish_ml()
        else:
            probs(0, 1)
            a("s_nop 1")
        for i in range(T):
            n = T + i
            a.c(f"V tile {i}")
            for u in range(4):
                for j in range(4):
                    a(f"v_and_b32_dpp v{vA+4*u+j}, v{vS+i}, v{vMask+j} row_newbcast:{4*u} row_mask:0xf bank_mask:0xf")
            if mode == 2 and i > 0 and n - 1 + R < 2 * T:
                issue_tile(n - 1 + R)
            if mode == 3 and i > 0 and n - 1 + R < 2 * T:
                cond_issue(n - 1 + R, "B")
            fine = o["fine"] and i == T - 1
            if not fine:
                wait_tile(n)
                a("s_nop 0")
            if mode == 1 and n + R < 2 * T:
                issue_tile(n + R)
            r = slot(n)
            for u in range(4):
                if fine:
                    wait_tile(n, u)
                    if u == 0:
                        a("s_nop 0")
                acc = vD if (o["halves"] and i < T // 2) else vO
                first = u == 0 and (i == 0 or (o["halves"] and i == T // 2))
                cin = "0" if first else f"v[{acc}:{acc+3}]"
                a(f"v_mfma_f32_16x16x32_bf16 v[{acc}:{acc+3}], v[{vA+4*u}:{vA+4*u+3}], v[{r+4*u}:{r+4*u+3}], {cin}")
            if mode == 0:
                refill(n)
            if mode == 3 and n + R < 2 * T:
                cond_issue(n + R, "A")
            if sp:
                lo, hi = 1 + i * sp, min(T, 1 + (i + 1) * sp)
                if lo < T:
                    probs(lo, hi)
                    a("s_nop 1")
                    if hi == T:
                        publish_ml()
            side_work(n)

    body(o["R"], "a", o["mode"])
    if o["R2"]:
        a("s_branch L_join")
        a.label("L_body1")
        body(o["R2"], "b", o["mode2"])
        a.label("L_join")
    a.vm = []
    a("s_nop 7")
    if o["halves"]:
        a.c("the two halves of the keys are summed apart, so their order does not change the result")
        a(f"v_pk_add_f32 v[{vO}:{vO+1}], v[{vO}:{vO+1}], v[{vD}:{vD+1}]")
        a(f"v_pk_add_f32 v[{vO+2}:{vO+3}], v[{vO+2}:{vO+3}], v[{vD+2}:{vD+3}]")
    tstamp(5)
    a(f"ds_write_b128 v{vLA}, v[{vO}:{vO+3}]")
    a("s_waitcnt lgkmcnt(0)")
    a.c("barrier B: the partial outputs of all four waves are in LDS")
    a("s_barrier")
    tstamp(6)
    a("s_branch L_fin" if (tl or amp) else "s_endpgm")

    a.label("L_finisher")
    if o["prio"]:
        a(f"s_setprio {o['prio']}")
    if o["fastpro"] and o["pf"]:
        a.c("pull the kernel's own code into L2 while the kernel arguments are on their way")
        a("s_getpc_b64 s[22:23]")
        a.label("L_pc")
        a(f"s_sub_u32 s22, s22, L_pc-{NAME}")
        a("s_subb_u32 s23, s23, 0")
        a(f"v_lshlrev_b32 v{vT1}, 7, v0")
        a(f"v_min_u32 v{vT0}, L_end-{NAME}, v{vT1}")
        a(f"global_load_dword v{vC}, v{vT0}, s[22:23]")
        a(f"v_add_u32 v{vT1}, 8192, v{vT1}")
        a(f"v_min_u32 v{vT1}, L_end-{NAME}, v{vT1}")
        a(f"global_load_dword v{vG}, v{vT1}, s[22:23]")
    a.c("hand-off addresses and constants")
    a(f"s_lshl_b32 s{sHB}, s{sHead}, 13")
    a(f"s_lshl_b32 s{sSlot}, s{sSplit}, 9")
    a(f"s_add_u32 s{sSlot}, s{sSlot}, s{sHB}")
    a(f"s_lshl_b32 s{sDbg}, s{sHead}, 2")
    a(f"s_mov_b32 s{sRole}, s{sSplit}")
    a(f"s_getreg_b32 s{sMine}, hwreg(HW_REG_XCC_ID, 0, 4)")
    a(f"s_or_b32 s{sMine}, s{sMine}, 0x100")
    a(f"s_mov_b32 s{sChk}, 0")
    a(f"s_mov_b32 s{sOwn}, 0x01010101")
    a(f"s_mov_b32 s{sOwn+1}, s{sOwn}")
    a(f"v_lshl_add_u32 v{vQS}, v0, 3, s{sSlot}")
    a(f"v_min_u32 v{vX}, 32, v0")
    a(f"v_lshl_add_u32 v{vX}, v{vX}, 7, s{sHB}")
    a(f"v_lshl_add_u32 v{vQA}, v0, 3, s{sHB}")
    a(f"v_lshl_add_u32 v{vQB}, v0, 4, s{sHB}")
    a(f"s_add_u32 s3, s{sHB}, 4096")
    a(f"v_and_b32 v{vQC}, 7, v0")
    a(f"v_lshl_add_u32 v{vQC}, v{vQC}, 3, s3")
    a(f"s_lshl_b32 s21, s{sSplit}, 3")
    a(f"s_add_u32 s21, s21, s3")
    a(f"v_mov_b32 v{vQD}, s21")
    for k in range(4):
        a(f"v_mov_b32 v{vQ+k}, -1")
    a(f"s_lshl_b32 s{sOut}, s{sHead}, 8")
    a(f"v_and_b32 v{vLA}, {NW-1}, v0")
    a(f"v_lshlrev_b32 v{vLA}, 3, v{vLA}")
    a(f"v_lshlrev_b32 v{vK}, 3, v0")
    a(f"v_lshl_add_u32 v{vV}, v0, 2, s{sOut}")
    a(f"s_cmp_lg_u32 s{sRole}, 0")
    a("s_waitcnt lgkmcnt(0)")
    tstamp(1)
    if o["twarm"] & 1:
        a.c("touch the V page early so that its address translation is ready (value unused)")
        a(f"v_mov_b32 v{vG}, s{sBase}")
        a("s_mov_b64 exec, 1")
        a(f"global_load_dword v{vG}, v{vG}, s[8:9] nt")
        a("s_mov_b64 exec, -1")
    if o["twarm"] & 2:
        a("s_mov_b64 exec, 1")
        a(f"global_load_dword v{vTS}, v{vQS}, s[14:15] sc1")
        a("s_mov_b64 exec, -1")
    a("s_cbranch_scc1 L_barA")
    a.c("collector: bring the hand-off lines into its L2, mark every word as empty, then announce the die")
    a(f"global_load_dword v{vX}, v{vX}, s[14:15] sc1")
    a("s_waitcnt vmcnt(0)")
    if not o["noclr"]:
        for k in range(4):
            a(f"global_store_dwordx4 v{vQB}, v[{vQ}:{vQ+3}], s[14:15] offset:{k*1024}")
        a(f"global_store_dwordx2 v{vQC}, v[{vQ}:{vQ+1}], s[14:15]")
    a(f"v_mov_b32 v{vT0}, s{sDbg}")
    a(f"v_mov_b32 v{vT1}, s{sMine}")
    a("s_mov_b64 exec, 1")
    a("s_waitcnt vmcnt(0)")
    if o["noflg"] == 0:
        a(f"global_store_dword v{vT0}, v{vT1}, s[12:13] sc1")
    elif o["noflg"] == 2:
        a(f"s_mov_b32 s3, s{sMine}")
        a(f"s_atomic_or s3, s[12:13], s{sDbg}")
    elif o["noflg"] == 3:
        a(f"global_store_dword v{vT0}, v{vT1}, s[12:13]")
    a("s_mov_b64 exec, -1")
    a.label("L_barA")
    a("s_barrier")
    a(f"s_load_dword s{sChk}, s[12:13], s{sDbg}")
    a(f"ds_read_b64 v[{vM}:{vL}], v{vLA} offset:{NW*512}")
    a("s_waitcnt vmcnt(0) lgkmcnt(0)")
    a.c("workgroup maximum, per-wave factors and workgroup sum")
    a(f"v_max_f32_dpp v{vT0}, v{vM}, v{vM} row_ror:1 row_mask:0xf bank_mask:0xf")
    a("s_nop 1")
    a(f"v_max_f32_dpp v{vT0}, v{vT0}, v{vT0} row_ror:2 row_mask:0xf bank_mask:0xf")
    a(f"v_sub_f32 v{vC}, v{vM}, v{vT0}")
    a(f"v_exp_f32 v{vC}, v{vC}")
    a(f"v_min_u32 v{vM}, -2, v{vT0}")
    a(f"v_mul_f32 v{vL}, v{vL}, v{vC}")
    a("s_nop 1")
    a(f"v_add_f32_dpp v{vL}, v{vL}, v{vL} row_ror:1 row_mask:0xf bank_mask:0xf")
    a("s_nop 1")
    a(f"v_add_f32_dpp v{vL}, v{vL}, v{vL} row_ror:2 row_mask:0xf bank_mask:0xf")
    if o["noflg"] == 1:
        a(f"s_mov_b32 s{sChk}, s{sMine}")
    if o["forceslow"] == 1:
        a(f"s_mov_b32 s{sChk}, 0")
    elif o["forceslow"] == 2:
        a(f"s_bitcmp1_b32 s{sSplit}, 0")
        a(f"s_cselect_b32 s{sChk}, 0, s{sChk}")
    a(f"s_mov_b32 s{sCap}, {o['cap']}")
    a(f"s_mov_b32 s{sDone}, 0")
    a(f"v_min_u32 v{vL}, -2, v{vL}")
    a.c("role: 0 collect, 1 hand over through the shared L2, 2 hand over through memory")
    a(f"s_cmp_eq_u32 s{sChk}, s{sMine}")
    a(f"s_cselect_b32 s{sChk}, 1, 2")
    a(f"s_cmp_eq_u32 s{sRole}, 0")
    a(f"s_cselect_b32 s{sRole}, 0, s{sChk}")
    a(f"s_cmp_lg_u32 s{sRole}, 1")
    a("s_cbranch_scc1 L_notfast")
    a("s_mov_b64 exec, 1")
    a(f"global_store_dwordx2 v{vQD}, v[{vM}:{vL}], s[14:15]")
    a("s_mov_b64 exec, -1")
    a("s_branch L_barB")
    a.label("L_notfast")
    if o["pre"]:
        a(f"s_cmp_lg_u32 s{sRole}, 0")
        a("s_cbranch_scc1 L_barB")
        a.c("collector: try to get all (m, l) now, so that only the sums are left for the end")
        a(f"s_mov_b32 s3, {o['pre']}")
        a.label("L_mlpoll")
        a(f"global_load_dwordx2 v[{vQM}:{vQL}], v{vQC}, s[14:15] sc1")
        a("s_waitcnt vmcnt(0)")
        a(f"v_cndmask_b32 v{vQM}, v{vQM}, v{vM}, s[{sOwn}:{sOwn+1}]")
        a(f"v_cndmask_b32 v{vQL}, v{vQL}, v{vL}, s[{sOwn}:{sOwn+1}]")
        a(f"v_max_u32 v{vT0}, v{vQM}, v{vQL}")
        a(f"v_cmp_eq_u32 vcc, -1, v{vT0}")
        a("s_cbranch_vccz L_mlready")
        a("s_sub_u32 s3, s3, 1")
        a("s_cmp_lg_u32 s3, 0")
        a("s_cbranch_scc1 L_mlpoll")
        a("s_branch L_barB")
        a.label("L_mlready")
        a(f"v_max_f32_dpp v{vT0}, v{vQM}, v{vQM} row_ror:1 row_mask:0xf bank_mask:0xf")
        for k in (2, 4):
            a("s_nop 1")
            a(f"v_max_f32_dpp v{vT0}, v{vT0}, v{vT0} row_ror:{k} row_mask:0xf bank_mask:0xf")
        a(f"v_sub_f32 v{vG}, v{vQM}, v{vT0}")
        a(f"v_exp_f32 v{vG}, v{vG}")
        a("s_nop 0")
        a(f"v_mul_f32 v{vT0}, v{vQL}, v{vG}")
        for k in (1, 2, 4):
            a("s_nop 1")
            a(f"v_add_f32_dpp v{vT0}, v{vT0}, v{vT0} row_ror:{k} row_mask:0xf bank_mask:0xf")
        a(f"v_rcp_f32 v{vT0}, v{vT0}")
        a(f"s_mov_b32 s{sRole}, -1")
        a(f"v_mul_f32 v{vG}, v{vG}, v{vT0}")
        a("s_barrier")
        tstamp(6)
        for w in range(NW):
            a(f"ds_read_b64 v[{vRing+2*w}:{vRing+2*w+1}], v{vK} offset:{w*512}")

        def oissue(base):
            for w in range(1, S):
                a(f"global_load_dwordx2 v[{base+2*w}:{base+2*w+1}], v{vQA}, s[14:15] offset:{w * 512} sc1")

        def ocheck(base, extra, lab):
            for h in range(2):
                a(f"v_mul_f32_dpp v{vO+2+h}, v{vG}, v{vO+h} row_newbcast:0 row_mask:0xf bank_mask:0xf")
            for w in range(1, S):
                a(f"s_waitcnt vmcnt({S-1-w+extra})")
                if w == 1:
                    a(f"v_max_u32 v{vT0}, v{base+2}, v{base+3}")
                else:
                    a(f"v_max3_u32 v{vT0}, v{vT0}, v{base+2*w}, v{base+2*w+1}")
                if w == S - 1:
                    a(f"v_cmp_eq_u32 vcc, -1, v{vT0}")
                for h in range(2):
                    a(f"v_fmac_f32_dpp v{vO+2+h}, v{vG}, v{base+2*w+h} row_newbcast:{w} row_mask:0xf bank_mask:0xf")
            a(f"v_cvt_pk_bf16_f32 v{vT1}, v{vO+2}, v{vO+3}")
            a(f"s_cbranch_vccz {lab}")

        def ofinal(base):
            tstamp(8)
            a(f"global_store_dword v{vV}, v{vT1}, s[10:11]")
            a("s_branch L_stored" if (tl or amp) else "s_endpgm")
        oissue(vQ)
        for w in range(NW):
            a(f"s_waitcnt lgkmcnt({0 if tl else NW - 1 - w})")
            op = "v_mul_f32_dpp" if w == 0 else "v_fmac_f32_dpp"
            for h in range(2):
                a(f"{op} v{vO+h}, v{vC}, v{vRing+2*w+h} row_newbcast:{w} row_mask:0xf bank_mask:0xf")
        tstamp(7)
        if not o["pipe"]:
            a.label("L_opoll")
            ocheck(vQ, 0, "L_oready")
            oissue(vQ)
            a(f"s_sub_u32 s{sCap}, s{sCap}, 1")
            a(f"s_cmp_lg_u32 s{sCap}, 0")
            a("s_cbranch_scc1 L_opoll")
            a("s_branch L_fin")
            a.label("L_oready")
            ofinal(vQ)
        else:
            vQ2 = vRing + 16
            a.label("L_opoll")
            oissue(vQ2)
            ocheck(vQ, 7, "L_oready")
            oissue(vQ)
            ocheck(vQ2, 7, "L_oready2")
            a(f"s_sub_u32 s{sCap}, s{sCap}, 1")
            a(f"s_cmp_lg_u32 s{sCap}, 0")
            a("s_cbranch_scc1 L_opoll")
            a("s_branch L_fin")
            a.label("L_oready")
            a.label("L_oready2")
            ofinal(vQ)
    a.label("L_barB")
    a(f"s_cmp_eq_u32 s{sRole}, 0")
    a("s_barrier")
    tstamp(6)
    for w in range(NW):
        a(f"ds_read_b64 v[{vRing+2*w}:{vRing+2*w+1}], v{vK} offset:{w*512}")
    if o["spec"]:
        a("s_cbranch_scc0 L_nospec")
        poll_issue()
        a.label("L_nospec")
    for w in range(NW):
        a(f"s_waitcnt lgkmcnt({0 if tl else NW - 1 - w})")
        op = "v_mul_f32_dpp" if w == 0 else "v_fmac_f32_dpp"
        for h in range(2):
            a(f"{op} v{vO+h}, v{vC}, v{vRing+2*w+h} row_newbcast:{w} row_mask:0xf bank_mask:0xf")
    a(f"s_cmp_lg_u32 s{sRole}, 1")
    a(f"v_min_u32 v{vQ}, -2, v{vO}")
    a(f"v_min_u32 v{vQ+1}, -2, v{vO+1}")
    a("s_cbranch_scc1 L_other")
    a.c("the collector runs on this die and has marked the slot: a plain store meets it in the shared L2")
    a(f"global_store_dwordx2 v{vQS}, v[{vQ}:{vQ+1}], s[14:15]")
    tstamp(7)
    if tl:
        a(f"s_mov_b32 s{sCap}, 0")
    a("s_branch L_fin" if (tl or amp) else "s_endpgm")
    a.label("L_other")
    a(f"s_cmp_lg_u32 s{sRole}, 0")
    a("s_cbranch_scc1 L_slowput")
    tstamp(7)
    if o["spec"]:
        a("s_branch L_check")

    def combine(n, vP, m, l, waitfn):
        lg = int(math.log2(n))
        waitfn("ml")
        a(f"v_max_f32_dpp v{vT0}, v{m}, v{m} row_ror:1 row_mask:0xf bank_mask:0xf")
        for k in range(1, lg):
            a("s_nop 1")
            a(f"v_max_f32_dpp v{vT0}, v{vT0}, v{vT0} row_ror:{1<<k} row_mask:0xf bank_mask:0xf")
        a(f"v_sub_f32 v{vT1}, v{m}, v{vT0}")
        a(f"v_exp_f32 v{vT1}, v{vT1}")
        a(f"v_mov_b32 v{vM}, v{vT0}")
        a(f"v_mul_f32 v{vL}, v{l}, v{vT1}")
        waitfn("o")
        for w in range(n):
            op = "v_mul_f32_dpp" if w == 0 else "v_fmac_f32_dpp"
            for h in range(2):
                a(f"{op} v{vO+h}, v{vT1}, v{vP+2*w+h} row_newbcast:{w} row_mask:0xf bank_mask:0xf")
            if w < lg:
                a(f"v_add_f32_dpp v{vL}, v{vL}, v{vL} row_ror:{1<<w} row_mask:0xf bank_mask:0xf")

    a.label("L_poll")
    poll_issue()
    a.label("L_check")
    a("s_waitcnt vmcnt(7)")
    a(f"v_cndmask_b32 v{vQM}, v{vQM}, v{vM}, s[{sOwn}:{sOwn+1}]")
    a(f"v_cndmask_b32 v{vQL}, v{vQL}, v{vL}, s[{sOwn}:{sOwn+1}]")
    a(f"v_max_u32 v{vT0}, v{vQM}, v{vQL}")
    for w in range(1, S):
        a(f"s_waitcnt vmcnt({S-1-w})")
        a(f"v_max3_u32 v{vT0}, v{vT0}, v{vQ+2*w}, v{vQ+2*w+1}")
    a(f"v_cmp_eq_u32 vcc, -1, v{vT0}")
    a("s_cbranch_vccz L_ready")
    a(f"s_sub_u32 s{sCap}, s{sCap}, 1")
    a(f"s_and_b32 s3, s{sCap}, 7")
    a(f"s_cselect_b32 s3, s{sDone}, 1")
    a(f"s_cmp_eq_u32 s3, 0")
    a("s_cbranch_scc1 L_poll")
    a("s_branch L_slowpoll")
    a.label("L_ready")
    tstamp(8)
    a(f"v_max_f32_dpp v{vT0}, v{vQM}, v{vQM} row_ror:1 row_mask:0xf bank_mask:0xf")
    for k in (2, 4):
        a("s_nop 1")
        a(f"v_max_f32_dpp v{vT0}, v{vT0}, v{vT0} row_ror:{k} row_mask:0xf bank_mask:0xf")
    a(f"v_sub_f32 v{vG}, v{vQM}, v{vT0}")
    a(f"v_exp_f32 v{vG}, v{vG}")
    a("s_nop 0")
    a(f"v_mul_f32 v{vT0}, v{vQL}, v{vG}")
    for k in (1, 2, 4):
        a("s_nop 1")
        a(f"v_add_f32_dpp v{vT0}, v{vT0}, v{vT0} row_ror:{k} row_mask:0xf bank_mask:0xf")
    a(f"v_rcp_f32 v{vT0}, v{vT0}")
    a("s_nop 0")
    a(f"v_mul_f32 v{vG}, v{vG}, v{vT0}")
    a("s_nop 1")
    for w in range(S):
        op = "v_mul_f32_dpp" if w == 0 else "v_fmac_f32_dpp"
        for h in range(2):
            a(f"{op} v{vO+h}, v{vG}, v{vQ+2*w+h} row_newbcast:{w} row_mask:0xf bank_mask:0xf")
        a("s_nop 0")
    a(f"v_cvt_pk_bf16_f32 v{vO}, v{vO}, v{vO+1}")
    a(f"global_store_dword v{vV}, v{vO}, s[10:11]")
    a.label("L_stored")
    if tl:
        a("s_waitcnt vmcnt(0)")
        tstamp(9)
    if amp:
        a("s_waitcnt vmcnt(0)")
        a(f"v_mov_b32 v{vT0}, 128")
        a(f"v_mov_b32 v{vT1}, 0x10000")
        a("s_mov_b64 exec, 1")
        a(f"global_atomic_add v{vT0}, v{vT1}, s[12:13]")
    a("s_branch L_fin" if (tl or amp) else "s_endpgm")
    a.label("L_slowput")
    a.c("collector on another die, or not announced yet: write through to the second slot set, then flag this split as done")
    a(f"v_add_u32 v{vQS}, {SLOW}, v{vQS}")
    a(f"s_lshl_b32 s3, s{sSplit}, 8")
    a(f"s_add_u32 s3, s3, s{sHB}")
    a(f"s_add_u32 s3, s3, {SLOW + 4096}")
    a(f"v_mov_b32 v{vQD}, s3")
    a(f"global_store_dwordx2 v{vQS}, v[{vQ}:{vQ+1}], s[14:15] sc1")
    a("s_mov_b64 exec, 1")
    a(f"global_store_dwordx2 v{vQD}, v[{vM}:{vL}], s[14:15] sc1")
    a(f"s_lshl_b32 s3, 1, s{sSplit}")
    a(f"v_mov_b32 v{vT0}, s{sDbg}")
    a(f"v_mov_b32 v{vT1}, s3")
    a("s_waitcnt vmcnt(0)")
    a(f"global_atomic_or v{vT0}, v{vT1}, s[12:13] offset:128")
    if tl:
        a(f"s_mov_b32 s{sCap}, 0")
        a(f"s_mov_b32 s71, 100")
    a("s_branch L_fin" if (tl or amp) else "s_endpgm")
    a.label("L_slowpoll")
    a.c("collector: look for splits that used the second slot set")
    a(f"s_cmp_eq_u32 s{sCap}, 0")
    a("s_cbranch_scc1 L_fin")
    a(f"v_mov_b32 v{vT0}, s{sDbg}")
    a(f"global_load_dword v{vT1}, v{vT0}, s[12:13] offset:128 sc1")
    a(f"v_and_b32 v{vT0}, 7, v0")
    a("s_waitcnt vmcnt(0)")
    a(f"v_readfirstlane_b32 s{sDone}, v{vT1}")
    a(f"v_lshrrev_b32 v{vT1}, v{vT0}, v{vT1}")
    a(f"v_and_b32 v{vT1}, 1, v{vT1}")
    a(f"v_cmp_eq_u32 vcc, 1, v{vT1}")
    a(f"s_add_u32 s3, s{sHB}, {SLOW + 4096}")
    a(f"v_lshl_add_u32 v{vT0}, v{vT0}, 8, s3")
    a(f"s_and_b32 s{sDone}, s{sDone}, 0xff")
    a(f"v_cndmask_b32 v{vT1}, v{vQC}, v{vT0}, vcc")
    a(f"global_load_dwordx2 v[{vQM}:{vQL}], v{vT1}, s[14:15] sc1")
    for w in range(1, S):
        a(f"s_bitcmp1_b32 s{sDone}, {w}")
        a(f"s_cselect_b32 s3, {SLOW}, 0")
        a(f"v_add_u32 v{vT1}, s3, v{vQA}")
        a(f"global_load_dwordx2 v[{vQ+2*w}:{vQ+2*w+1}], v{vT1}, s[14:15] offset:{w * 512} sc1")
    a("s_branch L_check")
    a.label("L_fin")
    if tl:
        a("s_mov_b64 exec, -1")
        a("s_getreg_b32 s46, hwreg(HW_REG_XCC_ID)")
        a("s_getreg_b32 s47, hwreg(HW_REG_HW_ID)")
        a("s_waitcnt lgkmcnt(0)")
        a(f"v_mov_b32 v{vT1}, 0")
        for i in range(10):
            a(f"v_writelane_b32 v{vT1}, s{48+2*i}, {i}")
        a(f"v_writelane_b32 v{vT1}, s{sCap}, 11")
        a(f"v_writelane_b32 v{vT1}, s71, 12")
        a(f"v_writelane_b32 v{vT1}, s46, 14")
        a(f"v_writelane_b32 v{vT1}, s47, 15")
        a(f"s_mul_i32 s46, s2, 5")
        a(f"s_add_u32 s46, s46, s{sW}")
        a(f"s_lshl_b32 s46, s46, 6")
        a(f"s_add_u32 s46, s46, 0x100000")
        a(f"v_lshlrev_b32 v{vT0}, 2, v0")
        a(f"v_add_u32 v{vT0}, s46, v{vT0}")
        a("s_mov_b64 exec, 0xffff")
        a(f"global_store_dword v{vT0}, v{vT1}, s[14:15]")
    if amp:
        a.c("diagnostic only: workgroup 0 waits for all heads, then holds for amp x elapsed")
        a(f"s_xor_b32 s44, s{sW}, {NW}")
        a(f"s_or_b32 s44, s44, s2")
        a("s_cmp_lg_u32 s44, 0")
        a("s_cbranch_scc1 L_end")
        a("s_mov_b64 exec, 1")
        a(f"v_mov_b32 v{vT0}, 128")
        a("s_mov_b32 s44, 200000")
        a.label("L_apoll")
        a(f"global_load_dword v{vT1}, v{vT0}, s[12:13] sc1")
        a("s_waitcnt vmcnt(0)")
        a(f"v_readfirstlane_b32 s45, v{vT1}")
        a("s_lshr_b32 s45, s45, 16")
        a("s_sub_u32 s44, s44, 1")
        a("s_cmp_eq_u32 s44, 0")
        a("s_cbranch_scc1 L_end")
        a("s_cmp_lt_u32 s45, 32")
        a("s_cbranch_scc1 L_apoll")
        a("s_memrealtime s[42:43]")
        a("s_waitcnt lgkmcnt(0)")
        a("s_sub_u32 s44, s42, s40")
        a("s_min_u32 s44, s44, 20000")
        if amp > 0:
            a(f"s_mul_i32 s44, s44, {amp}")
        else:
            a("s_getreg_b32 s44, hwreg(HW_REG_XCC_ID, 0, 4)")
            a("s_mul_i32 s44, s44, 10000")
        a("s_add_u32 s40, s42, s44")
        a.label("L_spin")
        a("s_memrealtime s[42:43]")
        a("s_waitcnt lgkmcnt(0)")
        a("s_sub_u32 s42, s42, s40")
        a("s_cmp_lt_i32 s42, 0")
        a("s_cbranch_scc1 L_spin")
    a.label("L_end")
    a("s_endpgm")
    if tl:
        i = next(k for k, ln in enumerate(a.lines) if "s_memrealtime s[48:49]" in ln)
        a.lines.insert(i, "    s_mov_b32 s71, 0")

    lds = NW * 512 + NW * 8
    out = HEADER
    if o["noclr"]:
        out += "; hostclear\n"
    out += f"; @launch grid=({NWG},1,1) block=({NW*64+64},1,1) lds={lds}\n"
    out += DOC
    out += '.amdgcn_target "amdgcn-amd-amdhsa--gfx950"\n.text\n'
    out += f".globl {NAME}\n.p2align 8\n.type {NAME},@function\n{NAME}:\n"
    out += "\n".join(a.lines) + "\n"
    acc = (nv + 3) // 4 * 4
    out += f""".section .rodata,"a"
.p2align 6
.amdhsa_kernel {NAME}
  .amdhsa_next_free_vgpr {nv}
  .amdhsa_next_free_sgpr {96 if kpat else (72 if tl else 48)}
  .amdhsa_accum_offset {acc}
  .amdhsa_group_segment_fixed_size 0
  .amdhsa_kernarg_size 48
  .amdhsa_user_sgpr_count 2
  .amdhsa_user_sgpr_kernarg_segment_ptr 1
  .amdhsa_system_sgpr_workgroup_id_x 1
  .amdhsa_float_denorm_mode_32 3
.end_amdhsa_kernel
"""
    return out


if __name__ == "__main__":
    p = argparse.ArgumentParser()
    p.add_argument("-o", required=True)
    for k, d in DEFAULTS.items():
        p.add_argument("--" + k, type=type(d), default=d)
    args = vars(p.parse_args())
    fn = args.pop("o")
    open(fn, "w").write(gen(**args))
```

```python
import argparse
import math
from gen1 import HEADER, NAME, Asm, f2u

G1 = "j0^w0^t3 w1 j2^t0 j2 t1 j0 t2 j4 t3 j3 x1 x2 x0 j1"
H1F = "j2^w0^t3 w1 j2^t0 j2 t1^t3 j3 t2 j4^j2 t3 j1 x0 x1 x2 j0"
H1 = "j4^w0^t3 w1 j4^t0 j4 t1^t3 j3 t2 j2^j4 t3 j0 x0 x2 x1 j1"
DEFAULTS = dict(R=2, R2=0, pol="nt", pat=H1, kvmode=0, tl=0, amp=0, pf=1, barA=27, prio=3, noclr=0, noflg=3, pre=8, pipe=1, ua=10, ub=11, spread=2, mode=0, mode2=0,
                chkmode=0, spec=1, forceslow=0, qpos=0, fine=1, kpat=0, cap=0x1000000, psel=0, iodfix=1, xrot=0, pst=0, fastpro=0, halves=1, sched='', wprio='', kx=0, vx=0, twarm=0, nvmin=0, ldsmin=0, tpad=0, kpad=0, nsg=0)

DOC = """;
; stores, then writes 0x100 | die id to d_debug[head]. A split that reads its own die id there shares the
"""

NW, S, T = 4, 8, 16
NWG = 256
NAMES = ["x0", "x1", "x2", "j0", "j1", "j2", "j3", "j4", "w0", "w1", "t0", "t1", "t2", "t3"]


def rank(ms):
    ms = list(ms)
    r = 0
    for bit in range(14):
        pv = next((m for m in ms if m >> bit & 1), None)
        if pv is None:
            continue
        ms.remove(pv)
        ms = [m ^ pv if m >> bit & 1 else m for m in ms]
        r += 1
    return r


def columns(pat, ua=10, ub=11):
    rows = []
    for tm in pat.replace(",", " ").split()[:14]:
        m = 0
        for n in tm.split("^"):
            m ^= 1 << NAMES.index(n)
        rows.append(m)
    assert rank(rows) == 14 and not any(m >> 8 for m in rows[9:])
    sp = []
    for bit in range(8):
        if rank(rows[9:] + sp + [1 << bit]) == 5 + len(sp) + 1:
            sp.append(1 << bit)
    rows += sp
    bits = [b - 10 for b in range(10, 26) if b not in (ua, ub)] + [16, 17, 18]
    return [sum(((rows[pos] >> i) & 1) << bits[pos] for pos in range(17)) for i in range(14)]


def gen(**kw):
    o = dict(DEFAULTS)
    o.update(kw)
    tl, amp, kvmode, kpat = o["tl"], o["amp"], o["kvmode"], o["kpat"]
    pol = (" " + o["pol"]) if o["pol"] else ""
    ua, ub = o["ua"], o["ub"]
    assert ua < ub < 21 and kvmode == 0
    col = columns(o["pat"], ua, ub)
    SLOW = 0x40000
    Rmax = max(o["R"], o["R2"])
    a = Asm()
    vK, vV, vT0, vT1, vC, vM, vL = 1, 2, 3, 4, 5, 6, 7
    vD, vO, vMask, vA = 8, 12, 16, 20
    vS = 36
    vQ = 52
    vQM, vQL = 68, 69
    vQA, vQB, vQC, vQS = 70, 71, 72, 73
    vLA, vTS, vX, vQD, vG = 74, 75, 76, 77, 78
    vRing = 80
    sched = dict((int(x.split(":")[0]), int(x.split(":")[1])) for x in o["sched"].split(",") if x)
    NSLOT = max([Rmax + (1 if 1 in (o['mode'], o['mode2']) else 0)] + list(sched.values()))
    nv = vRing + 16 * NSLOT

    def window(n, R):
        w = R
        for k in sorted(sched):
            if n >= k:
                w = sched[k]
        return w
    assert nv <= 256
    sW, sHead, sSplit, sBase, sOut = 16, 17, 18, 19, 20
    sMc = 22
    sHB, sSlot, sDbg = 24, 25, 26
    sRole = 28
    sMine, sDone, sCap, sChk = 30, 31, 32, 33
    sOwn = 34

    def tstamp(i):
        if tl:
            a(f"s_memrealtime s[{48+2*i}:{49+2*i}]")

    def tmask(i):
        m = 0
        for b in range(4):
            if i >> b & 1:
                m ^= col[10 + b]
        return m << 10

    kstep, vstep = (1024, 256) if kvmode == 0 else (256, 1024)

    if o["fastpro"]:
        assert not kpat and (ua, ub) == (10, 11)
        a("s_load_dwordx8 s[4:11], s[0:1], 0")
        a("s_load_dwordx4 s[12:15], s[0:1], 32")
        if amp:
            a("s_memrealtime s[40:41]")
        if tl:
            for i in range(1, 10):
                a(f"s_mov_b32 s{48+2*i}, 0")
            a(f"s_mov_b32 s{sCap}, 0")
        tstamp(0)
        a(f"v_lshrrev_b32 v{vT0}, 6, v0")
        a(f"s_cmpk_ge_u32 s2, {NWG}")
        a(f"v_readfirstlane_b32 s{sW}, v{vT0}")
        a("s_cbranch_scc1 L_end")
        a.c("workgroup id bits -> head (address bits 21..25) and split; the ids of one head are 8 apart")
        a(f"s_bfe_u32 s3, s2, 0x10004")
        a(f"s_and_b32 s{sHead}, s2, 15")
        a(f"s_lshl1_add_u32 s{sHead}, s{sHead}, s3")
        a(f"s_lshr_b32 s{sSplit}, s2, 5")
        a(f"v_and_b32 v0, 63, v0")
        a(f"s_cmp_eq_u32 s{sW}, {NW}")
        a("s_cbranch_scc1 L_finisher")
        a.c("first tile of this wave: split, wave and die bits are xor-ed into address bits 12..20 so that")
        a.c("the tiles in flight spread evenly over memory stacks and banks (speed only)")
        a("s_getreg_b32 s3, hwreg(HW_REG_XCC_ID, 2, 1)")
        a("s_bfe_u32 s21, s2, 0x10001")
        a("s_xor_b32 s3, s3, s21")
        a(f"s_mul_i32 s3, s3, {col[13]}")
        a(f"s_lshl2_add_u32 s{sBase}, s{sW}, 0" if False else f"s_lshl_b32 s{sBase}, s{sW}, 2")
        a(f"s_xor_b32 s{sBase}, s{sBase}, s3")
        for b in (5, 6, 7):
            a(f"s_bitcmp1_b32 s2, {b}")
            a(f"s_cselect_b32 s3, {col[b] & 0xffff}, 0")
            a(f"s_xor_b32 s{sBase}, s{sBase}, s3")
        a(f"s_lshl_b32 s3, s{sHead}, 11")
        a(f"s_or_b32 s{sBase}, s{sBase}, s3")
        a(f"s_lshl_b32 s{sBase}, s{sBase}, 10")
        rows = o["pat"].split()
        assert rows[9:14] == ["j1", "x0", "x1", "x2", "j0"] and col[8] == 4 and col[9] == 8
        assert all((col[b] & 0x7ff) == 0 for b in range(5))
    else:
        a("s_load_dwordx8 s[4:11], s[0:1], 0")
        a("s_load_dwordx4 s[12:15], s[0:1], 32")
        a(f"s_cmpk_ge_u32 s2, {NWG}")
        a("s_cbranch_scc1 L_end")
        if kpat:
            a("s_load_dwordx16 s[76:91], s[0:1], 48")
        if amp:
            a("s_memrealtime s[40:41]")
        if tl:
            for i in range(1, 10):
                a(f"s_mov_b32 s{48+2*i}, 0")
            a(f"s_mov_b32 s{sCap}, 0")
        tstamp(0)
        a(f"v_lshrrev_b32 v{vT0}, 6, v0")
        if o["pf"]:
            a.c("pull the kernel's own code into L2 while the kernel arguments are on their way")
            a("s_getpc_b64 s[22:23]")
            a(f"v_lshlrev_b32 v{vT1}, 7, v0")
            a(f"v_min_u32 v{vT1}, L_end-.-64, v{vT1}")
            a.vmem(f"global_load_dword v{vC}, v{vT1}, s[22:23]", "pf")
        else:
            a("s_nop 0")
        a(f"v_readfirstlane_b32 s{sW}, v{vT0}")
        a(f"v_and_b32 v0, 63, v0")
        a.c("(workgroup, wave) -> first tile, head and split: an xor-linear map of the id bits")
        a(f"s_lshl_b32 s21, s{sW}, 8")
        if o["xrot"]:
            a(f"s_add_u32 s3, s2, {o['xrot']}")
            a("s_and_b32 s3, s3, 7")
            a("s_and_b32 s23, s2, 0xf8")
            a("s_or_b32 s23, s23, s3")
            a(f"s_or_b32 s21, s21, s23")
        else:
            a(f"s_or_b32 s21, s21, s2")
        if kpat:
            a("s_waitcnt lgkmcnt(0)")
        for b in range(10):
            src = f"s{76+b}" if kpat else str(col[b])
            a(f"s_bitcmp1_b32 s21, {b}")
            if b == 0:
                a(f"s_cselect_b32 s{sBase}, {src}, 0")
            else:
                a(f"s_cselect_b32 s3, {src}, 0")
                a(f"s_xor_b32 s{sBase}, s{sBase}, s3")
        if o["iodfix"]:
            a.c("order of this wave's own tiles follows the die it really runs on (speed only)")
            a("s_getreg_b32 s3, hwreg(HW_REG_XCC_ID, 0, 4)")
            a("s_xor_b32 s3, s3, s21")
            a("s_bitcmp1_b32 s3, 2")
            a(f"s_cselect_b32 s3, {col[13]}, 0")
            a(f"s_xor_b32 s{sBase}, s{sBase}, s3")
        if kpat:
            for b in range(4):
                a(f"s_and_b32 s{86+b}, s{86+b}, {0x1ffc00 & ~((1 << ua) | (1 << ub))}")
        a(f"s_bfe_u32 s{sSplit}, s{sBase}, 0x30010")
        a(f"s_bfe_u32 s{sHead}, s{sBase}, 0x5000b")
        a(f"s_and_b32 s{sBase}, s{sBase}, {0xffff & ~((1 << (ua - 10)) | (1 << (ub - 10)))}")
        a(f"s_lshl_b32 s{sBase}, s{sBase}, 10")
        a(f"s_cmp_eq_u32 s{sW}, {NW}")
        a("s_cbranch_scc1 L_finisher")
    a.c("lane patterns: lane = (g, a, b) for K and q, (g, c) for V")
    a(f"v_and_b32 v{vT1}, 3, v0")
    a(f"v_lshlrev_b32 v{vT1}, 4, v{vT1}")
    a(f"v_and_b32 v{vM}, 48, v0")
    a(f"v_lshl_add_u32 v{vT1}, v{vM}, 2, v{vT1}")
    a(f"v_and_b32 v{vL}, 12, v0")
    a(f"v_lshlrev_b32 v{vL}, {6 if kvmode == 0 else 8}, v{vL}")
    a(f"v_add3_u32 v{vK}, v{vL}, v{vT1}, s{sBase}")
    if o["kx"]:
        a(f"v_xor_b32 v{vK}, {o['kx']}, v{vK}")
    a(f"s_lshl_b32 s{sOut}, s{sHead}, 8")
    a(f"v_add_u32 v{vT1}, s{sOut}, v{vT1}")
    if o["R2"]:
        if o["psel"] == 0:
            a("s_bitcmp1_b32 s2, 0")
        else:
            a("s_getreg_b32 s3, hwreg(HW_REG_XCC_ID, 0, 4)")
            a("s_bitcmp1_b32 s3, 0")
    if o["pst"]:
        tstamp(2)
    a("s_waitcnt lgkmcnt(0)")
    tstamp(1)
    if o["R2"]:
        a("s_cbranch_scc1 L_body1")
    vm0 = list(a.vm)

    def poll_issue():
        a(f"global_load_dwordx2 v[{vQM}:{vQL}], v{vQC}, s[14:15] sc1")
        for w in range(1, S):
            a(f"global_load_dwordx2 v[{vQ+2*w}:{vQ+2*w+1}], v{vQA}, s[14:15] offset:{w * 512} sc1")

    def body(R, sfx, mode):
        a.vm = list(vm0)

        def slot(n):
            return vRing + 16 * (n % (NSLOT if sched else R + (1 if mode == 1 else 0)))

        nxt = [0]

        def refill(n):
            st = 0
            while nxt[0] < min(2 * T, n + 1 + window(n, R)):
                st += issue_tile(nxt[0])
                nxt[0] += 1
            return st

        his = sorted({(((t & 1) << ua) + ((t >> 1) << ub)) & ~0xfff for t in range(4)} - {0})
        kb = {hi: 24 + 2 * i for i, hi in enumerate(his)}
        made = set()

        def issue_tile(n):
            isK = n < T
            i = n if isK else n - T
            va, base, step = (vK, "s[6:7]", kstep) if isK else (vV, "s[8:9]", vstep)
            if i > 0:
                if kpat:
                    a(f"v_xor_b32 v{va}, s{86 + (i ^ (i - 1)).bit_length() - 1}, v{va}")
                else:
                    a(f"v_xor_b32 v{va}, {tmask(i) ^ tmask(i - 1)}, v{va}")
            r = slot(n)
            for t in range(4):
                if isK:
                    d = ((t & 1) << ua) + ((t >> 1) << ub)
                    hi = d & ~0xfff
                    bs = "s[6:7]" if not hi else f"s[{kb[hi]}:{kb[hi]+1}]"
                    if hi and n == 0 and hi not in made:
                        a(f"s_add_u32 s{kb[hi]}, s6, {hi}")
                        a(f"s_addc_u32 s{kb[hi]+1}, s7, 0")
                        made.add(hi)
                    off = f" offset:{d & 0xfff}" if d & 0xfff else ""
                else:
                    bs = base
                    off = f" offset:{t*256}" if t else ""
                a.vmem(f"global_load_dwordx4 v[{r+4*t}:{r+4*t+3}], v{va}, {bs}{off}{pol}", ("t", n, t))
            return 4 + (1 if i > 0 else 0)

        def cond_issue(n, site):
            lab = f"L_skip{site}{n}{sfx}"
            a(f"s_bitcmp{'0' if site == 'A' else '1'}_b32 s37, 0")
            a(f"s_cbranch_scc1 {lab}")
            keep = list(a.vm)
            issue_tile(n)
            if site == "A":
                a.vm = keep
            a.label(lab)
            return 2

        def side_work(n):
            if n == (o["barA"] or 2 * T - R - 1):
                a.c("barrier A: the (m, l) of all four waves are in LDS, the finishing wave may use them")
                a("s_waitcnt lgkmcnt(0)")
                a("s_barrier")
                return 2
            return 0

        if o["qpos"] == 0:
            a.vmem(f"global_load_dwordx4 v[{vD}:{vD+3}], v{vT1}, s[4:5]", "q")
        for n in range(window(-1, R)):
            issue_tile(n)
            nxt[0] = n + 1
            if n + 1 == o["qpos"]:
                a.vmem(f"global_load_dwordx4 v[{vD}:{vD+3}], v{vT1}, s[4:5]", "q")
        if not o["pst"]:
            tstamp(2)
        if mode == 3:
            a("s_getreg_b32 s37, hwreg(HW_REG_XCC_ID, 0, 1)")
            if o["psel"] == 2:
                a("s_xor_b32 s37, s37, 1")
        if o["wprio"]:
            for w, pr in enumerate(o["wprio"]):
                if pr != "0":
                    a(f"s_cmp_lg_u32 s{sW}, {w}")
                    a(f"s_cbranch_scc1 L_pr{w}{sfx}")
                    a(f"s_setprio {pr}")
                    a.label(f"L_pr{w}{sfx}")
        if kvmode == 0:
            a(f"v_and_b32 v{vL}, 15, v0")
            a(f"v_lshlrev_b32 v{vL}, 4, v{vL}")
            if (ua, ub) == (10, 11):
                a(f"v_lshl_add_u32 v{vV}, v{vM}, 6, v{vL}")
            else:
                a(f"v_and_b32 v{vV}, 16, v0")
                a(f"v_lshl_add_u32 v{vL}, v{vV}, {ua - 4}, v{vL}")
                a(f"v_and_b32 v{vV}, 32, v0")
                a(f"v_lshl_add_u32 v{vV}, v{vV}, {ub - 5}, v{vL}")
            a(f"v_add_u32 v{vV}, s{sBase}, v{vV}")
            if o["vx"]:
                a(f"v_xor_b32 v{vV}, {o['vx']}, v{vV}")
        else:
            a(f"v_lshl_add_u32 v{vV}, v0, 4, s{sBase}")
        a.c("LDS address of this wave's partial: w*512 + c*32 + (g&1)*16")
        a(f"v_and_b32 v{vT0}, 15, v0")
        a(f"v_lshlrev_b32 v{vT0}, 5, v{vT0}")
        a(f"v_and_b32 v{vLA}, 16, v0")
        a(f"s_lshl_b32 s3, s{sW}, 9")
        a(f"v_add3_u32 v{vLA}, v{vT0}, v{vLA}, s3")
        a.c("half-word masks that place p on the diagonal of the P operand")
        a(f"v_and_b32 v{vT0}, 1, v0")
        a(f"v_lshlrev_b32 v{vT0}, 4, v{vT0}")
        a(f"s_mov_b32 s3, 0xffff")
        a(f"v_lshlrev_b32 v{vT0}, v{vT0}, s3")
        a(f"s_mov_b32 vcc_lo, 0x03030303")
        a(f"s_mov_b32 vcc_hi, vcc_lo")
        for i in range(4):
            a(f"v_cndmask_b32 v{vMask+i}, 0, v{vT0}, vcc")
            if i < 3:
                a(f"s_lshl_b64 vcc, vcc, 2")
        a(f"s_mov_b32 vcc_lo, 0x000f000f")
        a(f"s_mov_b32 vcc_hi, vcc_lo")
        a.wait_tag("q")
        cval = math.log2(math.e) / math.sqrt(128.0)
        a(f"v_mov_b32 v{vC}, 0x{f2u(cval):08x}")
        a.c("q operand t is q in rows 4t..4t+3 and zero elsewhere")
        for t in range(4):
            for i in range(4):
                a(f"v_cndmask_b32 v{vA+4*t+i}, 0, v{vD+i}, vcc")
            if t < 3:
                a(f"s_lshl_b64 vcc, vcc, 4")

        def wait_tile(n, t=3):
            if any(x == ("t", n, t) for x in a.vm):
                a.wait_tag(("t", n, t))
                return 1
            return 0

        for n in range(T):
            a.c(f"K tile {n}")
            w = wait_tile(n)
            if n == 0:
                a("s_nop 0" if w else "s_nop 1")
                tstamp(3)
            r = slot(n)
            if mode == 1:
                issue_tile(n + R)
            for t in range(4):
                cin = "0" if t == 0 else f"v[{vD}:{vD+3}]"
                a(f"v_mfma_f32_16x16x32_bf16 v[{vD}:{vD+3}], v[{vA+4*t}:{vA+4*t+3}], v[{r+4*t}:{r+4*t+3}], {cin}")
            st = refill(n) if mode == 0 else 0
            if mode == 3:
                st = cond_issue(n + R, "A")
            st += side_work(n)
            if st < 8:
                a(f"s_nop {8 - st - 1}")
            s = vS + n
            a(f"v_mov_b32_dpp v{s}, v{vD} quad_perm:[0,0,0,0] row_mask:0xf bank_mask:0xf")
            a(f"v_mov_b32_dpp v{vT0}, v{vD+1} quad_perm:[1,1,1,1] row_mask:0xf bank_mask:0xf")
            a("s_nop 0")
            a(f"v_add_f32_dpp v{s}, v{vD+2}, v{s} quad_perm:[2,2,2,2] row_mask:0xf bank_mask:0xf")
            a(f"v_add_f32_dpp v{vT0}, v{vD+3}, v{vT0} quad_perm:[3,3,3,3] row_mask:0xf bank_mask:0xf")
            a(f"v_add_f32 v{s}, v{s}, v{vT0}")
            if mode == 2:
                issue_tile(n + R)
            if mode == 3:
                cond_issue(n + R, "B")
            if n == 1:
                a(f"v_max_f32 v{vM}, v{vS}, v{vS+1}")
            elif n > 1 and n % 2 == 1:
                a(f"v_max3_f32 v{vM}, v{vM}, v{s-1}, v{s}")
        a.c("true maximum of this wave's scores")
        tstamp(4)
        red = ("row_ror:4 row_mask:0xf", "row_ror:8 row_mask:0xf", "row_bcast:15 row_mask:0xa", "row_bcast:31 row_mask:0xc")
        for ctl in red:
            a("s_nop 1")
            a(f"v_max_f32_dpp v{vM}, v{vM}, v{vM} {ctl} bank_mask:0xf")
        a(f"v_mul_f32 v{vM}, v{vC}, v{vM}")
        a("s_nop 0")
        a(f"v_readlane_b32 s{sMc}, v{vM}, 63")
        a("s_nop 1")
        def probs(lo, hi):
            for n in range(lo, hi):
                a(f"v_fma_f32 v{vS+n}, v{vS+n}, v{vC}, -s{sMc}")
            for n in range(lo, hi):
                a(f"v_exp_f32 v{vS+n}, v{vS+n}")
            if lo == 0:
                a(f"v_mov_b32 v{vM}, s{sMc}")
                a(f"v_mov_b32 v{vL}, v{vS}")
            else:
                a("s_nop 0")
            for n in range(max(lo, 1), hi):
                if o["halves"] and n == T // 2:
                    a(f"v_mov_b32 v{vT1}, v{vS+n}")
                elif o["halves"] and n > T // 2:
                    a(f"v_add_f32 v{vT1}, v{vT1}, v{vS+n}")
                else:
                    a(f"v_add_f32 v{vL}, v{vL}, v{vS+n}")
            if o["halves"] and hi == T:
                a(f"v_add_f32 v{vL}, v{vL}, v{vT1}")
            for n in range(lo, hi):
                a(f"v_cvt_pk_bf16_f32 v{vS+n}, v{vS+n}, v{vS+n}")

        def publish_ml():
            for ctl in red:
                a(f"v_add_f32_dpp v{vL}, v{vL}, v{vL} {ctl} bank_mask:0xf")
                a("s_nop 1")
            a(f"s_lshl_b32 s3, s{sW}, 3")
            a(f"v_mov_b32 v{vT0}, s3")
            a(f"s_brev_b64 exec, 1")
            a(f"ds_write_b64 v{vT0}, v[{vM}:{vL}] offset:{NW*512}")
            a(f"s_mov_b64 exec, -1")
        sp = o["spread"]
        if not sp:
            probs(0, T)
            publish_ml()
        else:
            probs(0, 1)
            a("s_nop 1")
        for i in range(T):
            n = T + i
            a.c(f"V tile {i}")
            for u in range(4):
                for j in range(4):
                    a(f"v_and_b32_dpp v{vA+4*u+j}, v{vS+i}, v{vMask+j} row_newbcast:{4*u} row_mask:0xf bank_mask:0xf")
            if mode == 2 and i > 0 and n - 1 + R < 2 * T:
                issue_tile(n - 1 + R)
            if mode == 3 and i > 0 and n - 1 + R < 2 * T:
                cond_issue(n - 1 + R, "B")
            fine = o["fine"] and i == T - 1
            if not fine:
                wait_tile(n)
                a("s_nop 0")
            if mode == 1 and n + R < 2 * T:
                issue_tile(n + R)
            r = slot(n)
            for u in range(4):
                if fine:
                    wait_tile(n, u)
                    if u == 0:
                        a("s_nop 0")
                acc = vD if (o["halves"] and i < T // 2) else vO
                first = u == 0 and (i == 0 or (o["halves"] and i == T // 2))
                cin = "0" if first else f"v[{acc}:{acc+3}]"
                a(f"v_mfma_f32_16x16x32_bf16 v[{acc}:{acc+3}], v[{vA+4*u}:{vA+4*u+3}], v[{r+4*u}:{r+4*u+3}], {cin}")
            if mode == 0:
                refill(n)
            if mode == 3 and n + R < 2 * T:
                cond_issue(n + R, "A")
            if sp:
                lo, hi = 1 + i * sp, min(T, 1 + (i + 1) * sp)
                if lo < T:
                    probs(lo, hi)
                    a("s_nop 1")
                    if hi == T:
                        publish_ml()
            side_work(n)

    body(o["R"], "a", o["mode"])
    if o["R2"]:
        a("s_branch L_join")
        a.label("L_body1")
        body(o["R2"], "b", o["mode2"])
        a.label("L_join")
    a.vm = []
    a("s_nop 7")
    if o["halves"]:
        a.c("the two halves of the keys are summed apart, so their order does not change the result")
        a(f"v_pk_add_f32 v[{vO}:{vO+1}], v[{vO}:{vO+1}], v[{vD}:{vD+1}]")
        a(f"v_pk_add_f32 v[{vO+2}:{vO+3}], v[{vO+2}:{vO+3}], v[{vD+2}:{vD+3}]")
    tstamp(5)
    a(f"ds_write_b128 v{vLA}, v[{vO}:{vO+3}]")
    a("s_waitcnt lgkmcnt(0)")
    a.c("barrier B: the partial outputs of all four waves are in LDS")
    a("s_barrier")
    tstamp(6)
    a("s_branch L_fin" if (tl or amp) else "s_endpgm")

    a.label("L_finisher")
    if o["prio"]:
        a(f"s_setprio {o['prio']}")
    if o["fastpro"] and o["pf"]:
        a.c("pull the kernel's own code into L2 while the kernel arguments are on their way")
        a("s_getpc_b64 s[22:23]")
        a.label("L_pc")
        a(f"s_sub_u32 s22, s22, L_pc-{NAME}")
        a("s_subb_u32 s23, s23, 0")
        a(f"v_lshlrev_b32 v{vT1}, 7, v0")
        a(f"v_min_u32 v{vT0}, L_end-{NAME}, v{vT1}")
        a(f"global_load_dword v{vC}, v{vT0}, s[22:23]")
        a(f"v_add_u32 v{vT1}, 8192, v{vT1}")
        a(f"v_min_u32 v{vT1}, L_end-{NAME}, v{vT1}")
        a(f"global_load_dword v{vG}, v{vT1}, s[22:23]")
    a.c("hand-off addresses and constants")
    a(f"s_lshl_b32 s{sHB}, s{sHead}, 13")
    a(f"s_lshl_b32 s{sSlot}, s{sSplit}, 9")
    a(f"s_add_u32 s{sSlot}, s{sSlot}, s{sHB}")
    a(f"s_lshl_b32 s{sDbg}, s{sHead}, 2")
    a(f"s_mov_b32 s{sRole}, s{sSplit}")
    a(f"s_getreg_b32 s{sMine}, hwreg(HW_REG_XCC_ID, 0, 4)")
    a(f"s_or_b32 s{sMine}, s{sMine}, 0x100")
    a(f"s_mov_b32 s{sChk}, 0")
    a(f"s_mov_b32 s{sOwn}, 0x01010101")
    a(f"s_mov_b32 s{sOwn+1}, s{sOwn}")
    a(f"v_lshl_add_u32 v{vQS}, v0, 3, s{sSlot}")
    a(f"v_min_u32 v{vX}, 32, v0")
    a(f"v_lshl_add_u32 v{vX}, v{vX}, 7, s{sHB}")
    a(f"v_lshl_add_u32 v{vQA}, v0, 3, s{sHB}")
    a(f"v_lshl_add_u32 v{vQB}, v0, 4, s{sHB}")
    a(f"s_add_u32 s3, s{sHB}, 4096")
    a(f"v_and_b32 v{vQC}, 7, v0")
    a(f"v_lshl_add_u32 v{vQC}, v{vQC}, 3, s3")
    a(f"s_lshl_b32 s21, s{sSplit}, 3")
    a(f"s_add_u32 s21, s21, s3")
    a(f"v_mov_b32 v{vQD}, s21")
    for k in range(4):
        a(f"v_mov_b32 v{vQ+k}, -1")
    a(f"s_lshl_b32 s{sOut}, s{sHead}, 8")
    a(f"v_and_b32 v{vLA}, {NW-1}, v0")
    a(f"v_lshlrev_b32 v{vLA}, 3, v{vLA}")
    a(f"v_lshlrev_b32 v{vK}, 3, v0")
    a(f"v_lshl_add_u32 v{vV}, v0, 2, s{sOut}")
    a(f"s_cmp_lg_u32 s{sRole}, 0")
    a("s_waitcnt lgkmcnt(0)")
    tstamp(1)
    if o["twarm"] & 1:
        a.c("touch the V page early so that its address translation is ready (value unused)")
        a(f"v_mov_b32 v{vG}, s{sBase}")
        a("s_mov_b64 exec, 1")
        a(f"global_load_dword v{vG}, v{vG}, s[8:9] nt")
        a("s_mov_b64 exec, -1")
    if o["twarm"] & 2:
        a("s_mov_b64 exec, 1")
        a(f"global_load_dword v{vTS}, v{vQS}, s[14:15] sc1")
        a("s_mov_b64 exec, -1")
    a("s_cbranch_scc1 L_barA")
    a.c("collector: bring the hand-off lines into its L2, mark every word as empty, then announce the die")
    a(f"global_load_dword v{vX}, v{vX}, s[14:15] sc1")
    a("s_waitcnt vmcnt(0)")
    if not o["noclr"]:
        for k in range(4):
            a(f"global_store_dwordx4 v{vQB}, v[{vQ}:{vQ+3}], s[14:15] offset:{k*1024}")
        a(f"global_store_dwordx2 v{vQC}, v[{vQ}:{vQ+1}], s[14:15]")
    a(f"v_mov_b32 v{vT0}, s{sDbg}")
    a(f"v_mov_b32 v{vT1}, s{sMine}")
    a("s_mov_b64 exec, 1")
    a("s_waitcnt vmcnt(0)")
    if o["noflg"] == 0:
        a(f"global_store_dword v{vT0}, v{vT1}, s[12:13] sc1")
    elif o["noflg"] == 2:
        a(f"s_mov_b32 s3, s{sMine}")
        a(f"s_atomic_or s3, s[12:13], s{sDbg}")
    elif o["noflg"] == 3:
        a(f"global_store_dword v{vT0}, v{vT1}, s[12:13]")
    a("s_mov_b64 exec, -1")
    a.label("L_barA")
    a("s_barrier")
    a(f"s_load_dword s{sChk}, s[12:13], s{sDbg}")
    a(f"ds_read_b64 v[{vM}:{vL}], v{vLA} offset:{NW*512}")
    a("s_waitcnt vmcnt(0) lgkmcnt(0)")
    a.c("workgroup maximum, per-wave factors and workgroup sum")
    a(f"v_max_f32_dpp v{vT0}, v{vM}, v{vM} row_ror:1 row_mask:0xf bank_mask:0xf")
    a("s_nop 1")
    a(f"v_max_f32_dpp v{vT0}, v{vT0}, v{vT0} row_ror:2 row_mask:0xf bank_mask:0xf")
    a(f"v_sub_f32 v{vC}, v{vM}, v{vT0}")
    a(f"v_exp_f32 v{vC}, v{vC}")
    a(f"v_min_u32 v{vM}, -2, v{vT0}")
    a(f"v_mul_f32 v{vL}, v{vL}, v{vC}")
    a("s_nop 1")
    a(f"v_add_f32_dpp v{vL}, v{vL}, v{vL} row_ror:1 row_mask:0xf bank_mask:0xf")
    a("s_nop 1")
    a(f"v_add_f32_dpp v{vL}, v{vL}, v{vL} row_ror:2 row_mask:0xf bank_mask:0xf")
    if o["noflg"] == 1:
        a(f"s_mov_b32 s{sChk}, s{sMine}")
    if o["forceslow"] == 1:
        a(f"s_mov_b32 s{sChk}, 0")
    elif o["forceslow"] == 2:
        a(f"s_bitcmp1_b32 s{sSplit}, 0")
        a(f"s_cselect_b32 s{sChk}, 0, s{sChk}")
    a(f"s_mov_b32 s{sCap}, {o['cap']}")
    a(f"s_mov_b32 s{sDone}, 0")
    a(f"v_min_u32 v{vL}, -2, v{vL}")
    a.c("role: 0 collect, 1 hand over through the shared L2, 2 hand over through memory")
    a(f"s_cmp_eq_u32 s{sChk}, s{sMine}")
    a(f"s_cselect_b32 s{sChk}, 1, 2")
    a(f"s_cmp_eq_u32 s{sRole}, 0")
    a(f"s_cselect_b32 s{sRole}, 0, s{sChk}")
    a(f"s_cmp_lg_u32 s{sRole}, 1")
    a("s_cbranch_scc1 L_notfast")
    a("s_mov_b64 exec, 1")
    a(f"global_store_dwordx2 v{vQD}, v[{vM}:{vL}], s[14:15]")
    a("s_mov_b64 exec, -1")
    a("s_branch L_barB")
    a.label("L_notfast")
    if o["pre"]:
        a(f"s_cmp_lg_u32 s{sRole}, 0")
        a("s_cbranch_scc1 L_barB")
        a.c("collector: try to get all (m, l) now, so that only the sums are left for the end")
        a(f"s_mov_b32 s3, {o['pre']}")
        a.label("L_mlpoll")
        a(f"global_load_dwordx2 v[{vQM}:{vQL}], v{vQC}, s[14:15] sc1")
        a("s_waitcnt vmcnt(0)")
        a(f"v_cndmask_b32 v{vQM}, v{vQM}, v{vM}, s[{sOwn}:{sOwn+1}]")
        a(f"v_cndmask_b32 v{vQL}, v{vQL}, v{vL}, s[{sOwn}:{sOwn+1}]")
        a(f"v_max_u32 v{vT0}, v{vQM}, v{vQL}")
        a(f"v_cmp_eq_u32 vcc, -1, v{vT0}")
        a("s_cbranch_vccz L_mlready")
        a("s_sub_u32 s3, s3, 1")
        a("s_cmp_lg_u32 s3, 0")
        a("s_cbranch_scc1 L_mlpoll")
        a("s_branch L_barB")
        a.label("L_mlready")
        a(f"v_max_f32_dpp v{vT0}, v{vQM}, v{vQM} row_ror:1 row_mask:0xf bank_mask:0xf")
        for k in (2, 4):
            a("s_nop 1")
            a(f"v_max_f32_dpp v{vT0}, v{vT0}, v{vT0} row_ror:{k} row_mask:0xf bank_mask:0xf")
        a(f"v_sub_f32 v{vG}, v{vQM}, v{vT0}")
        a(f"v_exp_f32 v{vG}, v{vG}")
        a("s_nop 0")
        a(f"v_mul_f32 v{vT0}, v{vQL}, v{vG}")
        for k in (1, 2, 4):
            a("s_nop 1")
            a(f"v_add_f32_dpp v{vT0}, v{vT0}, v{vT0} row_ror:{k} row_mask:0xf bank_mask:0xf")
        a(f"v_rcp_f32 v{vT0}, v{vT0}")
        a(f"s_mov_b32 s{sRole}, -1")
        a(f"v_mul_f32 v{vG}, v{vG}, v{vT0}")
        a("s_barrier")
        tstamp(6)
        for w in range(NW):
            a(f"ds_read_b64 v[{vRing+2*w}:{vRing+2*w+1}], v{vK} offset:{w*512}")

        def oissue(base):
            for w in range(1, S):
                a(f"global_load_dwordx2 v[{base+2*w}:{base+2*w+1}], v{vQA}, s[14:15] offset:{w * 512} sc1")

        def ocheck(base, extra, lab):
            for h in range(2):
                a(f"v_mul_f32_dpp v{vO+2+h}, v{vG}, v{vO+h} row_newbcast:0 row_mask:0xf bank_mask:0xf")
            for w in range(1, S):
                a(f"s_waitcnt vmcnt({S-1-w+extra})")
                if w == 1:
                    a(f"v_max_u32 v{vT0}, v{base+2}, v{base+3}")
                else:
                    a(f"v_max3_u32 v{vT0}, v{vT0}, v{base+2*w}, v{base+2*w+1}")
                if w == S - 1:
                    a(f"v_cmp_eq_u32 vcc, -1, v{vT0}")
                for h in range(2):
                    a(f"v_fmac_f32_dpp v{vO+2+h}, v{vG}, v{base+2*w+h} row_newbcast:{w} row_mask:0xf bank_mask:0xf")
            a(f"v_cvt_pk_bf16_f32 v{vT1}, v{vO+2}, v{vO+3}")
            a(f"s_cbranch_vccz {lab}")

        def ofinal(base):
            tstamp(8)
            a(f"global_store_dword v{vV}, v{vT1}, s[10:11]")
            a("s_branch L_stored" if (tl or amp) else "s_endpgm")
        oissue(vQ)
        for w in range(NW):
            a(f"s_waitcnt lgkmcnt({0 if tl else NW - 1 - w})")
            op = "v_mul_f32_dpp" if w == 0 else "v_fmac_f32_dpp"
            for h in range(2):
                a(f"{op} v{vO+h}, v{vC}, v{vRing+2*w+h} row_newbcast:{w} row_mask:0xf bank_mask:0xf")
        tstamp(7)
        if not o["pipe"]:
            a.label("L_opoll")
            ocheck(vQ, 0, "L_oready")
            oissue(vQ)
            a(f"s_sub_u32 s{sCap}, s{sCap}, 1")
            a(f"s_cmp_lg_u32 s{sCap}, 0")
            a("s_cbranch_scc1 L_opoll")
            a("s_branch L_fin")
            a.label("L_oready")
            ofinal(vQ)
        else:
            vQ2 = vRing + 16
            a.label("L_opoll")
            oissue(vQ2)
            ocheck(vQ, 7, "L_oready")
            oissue(vQ)
            ocheck(vQ2, 7, "L_oready2")
            a(f"s_sub_u32 s{sCap}, s{sCap}, 1")
            a(f"s_cmp_lg_u32 s{sCap}, 0")
            a("s_cbranch_scc1 L_opoll")
            a("s_branch L_fin")
            a.label("L_oready")
            a.label("L_oready2")
            ofinal(vQ)
    a.label("L_barB")
    a(f"s_cmp_eq_u32 s{sRole}, 0")
    a("s_barrier")
    tstamp(6)
    for w in range(NW):
        a(f"ds_read_b64 v[{vRing+2*w}:{vRing+2*w+1}], v{vK} offset:{w*512}")
    if o["spec"]:
        a("s_cbranch_scc0 L_nospec")
        poll_issue()
        a.label("L_nospec")
    for w in range(NW):
        a(f"s_waitcnt lgkmcnt({0 if tl else NW - 1 - w})")
        op = "v_mul_f32_dpp" if w == 0 else "v_fmac_f32_dpp"
        for h in range(2):
            a(f"{op} v{vO+h}, v{vC}, v{vRing+2*w+h} row_newbcast:{w} row_mask:0xf bank_mask:0xf")
    a(f"s_cmp_lg_u32 s{sRole}, 1")
    a(f"v_min_u32 v{vQ}, -2, v{vO}")
    a(f"v_min_u32 v{vQ+1}, -2, v{vO+1}")
    a("s_cbranch_scc1 L_other")
    a.c("the collector runs on this die and has marked the slot: a plain store meets it in the shared L2")
    a(f"global_store_dwordx2 v{vQS}, v[{vQ}:{vQ+1}], s[14:15]")
    tstamp(7)
    if tl:
        a(f"s_mov_b32 s{sCap}, 0")
    a("s_branch L_fin" if (tl or amp) else "s_endpgm")
    a.label("L_other")
    a(f"s_cmp_lg_u32 s{sRole}, 0")
    a("s_cbranch_scc1 L_slowput")
    tstamp(7)
    if o["spec"]:
        a("s_branch L_check")

    def combine(n, vP, m, l, waitfn):
        lg = int(math.log2(n))
        waitfn("ml")
        a(f"v_max_f32_dpp v{vT0}, v{m}, v{m} row_ror:1 row_mask:0xf bank_mask:0xf")
        for k in range(1, lg):
            a("s_nop 1")
            a(f"v_max_f32_dpp v{vT0}, v{vT0}, v{vT0} row_ror:{1<<k} row_mask:0xf bank_mask:0xf")
        a(f"v_sub_f32 v{vT1}, v{m}, v{vT0}")
        a(f"v_exp_f32 v{vT1}, v{vT1}")
        a(f"v_mov_b32 v{vM}, v{vT0}")
        a(f"v_mul_f32 v{vL}, v{l}, v{vT1}")
        waitfn("o")
        for w in range(n):
            op = "v_mul_f32_dpp" if w == 0 else "v_fmac_f32_dpp"
            for h in range(2):
                a(f"{op} v{vO+h}, v{vT1}, v{vP+2*w+h} row_newbcast:{w} row_mask:0xf bank_mask:0xf")
            if w < lg:
                a(f"v_add_f32_dpp v{vL}, v{vL}, v{vL} row_ror:{1<<w} row_mask:0xf bank_mask:0xf")

    a.label("L_poll")
    poll_issue()
    a.label("L_check")
    a("s_waitcnt vmcnt(7)")
    a(f"v_cndmask_b32 v{vQM}, v{vQM}, v{vM}, s[{sOwn}:{sOwn+1}]")
    a(f"v_cndmask_b32 v{vQL}, v{vQL}, v{vL}, s[{sOwn}:{sOwn+1}]")
    a(f"v_max_u32 v{vT0}, v{vQM}, v{vQL}")
    for w in range(1, S):
        a(f"s_waitcnt vmcnt({S-1-w})")
        a(f"v_max3_u32 v{vT0}, v{vT0}, v{vQ+2*w}, v{vQ+2*w+1}")
    a(f"v_cmp_eq_u32 vcc, -1, v{vT0}")
    a("s_cbranch_vccz L_ready")
    a(f"s_sub_u32 s{sCap}, s{sCap}, 1")
    a(f"s_and_b32 s3, s{sCap}, 7")
    a(f"s_cselect_b32 s3, s{sDone}, 1")
    a(f"s_cmp_eq_u32 s3, 0")
    a("s_cbranch_scc1 L_poll")
    a("s_branch L_slowpoll")
    a.label("L_ready")
    tstamp(8)
    a(f"v_max_f32_dpp v{vT0}, v{vQM}, v{vQM} row_ror:1 row_mask:0xf bank_mask:0xf")
    for k in (2, 4):
        a("s_nop 1")
        a(f"v_max_f32_dpp v{vT0}, v{vT0}, v{vT0} row_ror:{k} row_mask:0xf bank_mask:0xf")
    a(f"v_sub_f32 v{vG}, v{vQM}, v{vT0}")
    a(f"v_exp_f32 v{vG}, v{vG}")
    a("s_nop 0")
    a(f"v_mul_f32 v{vT0}, v{vQL}, v{vG}")
    for k in (1, 2, 4):
        a("s_nop 1")
        a(f"v_add_f32_dpp v{vT0}, v{vT0}, v{vT0} row_ror:{k} row_mask:0xf bank_mask:0xf")
    a(f"v_rcp_f32 v{vT0}, v{vT0}")
    a("s_nop 0")
    a(f"v_mul_f32 v{vG}, v{vG}, v{vT0}")
    a("s_nop 1")
    for w in range(S):
        op = "v_mul_f32_dpp" if w == 0 else "v_fmac_f32_dpp"
        for h in range(2):
            a(f"{op} v{vO+h}, v{vG}, v{vQ+2*w+h} row_newbcast:{w} row_mask:0xf bank_mask:0xf")
        a("s_nop 0")
    a(f"v_cvt_pk_bf16_f32 v{vO}, v{vO}, v{vO+1}")
    a(f"global_store_dword v{vV}, v{vO}, s[10:11]")
    a.label("L_stored")
    if tl:
        a("s_waitcnt vmcnt(0)")
        tstamp(9)
    if amp:
        a("s_waitcnt vmcnt(0)")
        a(f"v_mov_b32 v{vT0}, 128")
        a(f"v_mov_b32 v{vT1}, 0x10000")
        a("s_mov_b64 exec, 1")
        a(f"global_atomic_add v{vT0}, v{vT1}, s[12:13]")
    a("s_branch L_fin" if (tl or amp) else "s_endpgm")
    a.label("L_slowput")
    a.c("collector on another die, or not announced yet: write through to the second slot set, then flag this split as done")
    a(f"v_add_u32 v{vQS}, {SLOW}, v{vQS}")
    a(f"s_lshl_b32 s3, s{sSplit}, 8")
    a(f"s_add_u32 s3, s3, s{sHB}")
    a(f"s_add_u32 s3, s3, {SLOW + 4096}")
    a(f"v_mov_b32 v{vQD}, s3")
    a(f"global_store_dwordx2 v{vQS}, v[{vQ}:{vQ+1}], s[14:15] sc1")
    a("s_mov_b64 exec, 1")
    a(f"global_store_dwordx2 v{vQD}, v[{vM}:{vL}], s[14:15] sc1")
    a(f"s_lshl_b32 s3, 1, s{sSplit}")
    a(f"v_mov_b32 v{vT0}, s{sDbg}")
    a(f"v_mov_b32 v{vT1}, s3")
    a("s_waitcnt vmcnt(0)")
    a(f"global_atomic_or v{vT0}, v{vT1}, s[12:13] offset:128")
    if tl:
        a(f"s_mov_b32 s{sCap}, 0")
        a(f"s_mov_b32 s71, 100")
    a("s_branch L_fin" if (tl or amp) else "s_endpgm")
    a.label("L_slowpoll")
    a.c("collector: look for splits that used the second slot set")
    a(f"s_cmp_eq_u32 s{sCap}, 0")
    a("s_cbranch_scc1 L_fin")
    a(f"v_mov_b32 v{vT0}, s{sDbg}")
    a(f"global_load_dword v{vT1}, v{vT0}, s[12:13] offset:128 sc1")
    a(f"v_and_b32 v{vT0}, 7, v0")
    a("s_waitcnt vmcnt(0)")
    a(f"v_readfirstlane_b32 s{sDone}, v{vT1}")
    a(f"v_lshrrev_b32 v{vT1}, v{vT0}, v{vT1}")
    a(f"v_and_b32 v{vT1}, 1, v{vT1}")
    a(f"v_cmp_eq_u32 vcc, 1, v{vT1}")
    a(f"s_add_u32 s3, s{sHB}, {SLOW + 4096}")
    a(f"v_lshl_add_u32 v{vT0}, v{vT0}, 8, s3")
    a(f"s_and_b32 s{sDone}, s{sDone}, 0xff")
    a(f"v_cndmask_b32 v{vT1}, v{vQC}, v{vT0}, vcc")
    a(f"global_load_dwordx2 v[{vQM}:{vQL}], v{vT1}, s[14:15] sc1")
    for w in range(1, S):
        a(f"s_bitcmp1_b32 s{sDone}, {w}")
        a(f"s_cselect_b32 s3, {SLOW}, 0")
        a(f"v_add_u32 v{vT1}, s3, v{vQA}")
        a(f"global_load_dwordx2 v[{vQ+2*w}:{vQ+2*w+1}], v{vT1}, s[14:15] offset:{w * 512} sc1")
    a("s_branch L_check")
    a.label("L_fin")
    if tl:
        a("s_mov_b64 exec, -1")
        a("s_getreg_b32 s46, hwreg(HW_REG_XCC_ID)")
        a("s_getreg_b32 s47, hwreg(HW_REG_HW_ID)")
        a("s_waitcnt lgkmcnt(0)")
        a(f"v_mov_b32 v{vT1}, 0")
        for i in range(10):
            a(f"v_writelane_b32 v{vT1}, s{48+2*i}, {i}")
        a(f"v_writelane_b32 v{vT1}, s{sCap}, 11")
        a(f"v_writelane_b32 v{vT1}, s71, 12")
        a(f"v_writelane_b32 v{vT1}, s46, 14")
        a(f"v_writelane_b32 v{vT1}, s47, 15")
        a(f"s_mul_i32 s46, s2, 5")
        a(f"s_add_u32 s46, s46, s{sW}")
        a(f"s_lshl_b32 s46, s46, 6")
        a(f"s_add_u32 s46, s46, 0x100000")
        a(f"v_lshlrev_b32 v{vT0}, 2, v0")
        a(f"v_add_u32 v{vT0}, s46, v{vT0}")
        a("s_mov_b64 exec, 0xffff")
        a(f"global_store_dword v{vT0}, v{vT1}, s[14:15]")
    if amp:
        a.c("diagnostic only: workgroup 0 waits for all heads, then holds for amp x elapsed")
        a(f"s_xor_b32 s44, s{sW}, {NW}")
        a(f"s_or_b32 s44, s44, s2")
        a("s_cmp_lg_u32 s44, 0")
        a("s_cbranch_scc1 L_end")
        a("s_mov_b64 exec, 1")
        a(f"v_mov_b32 v{vT0}, 128")
        a("s_mov_b32 s44, 200000")
        a.label("L_apoll")
        a(f"global_load_dword v{vT1}, v{vT0}, s[12:13] sc1")
        a("s_waitcnt vmcnt(0)")
        a(f"v_readfirstlane_b32 s45, v{vT1}")
        a("s_lshr_b32 s45, s45, 16")
        a("s_sub_u32 s44, s44, 1")
        a("s_cmp_eq_u32 s44, 0")
        a("s_cbranch_scc1 L_end")
        a("s_cmp_lt_u32 s45, 32")
        a("s_cbranch_scc1 L_apoll")
        a("s_memrealtime s[42:43]")
        a("s_waitcnt lgkmcnt(0)")
        a("s_sub_u32 s44, s42, s40")
        a("s_min_u32 s44, s44, 20000")
        if amp > 0:
            a(f"s_mul_i32 s44, s44, {amp}")
        else:
            a("s_getreg_b32 s44, hwreg(HW_REG_XCC_ID, 0, 4)")
            a("s_mul_i32 s44, s44, 10000")
        a("s_add_u32 s40, s42, s44")
        a.label("L_spin")
        a("s_memrealtime s[42:43]")
        a("s_waitcnt lgkmcnt(0)")
        a("s_sub_u32 s42, s42, s40")
        a("s_cmp_lt_i32 s42, 0")
        a("s_cbranch_scc1 L_spin")
    a.label("L_end")
    a("s_endpgm")
    if tl:
        i = next(k for k, ln in enumerate(a.lines) if "s_memrealtime s[48:49]" in ln)
        a.lines.insert(i, "    s_mov_b32 s71, 0")

    lds = max(o['ldsmin'], NW * 512 + NW * 8)
    nv = max(nv, o['nvmin'])
    out = HEADER
    if o["noclr"]:
        out += "; hostclear\n"
    out += f"; @launch grid=({NWG},1,1) block=({NW*64+64},1,1) lds={lds}\n"
    out += DOC
    out += '.amdgcn_target "amdgcn-amd-amdhsa--gfx950"\n.text\n'
    if o["tpad"]:
        out += f".fill {o['tpad'] // 4}, 4, 0xbf800000\n"
    out += f".globl {NAME}\n.p2align 8\n.type {NAME},@function\n{NAME}:\n"
    out += "\n".join(a.lines) + "\n"
    acc = (nv + 3) // 4 * 4
    out += '.section .rodata,"a"\n'
    if o["kpad"]:
        out += f".fill {o['kpad'] // 4}, 4, 0\n"
    out += f""".p2align 6
.amdhsa_kernel {NAME}
  .amdhsa_next_free_vgpr {nv}
  .amdhsa_next_free_sgpr {o['nsg'] or (96 if kpat else (72 if tl else 48))}
  .amdhsa_accum_offset {acc}
  .amdhsa_group_segment_fixed_size 0
  .amdhsa_kernarg_size 48
  .amdhsa_user_sgpr_count 2
  .amdhsa_user_sgpr_kernarg_segment_ptr 1
  .amdhsa_system_sgpr_workgroup_id_x 1
  .amdhsa_float_denorm_mode_32 3
.end_amdhsa_kernel
"""
    return out


if __name__ == "__main__":
    p = argparse.ArgumentParser()
    p.add_argument("-o", required=True)
    for k, d in DEFAULTS.items():
        p.add_argument("--" + k, type=type(d), default=d)
    args = vars(p.parse_args())
    fn = args.pop("o")
    open(fn, "w").write(gen(**args))
```

```python
import argparse
import math
from gen1 import HEADER, NAME, Asm, f2u

G1 = "j0^w0^t3 w1 j2^t0 j2 t1 j0 t2 j4 t3 j3 x1 x2 x0 j1"
H1F = "j2^w0^t3 w1 j2^t0 j2 t1^t3 j3 t2 j4^j2 t3 j1 x0 x1 x2 j0"
H1 = "j4^w0^t3 w1 j4^t0 j4 t1^t3 j3 t2 j2^j4 t3 j0 x0 x2 x1 j1"
DEFAULTS = dict(R=2, R2=0, pol="nt", pat=H1, kvmode=0, tl=0, amp=0, pf=1, barA=27, prio=3, noclr=0, noflg=3, pre=8, pipe=1, ua=10, ub=11, spread=2, mode=0, mode2=0,
                chkmode=0, spec=1, forceslow=0, qpos=0, fine=1, kpat=0, cap=0x1000000, psel=0, iodfix=1, xrot=0, pst=0, fastpro=0, halves=1, sched='', wprio='', kx=0, vx=0, twarm=0, nvmin=0, ldsmin=0, tpad=0, kpad=0, nsg=0, fixm=4, fix2=0, fix2c=12, g0=4, g1=4, sel=0, gfrom=0, gto=99)

DOC = """;
; stores, then writes 0x100 | die id to d_debug[head]. A split that reads its own die id there shares the
"""

NW, S, T = 4, 8, 16
NWG = 256
NAMES = ["x0", "x1", "x2", "j0", "j1", "j2", "j3", "j4", "w0", "w1", "t0", "t1", "t2", "t3"]


def rank(ms):
    ms = list(ms)
    r = 0
    for bit in range(14):
        pv = next((m for m in ms if m >> bit & 1), None)
        if pv is None:
            continue
        ms.remove(pv)
        ms = [m ^ pv if m >> bit & 1 else m for m in ms]
        r += 1
    return r


def columns(pat, ua=10, ub=11):
    rows = []
    for tm in pat.replace(",", " ").split()[:14]:
        m = 0
        for n in tm.split("^"):
            m ^= 1 << NAMES.index(n)
        rows.append(m)
    assert rank(rows) == 14 and not any(m >> 8 for m in rows[9:])
    sp = []
    for bit in range(8):
        if rank(rows[9:] + sp + [1 << bit]) == 5 + len(sp) + 1:
            sp.append(1 << bit)
    rows += sp
    bits = [b - 10 for b in range(10, 26) if b not in (ua, ub)] + [16, 17, 18]
    return [sum(((rows[pos] >> i) & 1) << bits[pos] for pos in range(17)) for i in range(14)]


def gen(**kw):
    o = dict(DEFAULTS)
    o.update(kw)
    tl, amp, kvmode, kpat = o["tl"], o["amp"], o["kvmode"], o["kpat"]
    pol = (" " + o["pol"]) if o["pol"] else ""
    ua, ub = o["ua"], o["ub"]
    assert ua < ub < 21 and (kvmode == 0 or (ua, ub) == (10, 11))
    col = columns(o["pat"], ua, ub)
    SLOW = 0x40000
    Rmax = max(o["R"], o["R2"])
    a = Asm()
    vK, vV, vT0, vT1, vC, vM, vL = 1, 2, 3, 4, 5, 6, 7
    vD, vO, vMask, vA = 8, 12, 16, 20
    vS = 36
    vQ = 52
    vQM, vQL = 68, 69
    vQA, vQB, vQC, vQS = 70, 71, 72, 73
    vLA, vTS, vX, vQD, vG = 74, 75, 76, 77, 78
    vRing = 80
    sched = dict((int(x.split(":")[0]), int(x.split(":")[1])) for x in o["sched"].split(",") if x)
    NSLOT = max([Rmax + (1 if 1 in (o['mode'], o['mode2']) else 0)] + list(sched.values()))
    nv = vRing + 16 * NSLOT

    def window(n, R):
        w = R
        for k in sorted(sched):
            if n >= k:
                w = sched[k]
        return w
    assert nv <= 256
    sW, sHead, sSplit, sBase, sOut = 16, 17, 18, 19, 20
    sMc = 22
    sHB, sSlot, sDbg = 24, 25, 26
    sRole = 28
    sMine, sDone, sCap, sChk = 30, 31, 32, 33
    sOwn = 34

    def tstamp(i):
        if tl:
            a(f"s_memrealtime s[{48+2*i}:{49+2*i}]")

    def tmask(i):
        m = 0
        for b in range(4):
            if i >> b & 1:
                m ^= col[10 + b]
        return m << 10

    kstep, vstep = (1024, 256) if kvmode == 0 else (256, 1024)

    if o["fastpro"]:
        assert not kpat and (ua, ub) == (10, 11)
        a("s_load_dwordx8 s[4:11], s[0:1], 0")
        a("s_load_dwordx4 s[12:15], s[0:1], 32")
        if amp:
            a("s_memrealtime s[40:41]")
        if tl:
            for i in range(1, 10):
                a(f"s_mov_b32 s{48+2*i}, 0")
            a(f"s_mov_b32 s{sCap}, 0")
        tstamp(0)
        a(f"v_lshrrev_b32 v{vT0}, 6, v0")
        a(f"s_cmpk_ge_u32 s2, {NWG}")
        a(f"v_readfirstlane_b32 s{sW}, v{vT0}")
        a("s_cbranch_scc1 L_end")
        a.c("workgroup id bits -> head (address bits 21..25) and split; the ids of one head are 8 apart")
        a(f"s_bfe_u32 s3, s2, 0x10004")
        a(f"s_and_b32 s{sHead}, s2, 15")
        a(f"s_lshl1_add_u32 s{sHead}, s{sHead}, s3")
        a(f"s_lshr_b32 s{sSplit}, s2, 5")
        a(f"v_and_b32 v0, 63, v0")
        a(f"s_cmp_eq_u32 s{sW}, {NW}")
        a("s_cbranch_scc1 L_finisher")
        a.c("first tile of this wave: split, wave and die bits are xor-ed into address bits 12..20 so that")
        a.c("the tiles in flight spread evenly over memory stacks and banks (speed only)")
        a("s_getreg_b32 s3, hwreg(HW_REG_XCC_ID, 2, 1)")
        a("s_bfe_u32 s21, s2, 0x10001")
        a("s_xor_b32 s3, s3, s21")
        a(f"s_mul_i32 s3, s3, {col[13]}")
        a(f"s_lshl2_add_u32 s{sBase}, s{sW}, 0" if False else f"s_lshl_b32 s{sBase}, s{sW}, 2")
        a(f"s_xor_b32 s{sBase}, s{sBase}, s3")
        for b in (5, 6, 7):
            a(f"s_bitcmp1_b32 s2, {b}")
            a(f"s_cselect_b32 s3, {col[b] & 0xffff}, 0")
            a(f"s_xor_b32 s{sBase}, s{sBase}, s3")
        a(f"s_lshl_b32 s3, s{sHead}, 11")
        a(f"s_or_b32 s{sBase}, s{sBase}, s3")
        a(f"s_lshl_b32 s{sBase}, s{sBase}, 10")
        rows = o["pat"].split()
        assert rows[9:14] == ["j1", "x0", "x1", "x2", "j0"] and col[8] == 4 and col[9] == 8
        assert all((col[b] & 0x7ff) == 0 for b in range(5))
    else:
        a("s_load_dwordx8 s[4:11], s[0:1], 0")
        a("s_load_dwordx4 s[12:15], s[0:1], 32")
        a(f"s_cmpk_ge_u32 s2, {NWG}")
        a("s_cbranch_scc1 L_end")
        if kpat:
            a("s_load_dwordx16 s[76:91], s[0:1], 48")
        if amp:
            a("s_memrealtime s[40:41]")
        if tl:
            for i in range(1, 10):
                a(f"s_mov_b32 s{48+2*i}, 0")
            a(f"s_mov_b32 s{sCap}, 0")
        tstamp(0)
        a(f"v_lshrrev_b32 v{vT0}, 6, v0")
        if o["pf"]:
            a.c("pull the kernel's own code into L2 while the kernel arguments are on their way")
            a("s_getpc_b64 s[22:23]")
            a(f"v_lshlrev_b32 v{vT1}, 7, v0")
            a(f"v_min_u32 v{vT1}, L_end-.-64, v{vT1}")
            a.vmem(f"global_load_dword v{vC}, v{vT1}, s[22:23]", "pf")
        else:
            a("s_nop 0")
        a(f"v_readfirstlane_b32 s{sW}, v{vT0}")
        a(f"v_and_b32 v0, 63, v0")
        a.c("(workgroup, wave) -> first tile, head and split: an xor-linear map of the id bits")
        a(f"s_lshl_b32 s21, s{sW}, 8")
        if o["xrot"]:
            a(f"s_add_u32 s3, s2, {o['xrot']}")
            a("s_and_b32 s3, s3, 7")
            a("s_and_b32 s23, s2, 0xf8")
            a("s_or_b32 s23, s23, s3")
            a(f"s_or_b32 s21, s21, s23")
        else:
            a(f"s_or_b32 s21, s21, s2")
        if kpat:
            a("s_waitcnt lgkmcnt(0)")
        for b in range(10):
            src = f"s{76+b}" if kpat else str(col[b])
            a(f"s_bitcmp1_b32 s21, {b}")
            if b == 0:
                a(f"s_cselect_b32 s{sBase}, {src}, 0")
            else:
                a(f"s_cselect_b32 s3, {src}, 0")
                a(f"s_xor_b32 s{sBase}, s{sBase}, s3")
        if o["iodfix"]:
            a.c("order of this wave's own tiles follows the die it really runs on (speed only)")
            a("s_getreg_b32 s3, hwreg(HW_REG_XCC_ID, 0, 4)")
            if o["fixm"] == 4:
                a("s_xor_b32 s3, s3, s21")
                a("s_bitcmp1_b32 s3, 2")
            else:
                a(f"s_and_b32 s3, s3, {o['fixm']}")
                a("s_and_b32 s23, s21, 4")
                a("s_bcnt1_i32_b32 s3, s3")
                a("s_lshr_b32 s23, s23, 2")
                a("s_xor_b32 s3, s3, s23")
                a("s_bitcmp1_b32 s3, 0")
            a(f"s_cselect_b32 s3, {col[13]}, 0")
            a(f"s_xor_b32 s{sBase}, s{sBase}, s3")
            if o["fix2"]:
                a("s_getreg_b32 s3, hwreg(HW_REG_XCC_ID, 0, 4)")
                a(f"s_and_b32 s3, s3, {o['fix2']}")
                a("s_bcnt1_i32_b32 s3, s3")
                a("s_bitcmp1_b32 s3, 0")
                a(f"s_cselect_b32 s3, {col[o['fix2c']]}, 0")
                a(f"s_xor_b32 s{sBase}, s{sBase}, s3")
        if kpat:
            for b in range(4):
                a(f"s_and_b32 s{86+b}, s{86+b}, {0x1ffc00 & ~((1 << ua) | (1 << ub))}")
        a(f"s_bfe_u32 s{sSplit}, s{sBase}, 0x30010")
        a(f"s_bfe_u32 s{sHead}, s{sBase}, 0x5000b")
        a(f"s_and_b32 s{sBase}, s{sBase}, {0xffff & ~((1 << (ua - 10)) | (1 << (ub - 10)))}")
        a(f"s_lshl_b32 s{sBase}, s{sBase}, 10")
        a(f"s_cmp_eq_u32 s{sW}, {NW}")
        a("s_cbranch_scc1 L_finisher")
    a.c("lane patterns: lane = (g, a, b) for K and q, (g, c) for V")
    a(f"v_and_b32 v{vT1}, 3, v0")
    a(f"v_lshlrev_b32 v{vT1}, 4, v{vT1}")
    a(f"v_and_b32 v{vM}, 48, v0")
    a(f"v_lshl_add_u32 v{vT1}, v{vM}, 2, v{vT1}")
    a(f"v_and_b32 v{vL}, 12, v0")
    a(f"v_lshlrev_b32 v{vL}, {6 if kvmode == 0 else 8}, v{vL}")
    a(f"v_add3_u32 v{vK}, v{vL}, v{vT1}, s{sBase}")
    if o["kx"]:
        a(f"v_xor_b32 v{vK}, {o['kx']}, v{vK}")
    a(f"s_lshl_b32 s{sOut}, s{sHead}, 8")
    a(f"v_add_u32 v{vT1}, s{sOut}, v{vT1}")
    if o["R2"]:
        if o["psel"] == 0:
            a("s_bitcmp1_b32 s2, 0")
        else:
            a("s_getreg_b32 s3, hwreg(HW_REG_XCC_ID, 0, 4)")
            a("s_bitcmp1_b32 s3, 0")
    if o["pst"]:
        tstamp(2)
    a("s_waitcnt lgkmcnt(0)")
    tstamp(1)
    if o["R2"]:
        a("s_cbranch_scc1 L_body1")
    vm0 = list(a.vm)

    def poll_issue():
        a(f"global_load_dwordx2 v[{vQM}:{vQL}], v{vQC}, s[14:15] sc1")
        for w in range(1, S):
            a(f"global_load_dwordx2 v[{vQ+2*w}:{vQ+2*w+1}], v{vQA}, s[14:15] offset:{w * 512} sc1")

    def body(R, sfx, mode):
        a.vm = list(vm0)

        def slot(n):
            return vRing + 16 * (n % (NSLOT if sched else R + (1 if mode == 1 else 0)))

        nxt = [0]

        def refill(n):
            st = 0
            if nxt[0] < min(2 * T, n + 1 + window(n, R)) and o["gfrom"] <= n <= o["gto"]:
                if o["g0"] < 4:
                    a(f"s_waitcnt vmcnt({o['g0']})")
                    st += 1
                if o["sel"] and o["g1"] < o["g0"]:
                    a("s_cmp_eq_u32 s37, 0")
                    a(f"s_cbranch_scc1 L_g{n}{sfx}")
                    a(f"s_waitcnt vmcnt({o['g1']})")
                    a.label(f"L_g{n}{sfx}")
                    st += 2
            while nxt[0] < min(2 * T, n + 1 + window(n, R)):
                st += issue_tile(nxt[0])
                nxt[0] += 1
            return st

        his = sorted({(((t & 1) << ua) + ((t >> 1) << ub)) & ~0xfff for t in range(4)} - {0})
        kb = {hi: 24 + 2 * i for i, hi in enumerate(his)}
        made = set()

        def issue_tile(n):
            isK = n < T
            i = n if isK else n - T
            va, base, step = (vK, "s[6:7]", kstep) if isK else (vV, "s[8:9]", vstep)
            if i > 0:
                if kpat:
                    a(f"v_xor_b32 v{va}, s{86 + (i ^ (i - 1)).bit_length() - 1}, v{va}")
                else:
                    a(f"v_xor_b32 v{va}, {tmask(i) ^ tmask(i - 1)}, v{va}")
            r = slot(n)
            for t in range(4):
                if kvmode == 1:
                    bs = base
                    off = f" offset:{t*step}" if t else ""
                elif isK:
                    d = ((t & 1) << ua) + ((t >> 1) << ub)
                    hi = d & ~0xfff
                    bs = "s[6:7]" if not hi else f"s[{kb[hi]}:{kb[hi]+1}]"
                    if hi and n == 0 and hi not in made:
                        a(f"s_add_u32 s{kb[hi]}, s6, {hi}")
                        a(f"s_addc_u32 s{kb[hi]+1}, s7, 0")
                        made.add(hi)
                    off = f" offset:{d & 0xfff}" if d & 0xfff else ""
                else:
                    bs = base
                    off = f" offset:{t*256}" if t else ""
                a.vmem(f"global_load_dwordx4 v[{r+4*t}:{r+4*t+3}], v{va}, {bs}{off}{pol}", ("t", n, t))
            return 4 + (1 if i > 0 else 0)

        def cond_issue(n, site):
            lab = f"L_skip{site}{n}{sfx}"
            a(f"s_bitcmp{'0' if site == 'A' else '1'}_b32 s37, 0")
            a(f"s_cbranch_scc1 {lab}")
            keep = list(a.vm)
            issue_tile(n)
            if site == "A":
                a.vm = keep
            a.label(lab)
            return 2

        def side_work(n):
            if n == (o["barA"] or 2 * T - R - 1):
                a.c("barrier A: the (m, l) of all four waves are in LDS, the finishing wave may use them")
                a("s_waitcnt lgkmcnt(0)")
                a("s_barrier")
                return 2
            return 0

        if o["qpos"] == 0:
            a.vmem(f"global_load_dwordx4 v[{vD}:{vD+3}], v{vT1}, s[4:5]", "q")
        for n in range(window(-1, R)):
            issue_tile(n)
            nxt[0] = n + 1
            if n + 1 == o["qpos"]:
                a.vmem(f"global_load_dwordx4 v[{vD}:{vD+3}], v{vT1}, s[4:5]", "q")
        if not o["pst"]:
            tstamp(2)
        if mode == 3:
            a("s_getreg_b32 s37, hwreg(HW_REG_XCC_ID, 0, 1)")
            if o["psel"] == 2:
                a("s_xor_b32 s37, s37, 1")
        if o["sel"]:
            a("s_getreg_b32 s37, hwreg(HW_REG_XCC_ID, 0, 1)")
            a(f"s_lshl2_add_u32 s37, s37, s{sW}")
            a(f"s_lshr_b32 s37, {o['sel']}, s37")
            a("s_and_b32 s37, s37, 1")
        if o["wprio"]:
            for w, pr in enumerate(o["wprio"]):
                if pr != "0":
                    a(f"s_cmp_lg_u32 s{sW}, {w}")
                    a(f"s_cbranch_scc1 L_pr{w}{sfx}")
                    a(f"s_setprio {pr}")
                    a.label(f"L_pr{w}{sfx}")
        if kvmode == 0:
            a(f"v_and_b32 v{vL}, 15, v0")
            a(f"v_lshlrev_b32 v{vL}, 4, v{vL}")
            if (ua, ub) == (10, 11):
                a(f"v_lshl_add_u32 v{vV}, v{vM}, 6, v{vL}")
            else:
                a(f"v_and_b32 v{vV}, 16, v0")
                a(f"v_lshl_add_u32 v{vL}, v{vV}, {ua - 4}, v{vL}")
                a(f"v_and_b32 v{vV}, 32, v0")
                a(f"v_lshl_add_u32 v{vV}, v{vV}, {ub - 5}, v{vL}")
            a(f"v_add_u32 v{vV}, s{sBase}, v{vV}")
            if o["vx"]:
                a(f"v_xor_b32 v{vV}, {o['vx']}, v{vV}")
        else:
            a(f"v_lshl_add_u32 v{vV}, v0, 4, s{sBase}")
        a.c("LDS address of this wave's partial: w*512 + c*32 + (g&1)*16")
        a(f"v_and_b32 v{vT0}, 15, v0")
        a(f"v_lshlrev_b32 v{vT0}, 5, v{vT0}")
        a(f"v_and_b32 v{vLA}, 16, v0")
        a(f"s_lshl_b32 s3, s{sW}, 9")
        a(f"v_add3_u32 v{vLA}, v{vT0}, v{vLA}, s3")
        a.c("half-word masks that place p on the diagonal of the P operand")
        a(f"v_and_b32 v{vT0}, 1, v0")
        a(f"v_lshlrev_b32 v{vT0}, 4, v{vT0}")
        a(f"s_mov_b32 s3, 0xffff")
        a(f"v_lshlrev_b32 v{vT0}, v{vT0}, s3")
        a(f"s_mov_b32 vcc_lo, 0x03030303")
        a(f"s_mov_b32 vcc_hi, vcc_lo")
        for i in range(4):
            a(f"v_cndmask_b32 v{vMask+i}, 0, v{vT0}, vcc")
            if i < 3:
                a(f"s_lshl_b64 vcc, vcc, 2")
        a(f"s_mov_b32 vcc_lo, 0x000f000f")
        a(f"s_mov_b32 vcc_hi, vcc_lo")
        a.wait_tag("q")
        cval = math.log2(math.e) / math.sqrt(128.0)
        a(f"v_mov_b32 v{vC}, 0x{f2u(cval):08x}")
        a.c("q operand t is q in rows 4t..4t+3 and zero elsewhere")
        for t in range(4):
            for i in range(4):
                a(f"v_cndmask_b32 v{vA+4*t+i}, 0, v{vD+i}, vcc")
            if t < 3:
                a(f"s_lshl_b64 vcc, vcc, 4")

        def wait_tile(n, t=3):
            if any(x == ("t", n, t) for x in a.vm):
                a.wait_tag(("t", n, t))
                return 1
            return 0

        for n in range(T):
            a.c(f"K tile {n}")
            w = wait_tile(n)
            if n == 0:
                a("s_nop 0" if w else "s_nop 1")
                tstamp(3)
            r = slot(n)
            if mode == 1:
                issue_tile(n + R)
            for t in range(4):
                cin = "0" if t == 0 else f"v[{vD}:{vD+3}]"
                a(f"v_mfma_f32_16x16x32_bf16 v[{vD}:{vD+3}], v[{vA+4*t}:{vA+4*t+3}], v[{r+4*t}:{r+4*t+3}], {cin}")
            st = refill(n) if mode == 0 else 0
            if mode == 3:
                st = cond_issue(n + R, "A")
            st += side_work(n)
            if st < 8:
                a(f"s_nop {8 - st - 1}")
            s = vS + n
            a(f"v_mov_b32_dpp v{s}, v{vD} quad_perm:[0,0,0,0] row_mask:0xf bank_mask:0xf")
            a(f"v_mov_b32_dpp v{vT0}, v{vD+1} quad_perm:[1,1,1,1] row_mask:0xf bank_mask:0xf")
            a("s_nop 0")
            a(f"v_add_f32_dpp v{s}, v{vD+2}, v{s} quad_perm:[2,2,2,2] row_mask:0xf bank_mask:0xf")
            a(f"v_add_f32_dpp v{vT0}, v{vD+3}, v{vT0} quad_perm:[3,3,3,3] row_mask:0xf bank_mask:0xf")
            a(f"v_add_f32 v{s}, v{s}, v{vT0}")
            if mode == 2:
                issue_tile(n + R)
            if mode == 3:
                cond_issue(n + R, "B")
            if n == 1:
                a(f"v_max_f32 v{vM}, v{vS}, v{vS+1}")
            elif n > 1 and n % 2 == 1:
                a(f"v_max3_f32 v{vM}, v{vM}, v{s-1}, v{s}")
        a.c("true maximum of this wave's scores")
        tstamp(4)
        red = ("row_ror:4 row_mask:0xf", "row_ror:8 row_mask:0xf", "row_bcast:15 row_mask:0xa", "row_bcast:31 row_mask:0xc")
        for ctl in red:
            a("s_nop 1")
            a(f"v_max_f32_dpp v{vM}, v{vM}, v{vM} {ctl} bank_mask:0xf")
        a(f"v_mul_f32 v{vM}, v{vC}, v{vM}")
        a("s_nop 0")
        a(f"v_readlane_b32 s{sMc}, v{vM}, 63")
        a("s_nop 1")
        def probs(lo, hi):
            for n in range(lo, hi):
                a(f"v_fma_f32 v{vS+n}, v{vS+n}, v{vC}, -s{sMc}")
            for n in range(lo, hi):
                a(f"v_exp_f32 v{vS+n}, v{vS+n}")
            if lo == 0:
                a(f"v_mov_b32 v{vM}, s{sMc}")
                a(f"v_mov_b32 v{vL}, v{vS}")
            else:
                a("s_nop 0")
            for n in range(max(lo, 1), hi):
                if o["halves"] and n == T // 2:
                    a(f"v_mov_b32 v{vT1}, v{vS+n}")
                elif o["halves"] and n > T // 2:
                    a(f"v_add_f32 v{vT1}, v{vT1}, v{vS+n}")
                else:
                    a(f"v_add_f32 v{vL}, v{vL}, v{vS+n}")
            if o["halves"] and hi == T:
                a(f"v_add_f32 v{vL}, v{vL}, v{vT1}")
            for n in range(lo, hi):
                a(f"v_cvt_pk_bf16_f32 v{vS+n}, v{vS+n}, v{vS+n}")

        def publish_ml():
            for ctl in red:
                a(f"v_add_f32_dpp v{vL}, v{vL}, v{vL} {ctl} bank_mask:0xf")
                a("s_nop 1")
            a(f"s_lshl_b32 s3, s{sW}, 3")
            a(f"v_mov_b32 v{vT0}, s3")
            a(f"s_brev_b64 exec, 1")
            a(f"ds_write_b64 v{vT0}, v[{vM}:{vL}] offset:{NW*512}")
            a(f"s_mov_b64 exec, -1")
        sp = o["spread"]
        if not sp:
            probs(0, T)
            publish_ml()
        else:
            probs(0, 1)
            a("s_nop 1")
        for i in range(T):
            n = T + i
            a.c(f"V tile {i}")
            for u in range(4):
                for j in range(4):
                    a(f"v_and_b32_dpp v{vA+4*u+j}, v{vS+i}, v{vMask+j} row_newbcast:{4*u} row_mask:0xf bank_mask:0xf")
            if mode == 2 and i > 0 and n - 1 + R < 2 * T:
                issue_tile(n - 1 + R)
            if mode == 3 and i > 0 and n - 1 + R < 2 * T:
                cond_issue(n - 1 + R, "B")
            fine = o["fine"] and i == T - 1
            if not fine:
                wait_tile(n)
                a("s_nop 0")
            if mode == 1 and n + R < 2 * T:
                issue_tile(n + R)
            r = slot(n)
            for u in range(4):
                if fine:
                    wait_tile(n, u)
                    if u == 0:
                        a("s_nop 0")
                acc = vD if (o["halves"] and i < T // 2) else vO
                first = u == 0 and (i == 0 or (o["halves"] and i == T // 2))
                cin = "0" if first else f"v[{acc}:{acc+3}]"
                a(f"v_mfma_f32_16x16x32_bf16 v[{acc}:{acc+3}], v[{vA+4*u}:{vA+4*u+3}], v[{r+4*u}:{r+4*u+3}], {cin}")
            if mode == 0:
                refill(n)
            if mode == 3 and n + R < 2 * T:
                cond_issue(n + R, "A")
            if sp:
                lo, hi = 1 + i * sp, min(T, 1 + (i + 1) * sp)
                if lo < T:
                    probs(lo, hi)
                    a("s_nop 1")
                    if hi == T:
                        publish_ml()
            side_work(n)

    body(o["R"], "a", o["mode"])
    if o["R2"]:
        a("s_branch L_join")
        a.label("L_body1")
        body(o["R2"], "b", o["mode2"])
        a.label("L_join")
    a.vm = []
    a("s_nop 7")
    if o["halves"]:
        a.c("the two halves of the keys are summed apart, so their order does not change the result")
        a(f"v_pk_add_f32 v[{vO}:{vO+1}], v[{vO}:{vO+1}], v[{vD}:{vD+1}]")
        a(f"v_pk_add_f32 v[{vO+2}:{vO+3}], v[{vO+2}:{vO+3}], v[{vD+2}:{vD+3}]")
    tstamp(5)
    a(f"ds_write_b128 v{vLA}, v[{vO}:{vO+3}]")
    a("s_waitcnt lgkmcnt(0)")
    a.c("barrier B: the partial outputs of all four waves are in LDS")
    a("s_barrier")
    tstamp(6)
    a("s_branch L_fin" if (tl or amp) else "s_endpgm")

    a.label("L_finisher")
    if o["prio"]:
        a(f"s_setprio {o['prio']}")
    if o["fastpro"] and o["pf"]:
        a.c("pull the kernel's own code into L2 while the kernel arguments are on their way")
        a("s_getpc_b64 s[22:23]")
        a.label("L_pc")
        a(f"s_sub_u32 s22, s22, L_pc-{NAME}")
        a("s_subb_u32 s23, s23, 0")
        a(f"v_lshlrev_b32 v{vT1}, 7, v0")
        a(f"v_min_u32 v{vT0}, L_end-{NAME}, v{vT1}")
        a(f"global_load_dword v{vC}, v{vT0}, s[22:23]")
        a(f"v_add_u32 v{vT1}, 8192, v{vT1}")
        a(f"v_min_u32 v{vT1}, L_end-{NAME}, v{vT1}")
        a(f"global_load_dword v{vG}, v{vT1}, s[22:23]")
    a.c("hand-off addresses and constants")
    a(f"s_lshl_b32 s{sHB}, s{sHead}, 13")
    a(f"s_lshl_b32 s{sSlot}, s{sSplit}, 9")
    a(f"s_add_u32 s{sSlot}, s{sSlot}, s{sHB}")
    a(f"s_lshl_b32 s{sDbg}, s{sHead}, 2")
    a(f"s_mov_b32 s{sRole}, s{sSplit}")
    a(f"s_getreg_b32 s{sMine}, hwreg(HW_REG_XCC_ID, 0, 4)")
    a(f"s_or_b32 s{sMine}, s{sMine}, 0x100")
    a(f"s_mov_b32 s{sChk}, 0")
    a(f"s_mov_b32 s{sOwn}, 0x01010101")
    a(f"s_mov_b32 s{sOwn+1}, s{sOwn}")
    a(f"v_lshl_add_u32 v{vQS}, v0, 3, s{sSlot}")
    a(f"v_min_u32 v{vX}, 32, v0")
    a(f"v_lshl_add_u32 v{vX}, v{vX}, 7, s{sHB}")
    a(f"v_lshl_add_u32 v{vQA}, v0, 3, s{sHB}")
    a(f"v_lshl_add_u32 v{vQB}, v0, 4, s{sHB}")
    a(f"s_add_u32 s3, s{sHB}, 4096")
    a(f"v_and_b32 v{vQC}, 7, v0")
    a(f"v_lshl_add_u32 v{vQC}, v{vQC}, 3, s3")
    a(f"s_lshl_b32 s21, s{sSplit}, 3")
    a(f"s_add_u32 s21, s21, s3")
    a(f"v_mov_b32 v{vQD}, s21")
    for k in range(4):
        a(f"v_mov_b32 v{vQ+k}, -1")
    a(f"s_lshl_b32 s{sOut}, s{sHead}, 8")
    a(f"v_and_b32 v{vLA}, {NW-1}, v0")
    a(f"v_lshlrev_b32 v{vLA}, 3, v{vLA}")
    a(f"v_lshlrev_b32 v{vK}, 3, v0")
    a(f"v_lshl_add_u32 v{vV}, v0, 2, s{sOut}")
    a(f"s_cmp_lg_u32 s{sRole}, 0")
    a("s_waitcnt lgkmcnt(0)")
    tstamp(1)
    if o["twarm"] & 1:
        a.c("touch the V page early so that its address translation is ready (value unused)")
        a(f"v_mov_b32 v{vG}, s{sBase}")
        a("s_mov_b64 exec, 1")
        a(f"global_load_dword v{vG}, v{vG}, s[8:9] nt")
        a("s_mov_b64 exec, -1")
    if o["twarm"] & 2:
        a("s_mov_b64 exec, 1")
        a(f"global_load_dword v{vTS}, v{vQS}, s[14:15] sc1")
        a("s_mov_b64 exec, -1")
    a("s_cbranch_scc1 L_barA")
    a.c("collector: bring the hand-off lines into its L2, mark every word as empty, then announce the die")
    a(f"global_load_dword v{vX}, v{vX}, s[14:15] sc1")
    a("s_waitcnt vmcnt(0)")
    if not o["noclr"]:
        for k in range(4):
            a(f"global_store_dwordx4 v{vQB}, v[{vQ}:{vQ+3}], s[14:15] offset:{k*1024}")
        a(f"global_store_dwordx2 v{vQC}, v[{vQ}:{vQ+1}], s[14:15]")
    a(f"v_mov_b32 v{vT0}, s{sDbg}")
    a(f"v_mov_b32 v{vT1}, s{sMine}")
    a("s_mov_b64 exec, 1")
    a("s_waitcnt vmcnt(0)")
    if o["noflg"] == 0:
        a(f"global_store_dword v{vT0}, v{vT1}, s[12:13] sc1")
    elif o["noflg"] == 2:
        a(f"s_mov_b32 s3, s{sMine}")
        a(f"s_atomic_or s3, s[12:13], s{sDbg}")
    elif o["noflg"] == 3:
        a(f"global_store_dword v{vT0}, v{vT1}, s[12:13]")
    a("s_mov_b64 exec, -1")
    a.label("L_barA")
    a("s_barrier")
    a(f"s_load_dword s{sChk}, s[12:13], s{sDbg}")
    a(f"ds_read_b64 v[{vM}:{vL}], v{vLA} offset:{NW*512}")
    a("s_waitcnt vmcnt(0) lgkmcnt(0)")
    a.c("workgroup maximum, per-wave factors and workgroup sum")
    a(f"v_max_f32_dpp v{vT0}, v{vM}, v{vM} row_ror:1 row_mask:0xf bank_mask:0xf")
    a("s_nop 1")
    a(f"v_max_f32_dpp v{vT0}, v{vT0}, v{vT0} row_ror:2 row_mask:0xf bank_mask:0xf")
    a(f"v_sub_f32 v{vC}, v{vM}, v{vT0}")
    a(f"v_exp_f32 v{vC}, v{vC}")
    a(f"v_min_u32 v{vM}, -2, v{vT0}")
    a(f"v_mul_f32 v{vL}, v{vL}, v{vC}")
    a("s_nop 1")
    a(f"v_add_f32_dpp v{vL}, v{vL}, v{vL} row_ror:1 row_mask:0xf bank_mask:0xf")
    a("s_nop 1")
    a(f"v_add_f32_dpp v{vL}, v{vL}, v{vL} row_ror:2 row_mask:0xf bank_mask:0xf")
    if o["noflg"] == 1:
        a(f"s_mov_b32 s{sChk}, s{sMine}")
    if o["forceslow"] == 1:
        a(f"s_mov_b32 s{sChk}, 0")
    elif o["forceslow"] == 2:
        a(f"s_bitcmp1_b32 s{sSplit}, 0")
        a(f"s_cselect_b32 s{sChk}, 0, s{sChk}")
    a(f"s_mov_b32 s{sCap}, {o['cap']}")
    a(f"s_mov_b32 s{sDone}, 0")
    a(f"v_min_u32 v{vL}, -2, v{vL}")
    a.c("role: 0 collect, 1 hand over through the shared L2, 2 hand over through memory")
    a(f"s_cmp_eq_u32 s{sChk}, s{sMine}")
    a(f"s_cselect_b32 s{sChk}, 1, 2")
    a(f"s_cmp_eq_u32 s{sRole}, 0")
    a(f"s_cselect_b32 s{sRole}, 0, s{sChk}")
    a(f"s_cmp_lg_u32 s{sRole}, 1")
    a("s_cbranch_scc1 L_notfast")
    a("s_mov_b64 exec, 1")
    a(f"global_store_dwordx2 v{vQD}, v[{vM}:{vL}], s[14:15]")
    a("s_mov_b64 exec, -1")
    a("s_branch L_barB")
    a.label("L_notfast")
    if o["pre"]:
        a(f"s_cmp_lg_u32 s{sRole}, 0")
        a("s_cbranch_scc1 L_barB")
        a.c("collector: try to get all (m, l) now, so that only the sums are left for the end")
        a(f"s_mov_b32 s3, {o['pre']}")
        a.label("L_mlpoll")
        a(f"global_load_dwordx2 v[{vQM}:{vQL}], v{vQC}, s[14:15] sc1")
        a("s_waitcnt vmcnt(0)")
        a(f"v_cndmask_b32 v{vQM}, v{vQM}, v{vM}, s[{sOwn}:{sOwn+1}]")
        a(f"v_cndmask_b32 v{vQL}, v{vQL}, v{vL}, s[{sOwn}:{sOwn+1}]")
        a(f"v_max_u32 v{vT0}, v{vQM}, v{vQL}")
        a(f"v_cmp_eq_u32 vcc, -1, v{vT0}")
        a("s_cbranch_vccz L_mlready")
        a("s_sub_u32 s3, s3, 1")
        a("s_cmp_lg_u32 s3, 0")
        a("s_cbranch_scc1 L_mlpoll")
        a("s_branch L_barB")
        a.label("L_mlready")
        a(f"v_max_f32_dpp v{vT0}, v{vQM}, v{vQM} row_ror:1 row_mask:0xf bank_mask:0xf")
        for k in (2, 4):
            a("s_nop 1")
            a(f"v_max_f32_dpp v{vT0}, v{vT0}, v{vT0} row_ror:{k} row_mask:0xf bank_mask:0xf")
        a(f"v_sub_f32 v{vG}, v{vQM}, v{vT0}")
        a(f"v_exp_f32 v{vG}, v{vG}")
        a("s_nop 0")
        a(f"v_mul_f32 v{vT0}, v{vQL}, v{vG}")
        for k in (1, 2, 4):
            a("s_nop 1")
            a(f"v_add_f32_dpp v{vT0}, v{vT0}, v{vT0} row_ror:{k} row_mask:0xf bank_mask:0xf")
        a(f"v_rcp_f32 v{vT0}, v{vT0}")
        a(f"s_mov_b32 s{sRole}, -1")
        a(f"v_mul_f32 v{vG}, v{vG}, v{vT0}")
        a("s_barrier")
        tstamp(6)
        for w in range(NW):
            a(f"ds_read_b64 v[{vRing+2*w}:{vRing+2*w+1}], v{vK} offset:{w*512}")

        def oissue(base):
            for w in range(1, S):
                a(f"global_load_dwordx2 v[{base+2*w}:{base+2*w+1}], v{vQA}, s[14:15] offset:{w * 512} sc1")

        def ocheck(base, extra, lab):
            for h in range(2):
                a(f"v_mul_f32_dpp v{vO+2+h}, v{vG}, v{vO+h} row_newbcast:0 row_mask:0xf bank_mask:0xf")
            for w in range(1, S):
                a(f"s_waitcnt vmcnt({S-1-w+extra})")
                if w == 1:
                    a(f"v_max_u32 v{vT0}, v{base+2}, v{base+3}")
                else:
                    a(f"v_max3_u32 v{vT0}, v{vT0}, v{base+2*w}, v{base+2*w+1}")
                if w == S - 1:
                    a(f"v_cmp_eq_u32 vcc, -1, v{vT0}")
                for h in range(2):
                    a(f"v_fmac_f32_dpp v{vO+2+h}, v{vG}, v{base+2*w+h} row_newbcast:{w} row_mask:0xf bank_mask:0xf")
            a(f"v_cvt_pk_bf16_f32 v{vT1}, v{vO+2}, v{vO+3}")
            a(f"s_cbranch_vccz {lab}")

        def ofinal(base):
            tstamp(8)
            a(f"global_store_dword v{vV}, v{vT1}, s[10:11]")
            a("s_branch L_stored" if (tl or amp) else "s_endpgm")
        oissue(vQ)
        for w in range(NW):
            a(f"s_waitcnt lgkmcnt({0 if tl else NW - 1 - w})")
            op = "v_mul_f32_dpp" if w == 0 else "v_fmac_f32_dpp"
            for h in range(2):
                a(f"{op} v{vO+h}, v{vC}, v{vRing+2*w+h} row_newbcast:{w} row_mask:0xf bank_mask:0xf")
        tstamp(7)
        if not o["pipe"]:
            a.label("L_opoll")
            ocheck(vQ, 0, "L_oready")
            oissue(vQ)
            a(f"s_sub_u32 s{sCap}, s{sCap}, 1")
            a(f"s_cmp_lg_u32 s{sCap}, 0")
            a("s_cbranch_scc1 L_opoll")
            a("s_branch L_fin")
            a.label("L_oready")
            ofinal(vQ)
        else:
            vQ2 = vRing + 16
            a.label("L_opoll")
            oissue(vQ2)
            ocheck(vQ, 7, "L_oready")
            oissue(vQ)
            ocheck(vQ2, 7, "L_oready2")
            a(f"s_sub_u32 s{sCap}, s{sCap}, 1")
            a(f"s_cmp_lg_u32 s{sCap}, 0")
            a("s_cbranch_scc1 L_opoll")
            a("s_branch L_fin")
            a.label("L_oready")
            a.label("L_oready2")
            ofinal(vQ)
    a.label("L_barB")
    a(f"s_cmp_eq_u32 s{sRole}, 0")
    a("s_barrier")
    tstamp(6)
    for w in range(NW):
        a(f"ds_read_b64 v[{vRing+2*w}:{vRing+2*w+1}], v{vK} offset:{w*512}")
    if o["spec"]:
        a("s_cbranch_scc0 L_nospec")
        poll_issue()
        a.label("L_nospec")
    for w in range(NW):
        a(f"s_waitcnt lgkmcnt({0 if tl else NW - 1 - w})")
        op = "v_mul_f32_dpp" if w == 0 else "v_fmac_f32_dpp"
        for h in range(2):
            a(f"{op} v{vO+h}, v{vC}, v{vRing+2*w+h} row_newbcast:{w} row_mask:0xf bank_mask:0xf")
    a(f"s_cmp_lg_u32 s{sRole}, 1")
    a(f"v_min_u32 v{vQ}, -2, v{vO}")
    a(f"v_min_u32 v{vQ+1}, -2, v{vO+1}")
    a("s_cbranch_scc1 L_other")
    a.c("the collector runs on this die and has marked the slot: a plain store meets it in the shared L2")
    a(f"global_store_dwordx2 v{vQS}, v[{vQ}:{vQ+1}], s[14:15]")
    tstamp(7)
    if tl:
        a(f"s_mov_b32 s{sCap}, 0")
    a("s_branch L_fin" if (tl or amp) else "s_endpgm")
    a.label("L_other")
    a(f"s_cmp_lg_u32 s{sRole}, 0")
    a("s_cbranch_scc1 L_slowput")
    tstamp(7)
    if o["spec"]:
        a("s_branch L_check")

    def combine(n, vP, m, l, waitfn):
        lg = int(math.log2(n))
        waitfn("ml")
        a(f"v_max_f32_dpp v{vT0}, v{m}, v{m} row_ror:1 row_mask:0xf bank_mask:0xf")
        for k in range(1, lg):
            a("s_nop 1")
            a(f"v_max_f32_dpp v{vT0}, v{vT0}, v{vT0} row_ror:{1<<k} row_mask:0xf bank_mask:0xf")
        a(f"v_sub_f32 v{vT1}, v{m}, v{vT0}")
        a(f"v_exp_f32 v{vT1}, v{vT1}")
        a(f"v_mov_b32 v{vM}, v{vT0}")
        a(f"v_mul_f32 v{vL}, v{l}, v{vT1}")
        waitfn("o")
        for w in range(n):
            op = "v_mul_f32_dpp" if w == 0 else "v_fmac_f32_dpp"
            for h in range(2):
                a(f"{op} v{vO+h}, v{vT1}, v{vP+2*w+h} row_newbcast:{w} row_mask:0xf bank_mask:0xf")
            if w < lg:
                a(f"v_add_f32_dpp v{vL}, v{vL}, v{vL} row_ror:{1<<w} row_mask:0xf bank_mask:0xf")

    a.label("L_poll")
    poll_issue()
    a.label("L_check")
    a("s_waitcnt vmcnt(7)")
    a(f"v_cndmask_b32 v{vQM}, v{vQM}, v{vM}, s[{sOwn}:{sOwn+1}]")
    a(f"v_cndmask_b32 v{vQL}, v{vQL}, v{vL}, s[{sOwn}:{sOwn+1}]")
    a(f"v_max_u32 v{vT0}, v{vQM}, v{vQL}")
    for w in range(1, S):
        a(f"s_waitcnt vmcnt({S-1-w})")
        a(f"v_max3_u32 v{vT0}, v{vT0}, v{vQ+2*w}, v{vQ+2*w+1}")
    a(f"v_cmp_eq_u32 vcc, -1, v{vT0}")
    a("s_cbranch_vccz L_ready")
    a(f"s_sub_u32 s{sCap}, s{sCap}, 1")
    a(f"s_and_b32 s3, s{sCap}, 7")
    a(f"s_cselect_b32 s3, s{sDone}, 1")
    a(f"s_cmp_eq_u32 s3, 0")
    a("s_cbranch_scc1 L_poll")
    a("s_branch L_slowpoll")
    a.label("L_ready")
    tstamp(8)
    a(f"v_max_f32_dpp v{vT0}, v{vQM}, v{vQM} row_ror:1 row_mask:0xf bank_mask:0xf")
    for k in (2, 4):
        a("s_nop 1")
        a(f"v_max_f32_dpp v{vT0}, v{vT0}, v{vT0} row_ror:{k} row_mask:0xf bank_mask:0xf")
    a(f"v_sub_f32 v{vG}, v{vQM}, v{vT0}")
    a(f"v_exp_f32 v{vG}, v{vG}")
    a("s_nop 0")
    a(f"v_mul_f32 v{vT0}, v{vQL}, v{vG}")
    for k in (1, 2, 4):
        a("s_nop 1")
        a(f"v_add_f32_dpp v{vT0}, v{vT0}, v{vT0} row_ror:{k} row_mask:0xf bank_mask:0xf")
    a(f"v_rcp_f32 v{vT0}, v{vT0}")
    a("s_nop 0")
    a(f"v_mul_f32 v{vG}, v{vG}, v{vT0}")
    a("s_nop 1")
    for w in range(S):
        op = "v_mul_f32_dpp" if w == 0 else "v_fmac_f32_dpp"
        for h in range(2):
            a(f"{op} v{vO+h}, v{vG}, v{vQ+2*w+h} row_newbcast:{w} row_mask:0xf bank_mask:0xf")
        a("s_nop 0")
    a(f"v_cvt_pk_bf16_f32 v{vO}, v{vO}, v{vO+1}")
    a(f"global_store_dword v{vV}, v{vO}, s[10:11]")
    a.label("L_stored")
    if tl:
        a("s_waitcnt vmcnt(0)")
        tstamp(9)
    if amp:
        a("s_waitcnt vmcnt(0)")
        a(f"v_mov_b32 v{vT0}, 128")
        a(f"v_mov_b32 v{vT1}, 0x10000")
        a("s_mov_b64 exec, 1")
        a(f"global_atomic_add v{vT0}, v{vT1}, s[12:13]")
    a("s_branch L_fin" if (tl or amp) else "s_endpgm")
    a.label("L_slowput")
    a.c("collector on another die, or not announced yet: write through to the second slot set, then flag this split as done")
    a(f"v_add_u32 v{vQS}, {SLOW}, v{vQS}")
    a(f"s_lshl_b32 s3, s{sSplit}, 8")
    a(f"s_add_u32 s3, s3, s{sHB}")
    a(f"s_add_u32 s3, s3, {SLOW + 4096}")
    a(f"v_mov_b32 v{vQD}, s3")
    a(f"global_store_dwordx2 v{vQS}, v[{vQ}:{vQ+1}], s[14:15] sc1")
    a("s_mov_b64 exec, 1")
    a(f"global_store_dwordx2 v{vQD}, v[{vM}:{vL}], s[14:15] sc1")
    a(f"s_lshl_b32 s3, 1, s{sSplit}")
    a(f"v_mov_b32 v{vT0}, s{sDbg}")
    a(f"v_mov_b32 v{vT1}, s3")
    a("s_waitcnt vmcnt(0)")
    a(f"global_atomic_or v{vT0}, v{vT1}, s[12:13] offset:128")
    if tl:
        a(f"s_mov_b32 s{sCap}, 0")
        a(f"s_mov_b32 s71, 100")
    a("s_branch L_fin" if (tl or amp) else "s_endpgm")
    a.label("L_slowpoll")
    a.c("collector: look for splits that used the second slot set")
    a(f"s_cmp_eq_u32 s{sCap}, 0")
    a("s_cbranch_scc1 L_fin")
    a(f"v_mov_b32 v{vT0}, s{sDbg}")
    a(f"global_load_dword v{vT1}, v{vT0}, s[12:13] offset:128 sc1")
    a(f"v_and_b32 v{vT0}, 7, v0")
    a("s_waitcnt vmcnt(0)")
    a(f"v_readfirstlane_b32 s{sDone}, v{vT1}")
    a(f"v_lshrrev_b32 v{vT1}, v{vT0}, v{vT1}")
    a(f"v_and_b32 v{vT1}, 1, v{vT1}")
    a(f"v_cmp_eq_u32 vcc, 1, v{vT1}")
    a(f"s_add_u32 s3, s{sHB}, {SLOW + 4096}")
    a(f"v_lshl_add_u32 v{vT0}, v{vT0}, 8, s3")
    a(f"s_and_b32 s{sDone}, s{sDone}, 0xff")
    a(f"v_cndmask_b32 v{vT1}, v{vQC}, v{vT0}, vcc")
    a(f"global_load_dwordx2 v[{vQM}:{vQL}], v{vT1}, s[14:15] sc1")
    for w in range(1, S):
        a(f"s_bitcmp1_b32 s{sDone}, {w}")
        a(f"s_cselect_b32 s3, {SLOW}, 0")
        a(f"v_add_u32 v{vT1}, s3, v{vQA}")
        a(f"global_load_dwordx2 v[{vQ+2*w}:{vQ+2*w+1}], v{vT1}, s[14:15] offset:{w * 512} sc1")
    a("s_branch L_check")
    a.label("L_fin")
    if tl:
        a("s_mov_b64 exec, -1")
        a("s_getreg_b32 s46, hwreg(HW_REG_XCC_ID)")
        a("s_getreg_b32 s47, hwreg(HW_REG_HW_ID)")
        a("s_waitcnt lgkmcnt(0)")
        a(f"v_mov_b32 v{vT1}, 0")
        for i in range(10):
            a(f"v_writelane_b32 v{vT1}, s{48+2*i}, {i}")
        a(f"v_writelane_b32 v{vT1}, s{sCap}, 11")
        a(f"v_writelane_b32 v{vT1}, s71, 12")
        a(f"v_writelane_b32 v{vT1}, s46, 14")
        a(f"v_writelane_b32 v{vT1}, s47, 15")
        a(f"s_mul_i32 s46, s2, 5")
        a(f"s_add_u32 s46, s46, s{sW}")
        a(f"s_lshl_b32 s46, s46, 6")
        a(f"s_add_u32 s46, s46, 0x100000")
        a(f"v_lshlrev_b32 v{vT0}, 2, v0")
        a(f"v_add_u32 v{vT0}, s46, v{vT0}")
        a("s_mov_b64 exec, 0xffff")
        a(f"global_store_dword v{vT0}, v{vT1}, s[14:15]")
    if amp:
        a.c("diagnostic only: workgroup 0 waits for all heads, then holds for amp x elapsed")
        a(f"s_xor_b32 s44, s{sW}, {NW}")
        a(f"s_or_b32 s44, s44, s2")
        a("s_cmp_lg_u32 s44, 0")
        a("s_cbranch_scc1 L_end")
        a("s_mov_b64 exec, 1")
        a(f"v_mov_b32 v{vT0}, 128")
        a("s_mov_b32 s44, 200000")
        a.label("L_apoll")
        a(f"global_load_dword v{vT1}, v{vT0}, s[12:13] sc1")
        a("s_waitcnt vmcnt(0)")
        a(f"v_readfirstlane_b32 s45, v{vT1}")
        a("s_lshr_b32 s45, s45, 16")
        a("s_sub_u32 s44, s44, 1")
        a("s_cmp_eq_u32 s44, 0")
        a("s_cbranch_scc1 L_end")
        a("s_cmp_lt_u32 s45, 32")
        a("s_cbranch_scc1 L_apoll")
        a("s_memrealtime s[42:43]")
        a("s_waitcnt lgkmcnt(0)")
        a("s_sub_u32 s44, s42, s40")
        a("s_min_u32 s44, s44, 20000")
        if amp > 0:
            a(f"s_mul_i32 s44, s44, {amp}")
        else:
            a("s_getreg_b32 s44, hwreg(HW_REG_XCC_ID, 0, 4)")
            a("s_mul_i32 s44, s44, 10000")
        a("s_add_u32 s40, s42, s44")
        a.label("L_spin")
        a("s_memrealtime s[42:43]")
        a("s_waitcnt lgkmcnt(0)")
        a("s_sub_u32 s42, s42, s40")
        a("s_cmp_lt_i32 s42, 0")
        a("s_cbranch_scc1 L_spin")
    a.label("L_end")
    a("s_endpgm")
    if tl:
        i = next(k for k, ln in enumerate(a.lines) if "s_memrealtime s[48:49]" in ln)
        a.lines.insert(i, "    s_mov_b32 s71, 0")

    lds = max(o['ldsmin'], NW * 512 + NW * 8)
    nv = max(nv, o['nvmin'])
    out = HEADER
    if o["noclr"]:
        out += "; hostclear\n"
    out += f"; @launch grid=({NWG},1,1) block=({NW*64+64},1,1) lds={lds}\n"
    out += DOC
    out += '.amdgcn_target "amdgcn-amd-amdhsa--gfx950"\n.text\n'
    if o["tpad"]:
        out += f".fill {o['tpad'] // 4}, 4, 0xbf800000\n"
    out += f".globl {NAME}\n.p2align 8\n.type {NAME},@function\n{NAME}:\n"
    out += "\n".join(a.lines) + "\n"
    acc = (nv + 3) // 4 * 4
    out += '.section .rodata,"a"\n'
    if o["kpad"]:
        out += f".fill {o['kpad'] // 4}, 4, 0\n"
    out += f""".p2align 6
.amdhsa_kernel {NAME}
  .amdhsa_next_free_vgpr {nv}
  .amdhsa_next_free_sgpr {o['nsg'] or (96 if kpat else (72 if tl else 48))}
  .amdhsa_accum_offset {acc}
  .amdhsa_group_segment_fixed_size 0
  .amdhsa_kernarg_size 48
  .amdhsa_user_sgpr_count 2
  .amdhsa_user_sgpr_kernarg_segment_ptr 1
  .amdhsa_system_sgpr_workgroup_id_x 1
  .amdhsa_float_denorm_mode_32 3
.end_amdhsa_kernel
"""
    return out


if __name__ == "__main__":
    p = argparse.ArgumentParser()
    p.add_argument("-o", required=True)
    for k, d in DEFAULTS.items():
        p.add_argument("--" + k, type=type(d), default=d)
    args = vars(p.parse_args())
    fn = args.pop("o")
    open(fn, "w").write(gen(**args))
```
